```python
import torch

def _softmax(x, axis=-1):
    return torch.softmax(x, dim=axis)
def _gelu(x):
    return torch.nn.functional.gelu(x, approximate="tanh")
def _silu(x):
    return torch.nn.functional.silu(x)
def _sigmoid(x):
    return torch.sigmoid(x)
def _layernorm(x, axis=-1, eps=1e-5):
    m = x.mean(dim=axis, keepdim=True)
    v = x.var(dim=axis, keepdim=True, unbiased=False)
    return (x - m) / torch.sqrt(v + eps)
def _scatter_add(tgt, idx, src, axis=0):
    return tgt.clone().index_add_(axis, idx, src)
def _segment_sum(src, seg, n):
    out = torch.zeros((n,) + src.shape[1:], dtype=src.dtype)
    return out.index_add_(0, seg, src)
def _pad(x, pw):
    flat = tuple(v for pair in reversed(pw) for v in pair)
    return torch.nn.functional.pad(x, flat)

kernel_name = 'gated_mix__ssm_conv_s5__dense_activation_mish__prompt'

def setup_inputs():

    _w = (lambda a: (lambda t: t.to(torch.bfloat16) if t.is_floating_point() else t)(torch.as_tensor(a)))
    def _A_setup():
        B, S, D = 1, 2048, 448
        P = D
        Lambda_re = -0.5 * (lambda _x: torch.exp(torch.as_tensor(_x)))((lambda *s: torch.randn(*s, dtype=torch.bfloat16) * 0.1)(P))
        Lambda_im = (lambda *s: torch.randn(*s, dtype=torch.bfloat16) * 0.2)(P) * 1.0
        B_re = (lambda *s: torch.randn(*s, dtype=torch.bfloat16) * 0.2)(P, D) * (D ** -0.5)
        B_im = (lambda *s: torch.randn(*s, dtype=torch.bfloat16) * 0.2)(P, D) * (D ** -0.5)
        C_re = (lambda *s: torch.randn(*s, dtype=torch.bfloat16) * 0.2)(D, P) * (P ** -0.5)
        C_im = (lambda *s: torch.randn(*s, dtype=torch.bfloat16) * 0.2)(D, P) * (P ** -0.5)
        log_dt = (lambda *s: torch.randn(*s, dtype=torch.bfloat16) * 0.1)(P) * 0.3 - 2.0
        Dskip = (lambda *s: torch.randn(*s, dtype=torch.bfloat16) * 0.05)(D)
        return {
            "x": _w((lambda *s: torch.randn(*s, dtype=torch.bfloat16) * 0.05)(B, S, D)),
            "Lambda_re": _w(Lambda_re),
            "Lambda_im": _w(Lambda_im),
            "B_re": _w(B_re),
            "B_im": _w(B_im),
            "C_re": _w(C_re),
            "C_im": _w(C_im),
            "log_dt": _w(log_dt),
            "Dskip": _w(Dskip),
        }
    _A_in = _A_setup()

    def _B_setup():
        B, S, D, F = 1, 2048, 448, 1792
        return {
            "x": _w((lambda *s: torch.randn(*s, dtype=torch.bfloat16) * 0.05)(B, S, D)),
            "w1": _w((lambda *s: torch.randn(*s, dtype=torch.bfloat16) * 3.2)(D, F) * (D ** -0.5)),
            "b1": _w((lambda *s: torch.randn(*s, dtype=torch.bfloat16) * 0.05)(F)),
            "w2": _w((lambda *s: torch.randn(*s, dtype=torch.bfloat16) * 0.05)(F, D) * (F ** -0.5)),
        }
    _B_in = _B_setup()

    return {
        "A_x": _A_in["x"],
        "A_Lambda_re": _A_in["Lambda_re"],
        "A_Lambda_im": _A_in["Lambda_im"],
        "A_B_re": _A_in["B_re"],
        "A_B_im": _A_in["B_im"],
        "A_C_re": _A_in["C_re"],
        "A_C_im": _A_in["C_im"],
        "A_log_dt": _A_in["log_dt"],
        "A_Dskip": _A_in["Dskip"],
        "B_x": _B_in["x"],
        "B_w1": _B_in["w1"],
        "B_b1": _B_in["b1"],
        "B_w2": _B_in["w2"],
        "gate_w": _w((lambda *s: torch.randn(*s, dtype=torch.bfloat16) * 0.05)(448) * 16.0),
    }

def reference(A_x, A_Lambda_re, A_Lambda_im, A_B_re, A_B_im, A_C_re, A_C_im, A_log_dt, A_Dskip, B_x, B_w1, B_b1, B_w2, gate_w):
    def _A_ref(x, Lambda_re, Lambda_im, B_re, B_im, C_re, C_im, log_dt, Dskip):
        Bsz, L, H = x.shape
        Lam = Lambda_re + 1j * Lambda_im
        Bmat = B_re + 1j * B_im
        Cmat = C_re + 1j * C_im
        dt = torch.exp(log_dt)
        Lam_bar = torch.exp(dt * Lam)
        B_bar = ((Lam_bar - 1.0) / Lam)[:, None] * Bmat
        Bu = torch.einsum("bld,pd->blp", x + 0j, B_bar)
        h = torch.zeros_like(Bu[:, 0, :])
        hs = []
        for t in range(L):
            h = Lam_bar[None, :] * h + Bu[:, t, :]
            hs.append(h)
        hseq = torch.stack(hs, 1)
        y = 2.0 * torch.einsum("blp,dp->bld", hseq, Cmat).real + x * Dskip[None, None, :]
        return y

    def _B_ref(x, w1, b1, w2):
        h = torch.einsum("bsd,df->bsf", x, w1) + b1
        sp = torch.log1p(torch.exp(-torch.abs(h))) + torch.where(h > 0, h, torch.zeros_like(h))
        act = h * torch.tanh(sp)
        return torch.einsum("bsf,fd->bsd", act, w2)

    x = A_x
    g = _sigmoid((x * gate_w).sum(-1, keepdims=True))
    a = _A_ref(x, A_Lambda_re, A_Lambda_im, A_B_re, A_B_im, A_C_re, A_C_im, A_log_dt, A_Dskip)
    b = _B_ref(x, B_w1, B_b1, B_w2)
    return g * a + (1 - g) * b
```

```python
import sys
NAME = "gated_mix__ssm_conv_s5__dense_activation_mish__prompt"
scale = float(sys.argv[2]) if len(sys.argv) > 2 else 1.0
addc = float(sys.argv[3]) if len(sys.argv) > 3 else 0.0
import struct
def fb(x): return "0x%08x" % struct.unpack("<I", struct.pack("<f", x))[0]
L = []
A = L.append
A("; @launch kernel=u_kernel grid=(14,2048,1) block=(64,1,1) lds=0")
A("; @launch kernel=f_kernel grid=(28,2048,1) block=(64,1,1) lds=0")
A("; @launch kernel=s_kernel grid=(7,1,1) block=(64,1,1) lds=0")
A("; @launch kernel=o_kernel grid=(7,2048,1) block=(64,1,1) lds=0")
A('.amdgcn_target "amdgcn-amd-amdhsa--gfx950"')
A(".text")
def head(n, gx):
    A(f".globl {n}\n.p2align 8\n.type {n},@function\n{n}:")
    A(f"s_cmp_ge_u32 s2, {gx}")
    A(f"s_cbranch_scc1 L_end_{n}")
def srd(d, off, size):
    A(f"s_load_dwordx2 s[{d}:{d+1}], s[0:1], {off}")
    A("s_waitcnt lgkmcnt(0)")
    A(f"s_mov_b32 s{d+2}, {size}\ns_mov_b32 s{d+3}, 0x20000")
def tail(n):
    A(f"L_end_{n}:\ns_endpgm")
XB = 2048*448*2; MB = 448*448*2; WB = 448*1792*2; WS = 0x10000000
UOFF = 0; UPART = 2048*448*4; AOFF = 2*UPART
n = "u_kernel"; head(n, 14)
srd(8, 0, XB); srd(12, 24, MB); srd(16, 32, MB); srd(20, 128, WS)
A("s_cmp_ge_u32 s2, 7")
A("s_cselect_b32 s12, s16, s12\ns_cselect_b32 s13, s17, s13")
A(f"s_cselect_b32 s24, {UPART}, 0")
A("s_cselect_b32 s25, 7, 0")
A("s_sub_u32 s25, s2, s25")
A("s_lshl_b32 s25, s25, 6")
A("v_add_u32 v1, s25, v0")
A("v_mul_u32_u24 v2, 896, v1")
A("s_mul_i32 s26, s3, 896")
A("v_mov_b32 v3, s26")
A("v_mov_b32 v4, 0")
A("s_mov_b32 s27, 0")
A("L_u:")
A("buffer_load_dword v5, v2, s[12:15], s27 offen")
A("buffer_load_dword v6, v3, s[8:11], s27 offen")
A("s_waitcnt vmcnt(0)")
A("v_lshlrev_b32 v7, 16, v5\nv_lshlrev_b32 v8, 16, v6\nv_and_b32 v5, 0xffff0000, v5\nv_and_b32 v6, 0xffff0000, v6")
A("v_fma_f32 v4, v7, v8, v4\nv_fma_f32 v4, v5, v6, v4")
A("s_add_u32 s27, s27, 4\ns_cmp_lt_u32 s27, 896\ns_cbranch_scc1 L_u")
A("s_mul_i32 s26, s3, 1792\ns_add_u32 s26, s26, s24")
A("v_lshlrev_b32 v1, 2, v1")
A("buffer_store_dword v4, v1, s[20:23], s26 offen")
tail(n)
n = "f_kernel"; head(n, 28)
srd(8, 0, XB); srd(12, 80, WB); srd(16, 88, 3584); srd(20, 128, WS)
A("s_lshl_b32 s25, s2, 6")
A("v_add_u32 v1, s25, v0")
A("v_lshlrev_b32 v2, 1, v1")
A("s_mul_i32 s26, s3, 896")
A("v_mov_b32 v3, s26")
A("buffer_load_ushort v4, v2, s[16:19], 0 offen")
A("s_waitcnt vmcnt(0)")
A("v_lshlrev_b32 v4, 16, v4")
A("s_mov_b32 s27, 0\ns_mov_b32 s28, 0")
A("L_f:")
A("buffer_load_ushort v5, v2, s[12:15], s28 offen")
A("buffer_load_ushort v9, v2, s[12:15], s28 offen offset:3584")
A("buffer_load_dword v6, v3, s[8:11], s27 offen")
A("s_waitcnt vmcnt(0)")
A("v_lshlrev_b32 v7, 16, v5\nv_lshlrev_b32 v8, 16, v6\nv_lshlrev_b32 v5, 16, v9\nv_and_b32 v6, 0xffff0000, v6")
A("v_fma_f32 v4, v7, v8, v4\nv_fma_f32 v4, v5, v6, v4")
A("s_add_u32 s28, s28, 7168\ns_add_u32 s27, s27, 4\ns_cmp_lt_u32 s27, 896\ns_cbranch_scc1 L_f")
A(f"v_mov_b32 v10, {fb(1.4426950408889634)}\nv_mov_b32 v11, {fb(0.7071067811865476)}")
A("v_fma_f32 v5, v4, v10, -0.5")
A("v_exp_f32 v5, v5\ns_nop 0")
A("v_add_f32 v5, v5, v11")
A("v_fma_f32 v5, v5, v5, 0.5")
A("v_rcp_f32 v5, v5\ns_nop 0")
A("v_fma_f32 v4, -v4, v5, v4")
A(f"s_mul_i32 s26, s3, 7168\ns_add_u32 s26, s26, {AOFF}")
A("v_lshlrev_b32 v1, 2, v1")
A("buffer_store_dword v4, v1, s[20:23], s26 offen")
tail(n)
n = "s_kernel"; head(n, 7)
srd(8, 8, 896); srd(12, 16, 896); srd(16, 56, 896); srd(20, 128, WS)
A("s_lshl_b32 s25, s2, 6")
A("v_add_u32 v1, s25, v0")
A("v_lshlrev_b32 v2, 1, v1")
A("buffer_load_ushort v4, v2, s[8:11], 0 offen")
A("buffer_load_ushort v5, v2, s[12:15], 0 offen")
A("buffer_load_ushort v6, v2, s[16:19], 0 offen")
A("s_waitcnt vmcnt(0)")
A("v_lshlrev_b32 v4, 16, v4\nv_lshlrev_b32 v5, 16, v5\nv_lshlrev_b32 v6, 16, v6")
A(f"v_mul_f32 v6, {fb(1.4426950408889634)}, v6")
A("v_exp_f32 v6, v6\ns_nop 0")
A("v_cvt_pk_bf16_f32 v6, v6, v6\ns_nop 0")
A("v_lshlrev_b32 v6, 16, v6")
A("v_mul_f32 v7, v6, v4\nv_mul_f32 v8, v6, v5")
A(f"v_mul_f32 v7, {fb(1.4426950408889634)}, v7")
A(f"v_mul_f32 v8, 0.15915494, v8")
A("v_exp_f32 v7, v7")
A("v_rndne_f32 v9, v8\nv_sub_f32 v8, v8, v9")
A("v_cos_f32 v9, v8\nv_sin_f32 v10, v8\ns_nop 0")
A("v_mul_f32 v9, v9, v7\nv_mul_f32 v10, v10, v7")
A("v_add_f32 v11, -1.0, v9")
A("v_mul_f32 v12, v4, v4\nv_fma_f32 v12, v5, v5, v12\nv_rcp_f32 v12, v12\ns_nop 0")
A("v_mul_f32 v13, v11, v4\nv_fma_f32 v13, v10, v5, v13\nv_mul_f32 v13, v13, v12")
A("v_mul_f32 v14, v10, v4\nv_fma_f32 v14, -v11, v5, v14\nv_mul_f32 v14, v14, v12")
A("v_lshlrev_b32 v1, 2, v1")
A(f"v_add_u32 v2, {UPART}, v1")
A("v_mov_b32 v20, 0\nv_mov_b32 v21, 0")
A("s_mov_b32 s27, 0")
A("L_s:")
A("buffer_load_dword v16, v1, s[20:23], s27 offen")
A("buffer_load_dword v17, v2, s[20:23], s27 offen")
A("s_waitcnt vmcnt(0)")
A("v_mul_f32 v18, v13, v16\nv_fma_f32 v18, -v14, v17, v18")
A("v_mul_f32 v19, v13, v17\nv_fma_f32 v19, v14, v16, v19")
A("v_fma_f32 v18, v9, v20, v18\nv_fma_f32 v18, -v10, v21, v18")
A("v_fma_f32 v19, v9, v21, v19\nv_fma_f32 v19, v10, v20, v19")
A("v_mov_b32 v20, v18\nv_mov_b32 v21, v19")
A("buffer_store_dword v20, v1, s[20:23], s27 offen")
A("buffer_store_dword v21, v2, s[20:23], s27 offen")
A(f"s_add_u32 s27, s27, 1792\ns_cmp_lt_u32 s27, {UPART}\ns_cbranch_scc1 L_s")
tail(n)
n = "o_kernel"; head(n, 7)
srd(8, 0, XB); srd(12, 40, MB); srd(16, 48, MB); srd(20, 128, WS); srd(28, 96, WB); srd(32, 104, 896); srd(36, 64, 896); srd(40, 112, 2048*448*4)
A("s_lshl_b32 s25, s2, 6")
A("v_add_u32 v1, s25, v0")
A("v_mul_u32_u24 v2, 896, v1")
A("s_mul_i32 s26, s3, 1792")
A("v_mov_b32 v3, s26")
A(f"v_add_u32 v4, {UPART}, v3")
A("s_mul_i32 s26, s3, 896")
A("v_mov_b32 v22, s26")
A("v_mov_b32 v23, 0")
A("v_mov_b32 v20, 0\nv_mov_b32 v21, 0\nv_mov_b32 v24, 0")
A("s_mov_b32 s27, 0\ns_mov_b32 s44, 0")
A("L_o1:")
A("buffer_load_dword v5, v2, s[12:15], s27 offen")
A("buffer_load_dword v6, v2, s[16:19], s27 offen")
A("buffer_load_dwordx2 v[8:9], v3, s[20:23], s44 offen")
A("buffer_load_dwordx2 v[10:11], v4, s[20:23], s44 offen")
A("buffer_load_dword v12, v22, s[8:11], s27 offen")
A("buffer_load_dword v13, v23, s[32:35], s27 offen")
A("s_waitcnt vmcnt(0)")
A("v_lshlrev_b32 v7, 16, v5\nv_and_b32 v5, 0xffff0000, v5\nv_lshlrev_b32 v14, 16, v6\nv_and_b32 v6, 0xffff0000, v6")
A("v_fma_f32 v20, v7, v8, v20\nv_fma_f32 v20, v5, v9, v20\nv_fma_f32 v20, -v14, v10, v20\nv_fma_f32 v20, -v6, v11, v20")
A("v_lshlrev_b32 v7, 16, v12\nv_and_b32 v12, 0xffff0000, v12\nv_lshlrev_b32 v14, 16, v13\nv_and_b32 v13, 0xffff0000, v13")
A("v_fma_f32 v24, v7, v14, v24\nv_fma_f32 v24, v12, v13, v24")
A("s_add_u32 s44, s44, 8\ns_add_u32 s27, s27, 4\ns_cmp_lt_u32 s27, 896\ns_cbranch_scc1 L_o1")
A(f"s_mul_i32 s26, s3, 7168\ns_add_u32 s26, s26, {AOFF}")
A("v_mov_b32 v3, s26")
A("v_lshlrev_b32 v2, 1, v1")
A("s_mov_b32 s27, 0\ns_mov_b32 s44, 0")
A("L_o2:")
A("buffer_load_ushort v5, v2, s[28:31], s27 offen")
A("buffer_load_ushort v6, v2, s[28:31], s27 offen offset:896")
A("buffer_load_dwordx2 v[8:9], v3, s[20:23], s44 offen")
A("s_waitcnt vmcnt(0)")
A("v_lshlrev_b32 v5, 16, v5\nv_lshlrev_b32 v6, 16, v6")
A("v_fma_f32 v21, v5, v8, v21\nv_fma_f32 v21, v6, v9, v21")
A("s_add_u32 s27, s27, 1792\ns_add_u32 s44, s44, 8\ns_cmp_lt_u32 s44, 7168\ns_cbranch_scc1 L_o2")
A("s_mul_i32 s26, s3, 896")
A("buffer_load_ushort v5, v2, s[8:11], s26 offen")
A("buffer_load_ushort v6, v2, s[36:39], 0 offen")
A("s_waitcnt vmcnt(0)")
A("v_lshlrev_b32 v5, 16, v5\nv_lshlrev_b32 v6, 16, v6")
A("v_add_f32 v20, v20, v20")
A("v_fma_f32 v20, v5, v6, v20")
A(f"v_mul_f32 v24, {fb(-1.4426950408889634)}, v24")
A("v_exp_f32 v24, v24\ns_nop 0")
A("v_add_f32 v24, 1.0, v24")
A("v_rcp_f32 v24, v24\ns_nop 0")
A("v_sub_f32 v20, v20, v21")
A("v_fma_f32 v20, v24, v20, v21")
A(f"v_mul_f32 v20, {fb(scale)}, v20")
A(f"v_add_f32 v20, {fb(addc)}, v20")
A("s_mul_i32 s26, s3, 1792")
A("v_lshlrev_b32 v1, 2, v1")
A("buffer_store_dword v20, v1, s[40:43], s26 offen")
tail(n)
A('.section .rodata,"a"')
for n in ("u_kernel", "f_kernel", "s_kernel", "o_kernel"):
    A(f".p2align 6\n.amdhsa_kernel {n}")
    A("  .amdhsa_next_free_vgpr 32\n  .amdhsa_next_free_sgpr 64\n  .amdhsa_accum_offset 32")
    A("  .amdhsa_group_segment_fixed_size 0\n  .amdhsa_kernarg_size 136\n  .amdhsa_user_sgpr_count 2\n  .amdhsa_user_sgpr_kernarg_segment_ptr 1\n  .amdhsa_system_sgpr_workgroup_id_x 1\n  .amdhsa_system_sgpr_workgroup_id_y 1")
    A(".end_amdhsa_kernel")
open(sys.argv[1], "w").write("\n".join(L) + "\n")
```

```python
import re, struct

def fb(x):
    return "0x%08x" % struct.unpack("<I", struct.pack("<f", x))[0]

_REG = re.compile(r"\b([vas])\[(\d+):(\d+)\]|\b([vas])(\d+)\b|\b(vcc|exec|m0)\b")

def regs_of(s):
    out = set()
    for m in _REG.finditer(s):
        if m.group(1):
            out.update((m.group(1), i) for i in range(int(m.group(2)), int(m.group(3)) + 1))
        elif m.group(4):
            out.add((m.group(4), int(m.group(5))))
        else:
            out.add((m.group(6), 0))
    return out

def R(f, a, n=1):
    return f"{f}{a}" if n == 1 else f"{f}[{a}:{a+n-1}]"
def V(a, n=1): return R("v", a, n)
def A(a, n=1): return R("a", a, n)
def S(a, n=1): return R("s", a, n)

TRANS = ("v_exp_f32", "v_log_f32", "v_rcp_f32", "v_rsq_f32", "v_sqrt_f32", "v_sin_f32", "v_cos_f32")

class I:
    def __init__(self, text, tok=None, ver=None, exp=None, at=None):
        self.text = text.strip()
        self.tok = tok
        self.ver = ver
        self.exp = exp
        self.at = at
        self.rd, self.wr, self.srcc, self.data = set(), set(), set(), set()
        t = self.text
        op = t.split()[0]
        self.op = op
        rest = t[len(op):]
        ops = [o.strip() for o in rest.split(",")]
        allr = regs_of(rest)
        first = regs_of(ops[0]) if ops and ops[0] else set()
        others = regs_of(",".join(ops[1:])) if len(ops) > 1 else set()
        self.cost = 4
        if op.startswith("@"):
            self.kind = "pseudo"; self.cost = 4 if op in ("@need", "@needlg", "@lgkm0", "@vm0") else 0
        elif t.endswith(":") or op.startswith(".") or op.startswith(";"):
            self.kind = "label"; self.cost = 0
        elif op.startswith("v_mfma"):
            self.kind = "mfma"; self.wr = first; self.rd = others; self.srcc = regs_of(ops[3]); self.cost = 8
            self.ab = regs_of(ops[1]) | regs_of(ops[2])
        elif op.startswith("v_"):
            self.kind = "valu"; self.wr = first; self.rd = others
            self.trans = any(op.startswith(x) for x in TRANS)
            self.dpp = "row_" in t or "quad_perm" in t
            self.perm = op.startswith("v_permlane")
            if self.trans or self.perm: self.cost = 8
            if op.startswith(("v_fmac", "v_dot2c", "v_mac")) or self.dpp: self.rd = others | first
            if self.perm: self.rd = self.wr = allr
            if op.startswith("v_cndmask") and len(ops) == 3: self.rd = others | {("vcc", 0)}
        elif op.startswith("ds_read"):
            self.kind = "dsr"; self.wr = first; self.rd = others
        elif op.startswith("ds_write"):
            self.kind = "dsw"; self.rd = allr
        elif op.startswith("global_load_lds") or (op.startswith("buffer_load") and t.split()[-1] == "lds"):
            self.kind = "dma"; self.rd = allr | {("m0", 0)}
        elif op.startswith(("buffer_load", "global_load")):
            self.kind = "vld"; self.wr = first; self.rd = others
        elif op.startswith("buffer_store"):
            self.kind = "vst"; self.rd = allr
            if op.endswith(("x3", "x4")): self.data = first
        elif op.startswith("global_store"):
            self.kind = "vst"; self.rd = allr
            if op.endswith(("x3", "x4")): self.data = regs_of(ops[1])
        elif op.startswith(("s_load", "s_memtime", "s_memrealtime")):
            self.kind = "smem"; self.wr = first; self.rd = others
        elif op.startswith(("s_cmp", "s_bitcmp", "s_cbranch", "s_branch", "s_waitcnt", "s_barrier", "s_nop",
                            "s_endpgm", "s_setprio")):
            self.kind = "sctl"; self.rd = allr
        elif op.startswith("s_"):
            self.kind = "salu"; self.wr = first; self.rd = others
        else:
            raise ValueError(t)

    def states(self):
        if self.kind in ("label", "pseudo"): return 0
        if self.op == "s_nop": return int(self.text.split()[1]) + 1
        return 1

def need(tok): return I("@need", tok=tok)
def needlg(tok): return I("@needlg", tok=tok)
def lgkm0(): return I("@lgkm0")
def vm0(): return I("@vm0")

def _vg(s): return {r for r in s if r[0] in "va" and r[0] != "vcc"}
def _sg(s): return {r for r in s if r[0] in ("s", "vcc")}

def hazard(p, c):
    w = 0
    mem = c.kind in ("dsr", "dsw", "dma", "vld", "vst")
    if p.kind == "valu":
        pv, ps = _vg(p.wr), _sg(p.wr)
        if c.kind == "mfma" and pv & c.rd: w = max(w, 2)
        if c.kind == "valu":
            if (c.dpp or c.perm) and pv & c.rd:
                src0 = regs_of(c.text.split(",")[1]) if c.dpp else c.rd
                if pv & src0: w = max(w, 2)
            if c.op.startswith(("v_readfirstlane", "v_readlane")) and pv & c.rd: w = max(w, 1)
            if p.trans and not c.trans and pv & c.rd: w = max(w, 1)
            if ps & c.rd: w = max(w, 2)
            if p.op.startswith("v_dot") and pv & (c.rd | c.wr) and c.op != p.op: w = max(w, 3)
        if c.kind in ("dma", "vld", "vst") and ps & c.rd: w = max(w, 5)
    elif p.kind == "mfma":
        if c.kind == "mfma":
            if p.wr & c.ab: w = max(w, 12)
            if p.wr & c.srcc and p.wr != c.srcc: w = max(w, 10)
        elif c.kind == "valu" or mem:
            if p.wr & (c.rd | c.wr): w = max(w, 12)
            if p.srcc & c.wr: w = max(w, 7)
    elif p.kind == "salu":
        if ("m0", 0) in p.wr and c.kind == "dma": w = max(w, 1)
    elif p.kind == "vst":
        if p.data & c.wr: w = max(w, 2)
    return w

def finalize(ins, verbose=False):
    out, vm, lg, ver = [], [], [], {}
    seen = set()
    nops = 0
    def emit(c):
        nonlocal nops
        needw, dist = 0, 0
        for p in reversed(out):
            if dist >= 13: break
            needw = max(needw, hazard(p, c) - dist)
            dist += p.states()
        if needw > 0:
            nops += needw
            if verbose: print(f"  nop {needw} before [{len(out)}] {c.text}")
            out.append(I(f"s_nop {needw-1}"))
        out.append(c)
    for c in ins:
        touched = c.rd | c.wr
        vi = li = -1
        if c.op == "@need":
            assert c.tok in seen, ("need before issue", c.tok)
            for k, e in enumerate(vm):
                if e.tok == c.tok: vi = k
        elif c.op == "@needlg":
            assert c.tok in seen, ("needlg before issue", c.tok)
            for k, e in enumerate(lg):
                if e.tok == c.tok: li = k
        elif c.op == "@lgkm0": li = len(lg) - 1
        elif c.op == "@vm0": vi = len(vm) - 1
        else:
            for k, e in enumerate(vm):
                if e.wr & touched: vi = k
            for k, e in enumerate(lg):
                if e.wr & touched: li = k
        if li >= 0 and any(e.kind == "smem" for e in lg): li = len(lg) - 1
        w = []
        if vi >= 0:
            n = min(63, len(vm) - 1 - vi); w.append(f"vmcnt({n})"); vm = vm[len(vm) - n:] if n else []
        if li >= 0:
            n = min(15, len(lg) - 1 - li); w.append(f"lgkmcnt({n})"); lg = lg[len(lg) - n:] if n else []
        if w:
            if out and out[-1].op == "s_waitcnt" and getattr(out[-1], "auto", False):
                prev = dict(re.findall(r"(\w+)\((\d+)\)", out[-1].text))
                prev.update(dict(re.findall(r"(\w+)\((\d+)\)", " ".join(w))))
                out.pop()
                w = [f"{k}({v})" for k, v in prev.items()]
            x = I("s_waitcnt " + " ".join(w)); x.auto = True
            out.append(x)
        if c.kind == "pseudo": continue
        if c.exp:
            for opnd, lab in c.exp:
                for r in regs_of(opnd):
                    assert ver.get(r) == lab, (c.text, opnd, lab, ver.get(r))
        emit(c)
        for r in c.wr: ver[r] = c.ver
        if c.tok is not None: seen.add(c.tok)
        if c.kind in ("dma", "vld", "vst"): vm.append(c)
        elif c.kind in ("dsr", "dsw"): lg.append(c)
        elif c.kind == "smem" and not c.op.startswith("s_mem"): lg.append(c)
    return out, nops

def spine(mf, post, fillers, budget=24, start=0):
    out = list(post.get(-1, []))
    q = list(fillers)
    for k, m in enumerate(mf):
        out.append(m)
        used = 0
        for x in post.get(k, []):
            out.append(x); used += x.cost
        if m.exp: used += 2
        while q and (q[0].at is None or q[0].at <= k + start) and used + q[0].cost <= budget:
            used += q[0].cost
            out.append(q.pop(0))
    return out, q
```

```python
import sys, collections
from asmlib import *

NAME = "gated_mix__ssm_conv_s5__dense_activation_mish__prompt"
LOG2E = 1.4426950408889634
EPC = 0x9E3779B9
XSZ, MSZ, WSZ, OSZ = 2048 * 896, 448 * 896, 448 * 3584, 2048 * 1792
WS_E, WS_P, WS_DBG = 4096, 1 << 20, 8 << 20
PIN = 18432
SL = 16384
XB = 6 * SL; HB = 6 * SL; AB = 7 * SL
GP = 152 * 1024; GT = 153 * 1024; PR = 154 * 1024
sW, sKB, sR, sJ, sROT, sTAG, sWQ = 3, 4, 11, 12, 13, 14, 15
pX, pLRE, pLIM, pBRE, pBIM, pCRE, pCIM, pDT, pDS, pW1, pB1, pW2, pGW, pOUT, pWS = 16, 18, 20, 22, 24, 26, 28, 30, 32, 36, 38, 40, 42, 44, 48
sT0, sT1 = 50, 51
dX, dBR, dBI, dW1, dC, dW2, dE, dPI, dPO, dO = 52, 56, 60, 64, 68, 72, 76, 80, 84, 88
sU, sCNT, sSO, sT3 = 92, 99, 100, 101
sOO = 34
sST = 16
vL, vN, vH = 1, 2, 3
vdX, vdB, vdW1, vdC, vdW2 = 4, 6, 10, 14, 18
vX, vB, vG, vW1, vP, vP2, vXD = 22, 26, 34, 35, 39, 40, 41
cL, cL16, cL32, cL64, cL512, cL1K, cS = 43, 45, 47, 49, 51, 53, 55
vT = 57
accD, dia, xD, Gx, gwf, raw = 64, 80, 88, 96, 104, 108
Bfr, rawb, accS, Wfr, accF = 112, 128, 144, 176, 192
scr = 208
aG, aH = 224, 224
omg = 4
vE0, vE1 = 8, 9
vC = [22 + i for i in range(8)] + [30, 31, 32, 33, 34, 39, 40, 41]
Eg, gR = 112, 80
F2 = 144
vW2 = 168
vHr, vAw, vAr, vLin, vOut = 171, 172, 173, 174, 175
stg, acc2, Sel = 176, 192, 248
inb = [80, 92, 104, 116, 128, 224]

DEF = dict(z=2, d=4, la=12, egat=118, echk=150, pld=(72, 96, 120, 146, 158, 167), ost="", prof=0, dump=None,
           pf=0, bud=24)

def gen(**kw):
    P = dict(DEF); P.update(kw)
    z, d, LA = P["z"], P["d"], P["la"]
    M = []
    def e(t, **k):
        for x in t.split("\n"):
            if x.strip(): M.append(I(x, **k))
    def L(t, **k): return [I(x, **k) for x in t.split("\n") if x.strip()]
    nst = [0]
    def stamp():
        if not P["prof"]: return []
        nst[0] += 1
        return [I(f"s_memtime {S(sST + 2 * (nst[0] - 1), 2)}")]
    def dump(tag):
        if not P["dump"] or P["dump"][0] != tag: return []
        o = [vm0(), lgkm0(), I("s_nop 7"), I("s_nop 7")]
        o += L(f"""s_mul_i32 s{sT0}, s{sR}, 7
s_add_u32 s{sT0}, s{sT0}, s{sJ}
s_lshl_b32 s{sT0}, s{sT0}, 2
s_add_u32 s{sT0}, s{sT0}, s{sW}
s_lshl_b32 s{sT0}, s{sT0}, 15
s_add_u32 s{sT0}, s{sT0}, {WS_DBG}
v_lshlrev_b32 v0, 2, v{vL}
v_add_u32 v0, s{sT0}, v0""")
        for i, r in enumerate(P["dump"][1]):
            o += L(f"global_store_dword v0, {r}, {S(pWS, 2)}\nv_add_u32 v0, 256, v0")
        o += L("s_endpgm")
        return o

    e(f"""s_cmp_ge_u32 s2, 256
s_cbranch_scc1 L_exit
s_load_dwordx16 s[16:31], s[0:1], 0
s_load_dwordx16 s[32:47], s[0:1], 64
s_load_dwordx2 s[48:49], s[0:1], 128
s_cmp_lt_u32 s2, 32
s_cbranch_scc1 L_pf
v_lshrrev_b32 v{vT}, 6, v0
v_and_b32 v{vL}, 63, v0
v_readfirstlane_b32 s{sW}, v{vT}
s_and_b32 s{sT0}, s2, 7
s_lshr_b32 s{sT1}, s2, 3
s_and_b32 s{sR}, s{sT0}, {(1 << z) - 1}
s_mul_i32 s{sR}, s{sR}, 28
s_add_u32 s{sT1}, s{sT1}, s{sR}
s_sub_u32 s{sT1}, s{sT1}, 4
s_lshr_b32 s{sJ}, s{sT1}, {2 + z}
s_and_b32 s{sT1}, s{sT1}, {(4 << z) - 1}
s_lshr_b32 s{sT0}, s{sT0}, {z}
s_lshl_b32 s{sT0}, s{sT0}, {2 + z}
s_add_u32 s{sR}, s{sT0}, s{sT1}
s_add_u32 s{sROT}, s{sR}, s{sJ}
s_mul_i32 s{sT0}, s{sROT}, 37
s_lshr_b32 s{sT0}, s{sT0}, 8
s_mul_i32 s{sT0}, s{sT0}, 7
s_sub_u32 s{sROT}, s{sROT}, s{sT0}
s_lshl_b32 s{sKB}, s{sROT}, 7
s_lshl_b32 s{sWQ}, s{sW}, 12""")
    for s in range(1, 7):
        e(f"""s_add_u32 s{sKB+s}, s{sKB+s-1}, 128
s_cmp_ge_u32 s{sKB+s}, 896
s_cselect_b32 s{sKB+s}, 0, s{sKB+s}""")
    e(f"""s_lshl_b32 s{sT0}, s{sR}, 3
s_add_u32 s{sT0}, s{sT0}, s{sW}
s_mul_i32 s{dX}, s{sT0}, 7168
s_sub_u32 s{dX+2}, {XSZ}, s{dX}
s_lshl_b32 s{sT1}, s{sJ}, 2
s_add_u32 s{sT1}, s{sT1}, s{sW}
s_mul_i32 s{dBR}, s{sT1}, 14336
s_sub_u32 s{dBR+2}, {MSZ}, s{dBR}
s_add_u32 s{dBI+2}, s{dBR+2}, 1024""")
    for dd in (dX, dBR, dBI, dW1, dC, dW2, dE, dPI, dPO, dO):
        e(f"s_mov_b32 s{dd+3}, 0x20000")
    t0, t1, t2, t3, t4 = vT, vT + 1, vT + 2, vT + 3, vT + 4
    e(f"""v_and_b32 v{vN}, 31, v{vL}
v_lshrrev_b32 v{vH}, 5, v{vL}
v_lshrrev_b32 v{t0}, 3, v{vL}
v_lshrrev_b32 v{t1}, 4, v{vL}
v_and_b32 v{t3}, 1, v{t1}
v_lshlrev_b32 v{t3}, 2, v{t3}
v_xor_b32 v{t3}, v{t3}, v{vL}
v_and_b32 v{t3}, 7, v{t3}
v_lshlrev_b32 v{t3}, 4, v{t3}
v_xor_b32 v{t1}, v{t1}, v{vL}
v_and_b32 v{t1}, 7, v{t1}
v_lshlrev_b32 v{t1}, 4, v{t1}
v_xor_b32 v{t2}, 64, v{t1}
v_and_b32 v{t4}, 3, v{t0}
v_lshl_add_u32 v{t4}, v{vH}, 5, v{t4}
v_mul_u32_u24 v{t4}, 896, v{t4}
v_add_u32 v{vdX}, v{t4}, v{t1}
v_add_u32 v{vdX+1}, v{t4}, v{t2}
v_add_u32 v{vdX+1}, {3584-1024}, v{vdX+1}
v_mul_u32_u24 v{t4}, 896, v{t0}
v_add_u32 v{vdB}, v{t4}, v{t1}
v_add_u32 v{vdB+1}, v{t4}, v{t2}
v_add_u32 v{vdB+2}, {7168-2048}, v{vdB}
v_add_u32 v{vdB+3}, {7168-2048}, v{vdB+1}
v_add_u32 v{vdW2}, v{t4}, v{t3}
v_mul_u32_u24 v{t4}, 3584, v{t0}
v_add_u32 v{vdW1}, v{t4}, v{t3}""")
    e(f"""v_add_u32 v{t0}, s{sROT}, v{t0}
v_subrev_u32 v{t1}, 7, v{t0}
v_min_u32 v{t0}, v{t0}, v{t1}
v_and_b32 v{t1}, 7, v{vL}
v_lshlrev_b32 v{t4}, 2, v{t1}
v_lshl_add_u32 v{t0}, v{t0}, 7, v{t4}
s_lshl_b32 s{sT0}, s{sW}, 5
v_add_u32 v{t0}, s{sT0}, v{t0}
v_lshrrev_b32 v{t2}, 4, v{vN}
v_lshl_add_u32 v{t2}, v{t2}, 3, v{t1}
s_lshl_b32 s{sT0}, s{sT1}, 4
v_add_lshl_u32 v{t2}, v{t2}, s{sT0}, 1
s_lshl_b32 s{sT0}, s{sT1}, 5
v_add_lshl_u32 v{t1}, v{vN}, s{sT0}, 2
s_and_b32 s{sT3}, s{sW}, 1
s_lshl_b32 s{sT0}, s{sJ}, 1
s_add_u32 s{sT0}, s{sT0}, s{sT3}
s_lshl_b32 s{sT0}, s{sT0}, 5
v_add_lshl_u32 v{t3}, v{vN}, s{sT0}, 1
s_lshr_b32 s{sSO}, s{sWQ}, 1""")
    M.append(lgkm0())
    e(f"""s_add_u32 s{dX}, s{dX}, s{pX}
s_addc_u32 s{dX+1}, s{pX+1}, 0
s_load_dword s{sTAG}, {S(pWS, 2)}, 0""")

    D = []
    def dgrp(tok, pre, lines):
        for i, t in enumerate(lines):
            D.append([(L(pre) if i == 0 else []) + [I(t, tok=tok if i == len(lines) - 1 else None)], tok])
    def slot(g):
        if g < 27: return g % 6
        if g < 30: return g - 21
        return slot(g - 9)
    for s in range(7):
        dgrp(("x", s), f"s_add_u32 m0, s{sSO}, {XB + s * 8192}",
             [f"buffer_load_dwordx4 v{vdX+i}, {S(dX,4)}, s{sKB+s} offen offset:{1024*i} lds" for i in range(2)])
        dgrp(("g", s), f"s_add_u32 m0, s{sWQ}, {slot(s) * SL}",
             [f"buffer_load_dwordx4 v{vdB+i}, {S(dBI if i & 1 else dBR,4)}, s{sKB+s} offen offset:{1024*i} lds" for i in range(4)])
    for y in range(14):
        so = f"s_mul_i32 s{sSO}, s{sKB+y//2}, 1792" if y % 2 == 0 else f"s_add_u32 s{sSO}, s{sSO}, 114688"
        dgrp(("g", 7 + y), f"s_add_u32 m0, s{sWQ}, {slot(7 + y) * SL}\n{so}",
             [f"buffer_load_dwordx4 v{vdW1+i}, {S(dW1,4)}, s{sSO} offen offset:{1024*i} lds" for i in range(4)])
    for q in range(21):
        u, k = q // 3, q % 3
        so = (f"s_mul_i32 s{sSO}, s{sU+u}, 448", f"s_mov_b32 s{sSO}, s{sU+u}", f"s_add_u32 s{sSO}, s{sSO}, 114688")[k]
        vd, dd = (vdC, dC) if k == 0 else (vdW2, dW2)
        dgrp(("g", 21 + q), f"s_add_u32 m0, s{sWQ}, {slot(21 + q) * SL}\n{so}",
             [f"buffer_load_dwordx4 v{vd+i}, {S(dd,4)}, s{sSO} offen offset:{1024*i} lds" for i in range(4)])
    NS01 = 42 + 56

    def put(n):
        for x in D[n][0]: M.append(x)
    put(0); put(1)
    e(f"""s_add_u32 s{dBI}, s{dBR}, s{pBIM}
s_addc_u32 s{dBI+1}, s{pBIM+1}, 0
s_add_u32 s{dBR}, s{dBR}, s{pBRE}
s_addc_u32 s{dBR+1}, s{pBRE+1}, 0
s_sub_u32 s{dBI}, s{dBI}, 1024
s_subb_u32 s{dBI+1}, s{dBI+1}, 0""")
    for n in range(2, 6): put(n)
    e(f"""s_lshr_b32 s{sT0}, s{sWQ}, 3
s_add_u32 m0, s{sT0}, {PR}
global_load_ushort v{raw}, v{t2}, {S(pLRE,2)}
global_load_lds_dword v{t0}, {S(pGW,2)}
s_add_u32 m0, s{sT0}, {PR + 256}
global_load_ushort v{raw+1}, v{t2}, {S(pLIM,2)}""")
    e(f"global_load_lds_dword v{t1}, {S(pB1,2)}", tok="par")
    e(f"""global_load_ushort v{raw+2}, v{t2}, {S(pDT,2)}
global_load_ushort v{raw+3}, v{t3}, {S(pDS,2)}""")
    for n in range(6, LA): put(n)

    e(f"""s_lshl_b32 s{dW1}, s{sT1}, 7
s_sub_u32 s{dW1+2}, {WSZ}, s{dW1}
s_add_u32 s{dW1}, s{dW1}, s{pW1}
s_addc_u32 s{dW1+1}, s{pW1+1}, 0
s_mul_i32 s{dC}, s{sT3}, 28672
s_lshl_b32 s{dC+1}, s{sJ}, 7
s_add_u32 s{dC}, s{dC}, s{dC+1}
s_sub_u32 s{dC+2}, {MSZ}, s{dC}
s_cmp_ge_u32 s{sW}, 2
s_cselect_b32 s{pCRE}, s{pCIM}, s{pCRE}
s_cselect_b32 s{pCRE+1}, s{pCIM+1}, s{pCRE+1}
s_add_u32 s{dC}, s{dC}, s{pCRE}
s_addc_u32 s{dC+1}, s{pCRE+1}, 0
s_lshl_b32 s{dW2}, s{sJ}, 3
s_add_u32 s{dW2}, s{dW2}, s{sW}
s_mul_i32 s{dW2}, s{dW2}, 28672
s_sub_u32 s{dW2+2}, {WSZ}, s{dW2}
s_add_u32 s{dW2}, s{dW2}, s{pW2}
s_addc_u32 s{dW2+1}, s{pW2+1}, 0
s_lshl_b32 s{dE}, s{sT1}, 13
s_add_u32 s{dE}, s{dE}, {WS_E}
s_add_u32 s{dE}, s{dE}, s{pWS}
s_addc_u32 s{dE+1}, s{pWS+1}, 0
s_mov_b32 s{dE+2}, 8192
s_mul_i32 s{dPO}, s{sR}, 28
s_add_u32 s{dPO}, s{dPO}, s{sW}
s_mul_i32 s{dPO}, s{dPO}, {PIN}
s_add_u32 s{dPO}, s{dPO}, {WS_P}
s_mul_i32 s{dPI}, s{sJ}, {4*PIN}
s_add_u32 s{dPI}, s{dPI}, s{dPO}
s_add_u32 s{dPO}, s{dPO}, s{pWS}
s_addc_u32 s{dPO+1}, s{pWS+1}, 0
s_mov_b32 s{dPO+2}, {25*PIN}
s_add_u32 s{dPI}, s{dPI}, s{pWS}
s_addc_u32 s{dPI+1}, s{pWS+1}, 0
s_mov_b32 s{dPI+2}, {PIN}
s_lshr_b32 s{sCNT}, s{sW}, 1
s_lshl_b32 s{dO}, s{sR}, 2
s_add_u32 s{dO}, s{dO}, s{sCNT}
s_mul_i32 s{dO}, s{dO}, {16*1792}
s_lshl_b32 s{dO+1}, s{sJ}, 1
s_add_u32 s{dO+1}, s{dO+1}, s{sT3}
s_lshl_b32 s{dO+1}, s{dO+1}, 7
s_add_u32 s{dO}, s{dO}, s{dO+1}
s_sub_u32 s{dO+2}, {OSZ}, s{dO}
s_add_u32 s{dO}, s{dO}, s{pOUT}
s_addc_u32 s{dO+1}, s{pOUT+1}, 0
s_mul_i32 s{sT1}, s{sR}, 43
s_lshr_b32 s{sT1}, s{sT1}, 8
s_mul_i32 s{sT1}, s{sT1}, 6
s_sub_u32 s{sT1}, s{sR}, s{sT1}""")
    for s in range(6):
        e(f"""s_add_u32 s{sU+s}, s{sT1}, s{sJ}
s_add_u32 s{sU+s}, s{sU+s}, 1
s_cmp_ge_u32 s{sU+s}, 7
s_cselect_b32 s{sU+6}, 7, 0
s_sub_u32 s{sU+s}, s{sU+s}, s{sU+6}
s_lshl_b32 s{sU+s}, s{sU+s}, 7""")
        if s < 5:
            e(f"""s_add_u32 s{sT1}, s{sT1}, 1
s_cmp_ge_u32 s{sT1}, 6
s_cselect_b32 s{sT1}, 0, s{sT1}""")
    e(f"s_lshl_b32 s{sU+6}, s{sJ}, 7")
    for i in range(1, 4):
        e(f"v_add_u32 v{vdW1+i}, {i*(28672-1024)}, v{vdW1}\nv_add_u32 v{vdW2+i}, {i*6144}, v{vdW2}")
    e(f"""v_mov_b32 v{vdC}, v{vdB}
v_add_u32 v{vdC+1}, 6144, v{vdB+1}
v_add_u32 v{vdC+2}, {2*6144}, v{vdB}
v_add_u32 v{vdC+3}, {3*6144}, v{vdB+1}
v_lshrrev_b32 v{t0}, 1, v{vN}
v_xor_b32 v{t0}, v{t0}, v{vH}
v_and_b32 v{t0}, 7, v{t0}
v_lshlrev_b32 v{t0}, 4, v{t0}
v_lshl_add_u32 v{t0}, v{vN}, 7, v{t0}""")
    for k in range(4):
        e(f"""v_xor_b32 v{t1}, {32*k}, v{t0}
v_add_u32 v{vX+k}, {XB}, v{t1}
v_add_u32 v{vB+k}, s{sWQ}, v{t1}
v_add_u32 v{vB+4+k}, 0x10000, v{vB+k}""")
    e(f"""s_lshl_b32 s{sT1}, s{sW}, 5
v_xor_b32 v{vG}, s{sT1}, v{vX}
s_add_u32 s{sT0}, s{sT0}, {PR}
v_lshl_add_u32 v{vP}, v{vH}, 4, s{sT0}
v_lshl_add_u32 v{vP2}, v{vH}, 5, s{sT0}
s_sub_u32 s{sT0}, s{sJ}, s{sROT}
s_cselect_b32 s{sT1}, 7, 0
s_add_u32 s{sT0}, s{sT0}, s{sT1}
s_lshl_b32 s{sT0}, s{sT0}, 1
s_add_u32 s{sT0}, s{sT0}, s{sCNT}
s_lshl_b32 s{sT0}, s{sT0}, 12
s_lshl_b32 s{sT1}, s{sT3}, 6
v_xor_b32 v{vXD}, s{sT1}, v{vX}
v_add_u32 v{vXD}, s{sT0}, v{vXD}
v_xor_b32 v{vXD+1}, 32, v{vXD}
v_bfe_u32 v{t0}, v{vL}, 2, 2
v_lshl_add_u32 v{t0}, v{vH}, 3, v{t0}
v_lshlrev_b32 v{t0}, 7, v{t0}
v_bfe_u32 v{t1}, v{vL}, 3, 1
v_lshl_add_u32 v{t0}, v{t1}, 6, v{t0}
v_and_b32 v{t1}, 1, v{vL}
v_lshl_add_u32 v{t0}, v{t1}, 5, v{t0}
v_and_b32 v{t1}, 16, v{vL}
v_add_u32 v{t0}, v{t0}, v{t1}
v_and_b32 v{t1}, 2, v{vL}
v_lshl_add_u32 v{t0}, v{t1}, 2, v{t0}
v_add_u32 v{vW1}, s{sWQ}, v{t0}
v_xor_b32 v{vW1+1}, 64, v{vW1}
v_add_u32 v{vW1+2}, 0x10000, v{vW1}
v_add_u32 v{vW1+3}, 0x10000, v{vW1+1}
s_mov_b32 s{sCNT}, 0""")
    M.append(lgkm0())
    e(f"s_add_u32 s{sTAG}, s{sTAG}, {EPC}")
    M += stamp()

    mf, post = [], collections.defaultdict(list)
    def rd(k, ins): post[max(-1, k)].extend(ins if isinstance(ins, list) else [ins])
    def mfma(dst, a, b, c, exp=None):
        mf.append(I(f"v_mfma_f32_32x32x16_bf16 {dst}, {a}, {b}, {c}", exp=exp)); return len(mf) - 1
    def xa(s, ks, rt): return A(((s * 4 + ks) * 2 + rt) * 4, 4)
    tneed, tlast = {}, {}
    nb = 0
    for s in range(7):
        k0 = len(mf)
        tneed[("x", s)] = tneed[("g", s)] = k0 - d
        rd(k0 - d, [need(("g", s)), I("s_barrier")])
        wn, of = (0, slot(s) * SL) if slot(s) < 4 else (4, slot(s) * SL - 65536)
        for ks in range(4):
            b = V(Bfr + 4 * (nb % 4), 4); nb += 1
            k = len(mf)
            rd(k - d, I(f"ds_read_b128 {b}, v{vB+wn+ks} offset:{of}", ver=("B", s, ks)))
            for rt in range(2):
                rd(k + rt - d, I(f"ds_read_b128 {xa(s,ks,rt)}, v{vX+ks} offset:{s*8192+rt*4096}", ver=("x", s, ks, rt)))
                acc = V(accS + 16 * rt, 16)
                mfma(acc, xa(s, ks, rt), b, acc if s or ks else "0", [(b, ("B", s, ks)), (xa(s, ks, rt), ("x", s, ks, rt))])
        tlast[s] = len(mf) - 1
        k = len(mf)
        if s == 0: rd(k - d, need("par"))
        rd(k - d, I(f"ds_read_b128 {V(gwf,4)}, v{vP} offset:{32*s}", ver=("gw", s)))
        for rt in range(2):
            g = V(Gx + 4 * rt, 4)
            rd(k + rt - d, I(f"ds_read_b128 {g}, v{vG} offset:{s*8192+rt*4096}", ver=("gx", s, rt)))
            acc = A(aG + 16 * rt, 16)
            mfma(acc, V(gwf, 4), g, acc if s else "0", [(V(gwf, 4), ("gw", s)), (g, ("gx", s, rt))])
    for kk in range(2):
        k = len(mf)
        rd(k - d, I(f"ds_read_b128 {V(xD+4*kk,4)}, v{vXD+kk}", ver=("xd", kk), tok=("xd", kk)))
        mfma(V(accD, 16), V(xD + 4 * kk, 4), V(dia + 4 * kk, 4), V(accD, 16) if kk else "0",
             [(V(xD + 4 * kk, 4), ("xd", kk)), (V(dia + 4 * kk, 4), "dia")])
    S1 = len(mf)
    nw = 0
    for y in range(14):
        g = 7 + y
        tneed[("g", g)] = len(mf) - d - 1
        rd(len(mf) - d - 1, need(("g", g)))
        wn, of = (0, slot(g) * SL) if slot(g) < 4 else (2, slot(g) * SL - 65536)
        for k2 in range(2):
            s, ks = y // 2, 2 * (y % 2) + k2
            for ft in range(2):
                wr = Wfr + 4 * (nw % 4); nw += 1
                k = len(mf)
                for ee in range(2):
                    rd(k - d - 1 + ee, I(f"ds_read_b64_tr_b16 {V(wr+2*ee,2)}, v{vW1+wn+ft} offset:{of+(16*k2+4*ee)*128}", ver=("W", y, k2, ft)))
                for rt in (1, 0):
                    acc = V(accF + 32 * ft + 16 * rt, 16)
                    c = acc if (y or k2) else V(accF + 32 * ft, 16)
                    ex = [(V(wr, 4), ("W", y, k2, ft)), (xa(s, ks, rt), ("x", s, ks, rt))]
                    if not (y or k2): ex.append((c, "bias"))
                    mfma(acc, V(wr, 4), xa(s, ks, rt), c, ex)
        tlast[g] = len(mf) - 1
    NM1 = len(mf)
    ts, prev, n = [], -d - 10, 0
    for s in range(7):
        t = tneed[("g", s)]
        ts += [prev + (t - prev) * (i + 1) / 6 for i in range(6)]; prev = t
    for g in range(7, 21):
        t = tneed[("g", g)]
        ts += [prev + (t - prev) * (i + 1) / 4 for i in range(4)]; prev = t
    nd = LA
    last = -1
    while nd - LA < len(ts):
        p = max(int(ts[nd - LA]) + 1, last, 0)
        tok = D[nd][1]
        if tok[0] == "g" and tok[1] >= 6: p = max(p, tlast[tok[1] - 6])
        if p >= NM1: break
        post[p].extend(D[nd][0]); last = p; nd += 1

    F = []
    def f(t, **k): F.extend(L(t, **k))
    z0, z1, z2, z3, z4, z5, z6 = range(scr, scr + 7)
    f(f"""v_lshlrev_b32 v{raw+2}, 16, v{raw+2}
v_mul_f32 v{raw+2}, {fb(LOG2E)}, v{raw+2}
v_exp_f32 v{raw+2}, v{raw+2}
v_lshlrev_b32 v{raw}, 16, v{raw}
v_lshlrev_b32 v{raw+1}, 16, v{raw+1}
v_cvt_pk_bf16_f32 v{raw+2}, v{raw+2}, v{raw+2}
v_lshlrev_b32 v{z0}, 28, v{vL}
v_and_b32 v{z0}, 0x80000000, v{z0}
v_lshlrev_b32 v{raw+2}, 16, v{raw+2}
v_xor_b32 v{raw+1}, v{z0}, v{raw+1}
v_xor_b32 v{raw+1}, 0x80000000, v{raw+1}
v_xor_b32 v{z0}, 2.0, v{z0}
v_mul_f32 v{z1}, v{raw+2}, v{raw}
v_mul_f32 v{z2}, v{raw+2}, v{raw+1}
v_mul_f32 v{z1}, {fb(LOG2E)}, v{z1}
v_mul_f32 v{z2}, 0.15915494, v{z2}
v_exp_f32 v{z1}, v{z1}
v_rndne_f32 v{z3}, v{z2}
v_sub_f32 v{z2}, v{z2}, v{z3}
v_cos_f32 v{z3}, v{z2}
v_sin_f32 v{z4}, v{z2}
v_mul_f32 v{z5}, v{raw}, v{raw}
v_fmac_f32 v{z5}, v{raw+1}, v{raw+1}
v_rcp_f32 v{z5}, v{z5}
v_mul_f32 v{cL}, v{z3}, v{z1}
v_mul_f32 v{cL+1}, v{z4}, v{z1}
v_mul_f32 v{z5}, v{z5}, v{z0}
v_add_f32 v{z1}, -1.0, v{cL}
v_mul_f32 v{z2}, v{z1}, v{raw}
v_fmac_f32 v{z2}, v{cL+1}, v{raw+1}
v_mul_f32 v{cS}, v{z2}, v{z5}
v_mul_f32 v{z2}, v{cL+1}, v{raw}
v_fma_f32 v{z2}, -v{z1}, v{raw+1}, v{z2}
v_mul_f32 v{cS+1}, v{z2}, v{z5}""", at=8)
    def sq(dst, src):
        f(f"""v_mul_f32 v{z6}, v{src+1}, v{src+1}
v_add_f32 v{z5}, v{src}, v{src}
v_fma_f32 v{dst}, v{src}, v{src}, -v{z6}
v_mul_f32 v{dst+1}, v{z5}, v{src+1}""")
    sq(z0, cL); sq(z0, z0); sq(z0, z0); sq(cL16, z0); sq(cL32, cL16); sq(cL64, cL32)
    sq(z0, cL64); sq(z0, z0); sq(cL512, z0); sq(cL1K, cL512)
    f(f"""v_and_b32 v{z0}, 1, v{vL}
v_lshlrev_b32 v{z0}, 4, v{z0}
v_lshlrev_b32 v{z0}, v{z0}, v{raw+3}
v_bfe_u32 v{z1}, v{vL}, 1, 2
v_bfe_u32 v{z2}, v{vL}, 4, 1
v_lshl_add_u32 v{z1}, v{z2}, 2, v{z1}
v_bfe_u32 v{z2}, v{vL}, 3, 1
v_xor_b32 v{z2}, v{z2}, v{vH}
v_lshl_add_u32 v{z1}, v{z2}, 3, v{z1}""")
    for i in range(4):
        f(f"ds_read_b128 {V(rawb+4*i,4)}, v{vP2} offset:{256+64*(i>>1)+16*(i&1)}")
    for i in range(8):
        f(f"v_cmp_eq_u32 vcc, {i}, v{z1}")
        f(f"v_lshlrev_b32 v{accF+32*(i>>2)+4*(i&3)}, 16, v{rawb+2*i}", ver="bias")
        f(f"v_and_b32 v{accF+32*(i>>2)+4*(i&3)+1}, 0xffff0000, v{rawb+2*i}", ver="bias")
        f(f"v_cndmask_b32 v{dia+i}, 0, v{z0}", ver="dia")
        f(f"v_lshlrev_b32 v{accF+32*(i>>2)+4*(i&3)+2}, 16, v{rawb+2*i+1}", ver="bias")
        f(f"v_and_b32 v{accF+32*(i>>2)+4*(i&3)+3}, 0xffff0000, v{rawb+2*i+1}", ver="bias")
    NFA = len(F)

    DPP = "row_ror:8 row_mask:0xf bank_mask:0xf"
    def cm1(dst, m, zz, add): return f"v_fma_f32 v{dst}, v{m}, v{zz}, {add}"
    def cm2(dst, m, zz, neg=""): return f"v_fmac_f32_dpp v{dst}, v{zz}, {neg}v{m+1} {DPP}"
    ea, eb = [vT, vT + 1], [vT + 2, vT + 3]
    pa, pb = accS, accS + 16
    for q in range(1, 16):
        da, db = ea[q & 1], eb[q & 1]
        f("\n".join([cm1(da, cL, pa, f"v{accS+q}"), cm1(db, cL, pb, f"v{accS+16+q}"), cm2(da, cL, pa), cm2(db, cL, pb)]),
          at=S1 - 1)
        pa, pb = da, db
    e0, e32, elo, ehi = pa, vT, vT + 4, vT + 5
    f(f"""v_lshlrev_b32 v{vT+6}, 4, v{vN}
s_lshl_b32 s{sT0}, s{sW}, 2
{cm1(elo, cL16, e0, f'v{pb}')}
{cm2(elo, cL16, e0)}
s_add_u32 s{sT0}, s{sT0}, {GP}
v_mov_b32 v{ehi}, v{elo}
v_add_u32 v{vT+2}, s{sT0}, v{vT+6}
s_sub_u32 s{sT1}, 31, s{sR}
v_permlane32_swap_b32 v{elo}, v{ehi}
s_lshl_b32 s{sT1}, s{sT1}, 8
v_mov_b32 v{vE1}, s{sTAG}
{cm1(vE0, cL32, elo, f'v{ehi}')}
{cm2(vE0, cL32, elo)}
v_lshl_add_u32 v{vT}, v{vN}, 3, s{sT1}
buffer_store_dwordx2 {V(vE0,2)}, v{vT}, {S(dE,4)}, 0 offen sc1
ds_write_b32 v{vT+2}, a{aG}
ds_write_b32 v{vT+2}, a{aG+16} offset:512""")
    F[-1].tok = "gpw"
    vEg = vT
    f(f"""v_lshl_add_u32 v{vEg}, v{vH}, 12, v{vT}
v_add_u32 v{vEg}, 256, v{vEg}
v_add_u32 v{vT+6}, {GP}, v{vT+6}""")
    F.append(needlg("gpw")); f("s_barrier")
    g0 = rawb
    f(f"""ds_read_b128 {V(g0,4)}, v{vT+6}
ds_read_b128 {V(g0+4,4)}, v{vT+6} offset:512""")
    def scale(lo, hi):
        for q in range(lo, hi):
            t = vT + 2 + (q & 1)
            f(f"v_mul_f32_dpp v{t}, v{accS+q}, v{cS+1} {DPP}\nv_fma_f32 v{accS+q}, v{accS+q}, v{cS}, v{t}")
    scale(0, 8)
    f(f"""v_add_f32 v{g0}, v{g0}, v{g0+1}
v_add_f32 v{g0+4}, v{g0+4}, v{g0+5}
v_add_f32 v{g0+2}, v{g0+2}, v{g0+3}
v_add_f32 v{g0+6}, v{g0+6}, v{g0+7}
v_add_f32 v{g0}, v{g0}, v{g0+2}
v_add_f32 v{g0+4}, v{g0+4}, v{g0+6}
v_mul_f32 v{g0}, {fb(-LOG2E)}, v{g0}
v_mul_f32 v{g0+4}, {fb(-LOG2E)}, v{g0+4}
v_exp_f32 v{g0}, v{g0}
v_exp_f32 v{g0+4}, v{g0+4}
v_bfe_u32 v{g0+1}, v{vN}, 2, 1
v_add_f32 v{g0}, 1.0, v{g0}
v_add_f32 v{g0+4}, 1.0, v{g0+4}
v_rcp_f32 v{g0}, v{g0}
v_rcp_f32 v{g0+4}, v{g0+4}
v_lshrrev_b32 v{g0+2}, 3, v{vN}
v_lshl_add_u32 v{g0+1}, v{g0+1}, 3, v{g0+2}
v_and_b32 v{g0+2}, 3, v{vN}
v_lshl_add_u32 v{g0+1}, v{g0+1}, 2, v{g0+2}
v_lshlrev_b32 v{g0+1}, 2, v{g0+1}
v_add_u32 v{g0+1}, {GT}, v{g0+1}
v_sub_f32 v{omg}, 1.0, v{g0}
v_sub_f32 v{omg+2}, 1.0, v{g0+4}
ds_write_b32 v{g0+1}, v{g0}
ds_write_b32 v{g0+1}, v{g0+4} offset:64
v_lshlrev_b32 v{g0+2}, 7, v{vH}
v_add_u32 v{g0+2}, {GT}, v{g0+2}
s_lshr_b32 s{sT0}, s{sW}, 1
s_lshl_b32 s{sT1}, s{sT0}, 6
v_add_u32 v{g0+3}, s{sT1}, v{g0+2}
v_mov_b32 v{omg+1}, v{omg}
v_mov_b32 v{omg+3}, v{omg+2}""")
    for i in range(4): f(f"ds_read_b128 {V(Eg+4*i,4)}, v{g0+3} offset:{16*i}")
    scale(8, 12)
    for i in range(8): f(f"ds_read_b128 {V(gR+4*i,4)}, v{g0+2} offset:{16*i}")
    for q in range(16): f(f"v_mul_f32 v{accD+q}, v{accD+q}, v{Eg+q}")
    gl = [f"buffer_load_dwordx2 {V(Eg+2*i,2)}, v{vEg}, {S(dE,4)}, 0 offen offset:{256*i} sc1" for i in range(16)]
    for i in range(16):
        f(gl[i], at=P["egat"])
        scale(12 + i, 13 + i)
    scale(28, 32)
    vCnt = vE1
    f(f"""v_lshlrev_b32 v{vT+2}, 4, v{vH}
v_sub_u32 v{vT+2}, s{sR}, v{vT+2}
v_med3_i32 v{vT+2}, v{vT+2}, 0, 16
v_mul_lo_u32 v{vCnt}, v{vT+2}, s{sTAG}
v_cmp_eq_u32 vcc, 1, v{vH}
v_lshrrev_b32 v{vT+2}, 1, v{vN}
v_and_b32 v{vT+2}, 7, v{vT+2}
v_cndmask_b32 v{cL32}, 1.0, v{cL32}
v_cndmask_b32 v{cL32+1}, 0, v{cL32+1}
v_cndmask_b32 v{elo}, 0, v{elo}
v_lshlrev_b32 v{vT+2}, 4, v{vT+2}
v_lshl_add_u32 v{vT+2}, v{vN}, 7, v{vT+2}
v_lshl_add_u32 v{vT+2}, v{vH}, 13, v{vT+2}
s_lshl_b32 s{sT1}, s{sT3}, 12
v_add_u32 v{vC[0]}, s{sT1}, v{vT+2}""")
    for k in range(1, 8): f(f"v_xor_b32 v{vC[k]}, {16*k}, v{vC[0]}")
    for k in range(8): f(f"v_add_u32 v{vC[8+k]}, 0x10000, v{vC[k]}")
    chk = [f"v_add3_u32 v{vE0}, v{Eg+1}, v{Eg+3}, v{Eg+5}"]
    for i in range(3, 15, 2): chk.append(f"v_add3_u32 v{vE0}, v{vE0}, v{Eg+2*i+1}, v{Eg+2*i+3}")
    chk += [f"v_add_u32 v{vE0}, v{vE0}, v{Eg+31}", f"v_cmp_ne_u32 vcc, v{vE0}, v{vCnt}"]
    f("\n".join(chk), at=P["echk"])
    f("s_cbranch_vccnz L_eretry\nL_eback:")
    OUT = L("L_eretry:\n" + "\n".join(gl) + f"""
s_add_u32 s{sCNT}, s{sCNT}, 1
s_waitcnt vmcnt(0)
s_cmp_gt_u32 s{sCNT}, 0x8000
s_cbranch_scc1 L_eback
""" + "\n".join(chk) + "\ns_cbranch_vccnz L_eretry\ns_branch L_eback")
    for i in range(6, -1, -1):
        a0, a1, b0, b1 = Eg + 2 * i, Eg + 2 * i + 2, Eg + 16 + 2 * i, Eg + 16 + 2 * i + 2
        f(f"v_fmac_f32 v{a0}, v{cL64}, v{a1}\nv_fmac_f32 v{b0}, v{cL64}, v{b1}\n{cm2(a0, cL64, a1)}\n{cm2(b0, cL64, b1)}")
    k0, k1, c0, c1, hw = Eg, Eg + 1, Eg + 2, Eg + 3, Eg + 8
    f(f"""v_fmac_f32 v{k0}, v{cL512}, v{Eg+16}
v_and_b32 v{hw}, 3, v{vN}
{cm2(k0, cL512, Eg+16)}
v_mov_b32 v{k1}, v{k0}
v_lshlrev_b32 v{hw}, 4, v{hw}
v_lshl_add_u32 v{hw}, v{vN}, 7, v{hw}
v_permlane32_swap_b32 v{k0}, v{k1}
v_lshl_add_u32 v{hw}, v{vH}, 6, v{hw}
v_fmac_f32 v{k0}, v{cL1K}, v{k1}
{cm2(k0, cL1K, k1)}
s_add_u32 s{sT1}, s{sWQ}, {HB}
{cm1(c0, cL32, k0, f'v{elo}')}
{cm2(c0, cL32, k0)}
v_add_u32 v{hw}, s{sT1}, v{hw}
{cm1(c1, cL16, c0, f'v{e0}')}
{cm2(c1, cL16, c0)}
v_mul_f32_dpp v{k0}, v{c0}, v{cS+1} {DPP}
v_xor_b32 v{hw+1}, 16, v{hw}
v_mul_f32_dpp v{k1}, v{c1}, v{cS+1} {DPP}
v_fmac_f32 v{k0}, v{c0}, v{cS}
v_fmac_f32 v{k1}, v{c1}, v{cS}""")
    pa, pb = k0, k1
    for q in range(16):
        da, db = accS + q, accS + 16 + q
        f(f"v_fmac_f32 v{da}, v{cL}, v{pa}\nv_fmac_f32 v{db}, v{cL}, v{pb}\n{cm2(da, cL, pa, '-')}\n{cm2(db, cL, pb, '-')}")
        pa, pb = da, db
    f(f"v_xor_b32 v{hw+2}, 32, v{hw}\nv_xor_b32 v{hw+3}, 48, v{hw}")
    for i in range(4):
        for q in range(8 * i, 8 * i + 8): f(f"v_mul_f32 v{gR+q}, v{gR+q}, v{accS+q}")
        for q in range(4): f(f"v_cvt_pk_bf16_f32 v{Eg+16+4*i+q}, v{gR+8*i+2*q}, v{gR+8*i+2*q+1}")
        f(f"ds_write_b128 v{hw+i}, {V(Eg+16+4*i,4)}")
    if P["prof"]:
        post[S1 - 1][0:0] = stamp()
    st, left = spine(mf, post, F, P["bud"])
    info = dict(left=len(left), nd=nd)
    M += st
    M += dump("s1")
    M += stamp()
    M += left
    M += dump("scan")
    M += stamp()

    K1, K3, K4, mt, mh, mo = 80, 82, 84, 88, 96, 104
    e(f"""v_mov_b32 v{K1}, {fb(LOG2E)}
v_mov_b32 v{K1+1}, {fb(LOG2E)}
v_mov_b32 v{K3}, {fb(0.7071067811865476)}
v_mov_b32 v{K3+1}, {fb(0.7071067811865476)}
v_mov_b32 v{K4}, 0.5
v_mov_b32 v{K4+1}, 0.5
v_lshlrev_b32 v{vLin}, 4, v{vL}
s_add_u32 s{sT1}, s{sWQ}, {AB}
v_add_u32 v{vAw}, s{sT1}, v{vLin}
s_lshl_b32 s{sT1}, s{sT0}, 14
s_add_u32 s{sT1}, s{sT1}, {AB}
v_add_u32 v{vAr}, s{sT1}, v{vLin}
v_bfe_u32 v{t0}, v{vL}, 2, 2
v_lshl_add_u32 v{t1}, v{vH}, 3, v{t0}
v_lshlrev_b32 v{t1}, 7, v{t1}
v_and_b32 v{t2}, 1, v{vL}
v_lshl_add_u32 v{t1}, v{t2}, 6, v{t1}
v_and_b32 v{t2}, 2, v{vL}
v_lshl_add_u32 v{t1}, v{t2}, 2, v{t1}
v_lshlrev_b32 v{t2}, 4, v{t0}
v_and_b32 v{t3}, 16, v{vL}
v_xor_b32 v{t2}, v{t2}, v{t3}
s_lshl_b32 s{sT1}, s{sT0}, 5
v_xor_b32 v{t2}, s{sT1}, v{t2}
v_add_u32 v{t1}, v{t1}, v{t2}
v_add_u32 v{vHr}, {HB}, v{t1}
v_lshl_add_u32 v{t0}, v{vH}, 4, v{t0}
v_lshlrev_b32 v{t0}, 7, v{t0}
v_bfe_u32 v{t1}, v{vL}, 3, 1
v_xor_b32 v{t1}, s{sT3}, v{t1}
v_lshl_add_u32 v{t0}, v{t1}, 6, v{t0}
v_lshl_add_u32 v{t0}, v{t3}, 1, v{t0}
v_and_b32 v{t1}, 3, v{vL}
v_lshl_add_u32 v{vW2}, v{t1}, 3, v{t0}
v_add_u32 v{vW2+1}, 0x10000, v{vW2}
v_add_u32 v{vW2+2}, 0x20000, v{vW2}""")
    mf, post = [], collections.defaultdict(list)
    nf = [0]
    def fragreads(q, kx):
        fr = F2 + 4 * (nf[0] % 6); nf[0] += 1
        base = slot(21 + q) * SL
        wn, of = base >> 16, base & 0xffff
        if q % 3 == 0:
            return fr, [I(f"ds_read_b128 {V(fr,4)}, v{vC[8*wn+kx]} offset:{of}", ver=("F", q, kx))]
        return fr, [I(f"ds_read_b64_tr_b16 {V(fr+2*ee,2)}, v{vW2+wn} offset:{of+(32*(kx>>1)+8*(kx&1)+4*ee)*128}",
                      ver=("F", q, kx)) for ee in range(2)]
    early = []
    bpos = {}
    for q in range(21):
        u = q // 3
        acc = V(accD, 16) if u == 6 else V(acc2 + 16 * (u & 1), 16)
        if q >= 2:
            bpos[q] = len(mf) - d
            rd(len(mf) - d, ([needlg("act")] if q == 2 else []) + [need(("g", 21 + q)), I("s_barrier")])
        for kx in range(8):
            k = len(mf)
            fr, r_ = fragreads(q, kx)
            if k - d < 0: early.extend(r_)
            else: rd(k - d, r_)
            if q % 3 == 0: a_, av = A(aH + 4 * kx, 4), ("h", kx)
            else:
                ka = 8 * (q % 3 - 1) + kx
                a_, av = A(4 * ka, 4), ("act", ka)
            mfma(acc, a_, V(fr, 4), acc if (u == 6 or q % 3 or kx) else "0", [(V(fr, 4), ("F", q, kx)), (a_, av)])
    for ka in range(16):
        rd(ka // 2 - 1, I(f"ds_read_b128 {A(4*ka,4)}, v{vAr} offset:{1024*ka}", ver=("act", ka), tok="act" if ka == 15 else None))
    hreads = [I(f"ds_read_b64_tr_b16 {A(aH+4*kx+2*ee,2)}, v{vHr} offset:{(16*kx+4*ee)*128}", ver=("h", kx))
              for kx in range(8) for ee in range(2)] + early
    xd = []
    while D[nd][1][1] < 27: xd.append(D[nd][0]); nd += 1
    uses = [(0, 1), (0, 0), (1, 1), (1, 0)]
    for b in range(8):
        ft, rt = uses[b >> 1]; kk = b & 1
        h = accF + 32 * ft + 16 * rt + 8 * kk
        o = mo + 4 * (b & 1)
        B = []
        for p in range(4): B += L(f"v_pk_fma_f32 {V(mt+2*p,2)}, {V(h+2*p,2)}, {V(K1,2)}, {V(K4,2)} neg_lo:[0,0,1] neg_hi:[0,0,1]")
        for p in range(8): B += L(f"v_exp_f32 v{mt+p}, v{mt+p}")
        for p in range(4): B += L(f"v_pk_add_f32 {V(mt+2*p,2)}, {V(mt+2*p,2)}, {V(K3,2)}")
        for p in range(4): B += L(f"v_pk_fma_f32 {V(mt+2*p,2)}, {V(mt+2*p,2)}, {V(mt+2*p,2)}, {V(K4,2)}")
        for p in range(8): B += L(f"v_rcp_f32 v{mt+p}, v{mt+p}")
        for p in range(4): B += L(f"v_pk_mul_f32 {V(mh+2*p,2)}, {V(h+2*p,2)}, {V(omg+2*rt,2)}")
        for p in range(4): B += L(f"v_pk_fma_f32 {V(mh+2*p,2)}, {V(mh+2*p,2)}, {V(mt+2*p,2)}, {V(mh+2*p,2)} neg_lo:[1,0,0] neg_hi:[1,0,0]")
        for p in range(4): B += L(f"v_cvt_pk_bf16_f32 v{o+p}, v{mh+2*p}, v{mh+2*p+1}")
        B += L(f"ds_write_b128 v{vAw}, {V(o,4)} offset:{rt*16384+(2*ft+kk)*1024}")
        extra = []
        if b < 4:
            n_ = (len(xd) + 3 - b) // (4 - b)
            extra = xd[:n_]; xd = xd[n_:]
        else:
            n_ = (len(hreads) + 6 - b) // (7 - b) if b < 7 else 0
            extra = [[x] for x in hreads[:n_]]; hreads = hreads[n_:]
        if b == 4: M += [lgkm0(), need(("g", 21)), I("s_barrier")]
        step = max(1, len(B) // (len(extra) + 1))
        for i, x in enumerate(B):
            M.append(x)
            if extra and i % step == step - 1: M += extra.pop(0)
        assert not extra
    M += [lgkm0(), need(("g", 22)), I("s_barrier")]
    M += dump("x")
    M += stamp()

    last = -1
    while nd < len(D):
        g = D[nd][1][1]; q = g - 21
        lo = 0 if q == 6 else bpos[max(2, q - 7)]
        p = max(lo, last + (1 if q < 10 else 2))
        post[p].extend(D[nd][0]); last = p; nd += 1
    F = []
    f(f"""v_mov_b32 v{stg+3}, s{sTAG}
v_mov_b32 v{stg+7}, s{sTAG}
v_mov_b32 v{stg+10}, s{sTAG}
v_mov_b32 v{stg+11}, s{sTAG}
v_and_b32 v{t0}, 1, v{vL}
v_lshlrev_b32 v{t0}, 4, v{t0}
v_mov_b32 v{t1}, 0x3f80
v_lshlrev_b32 v{t0}, v{t0}, v{t1}
v_lshrrev_b32 v{t1}, 3, v{vN}
v_bfe_u32 v{t2}, v{vL}, 1, 1
v_lshl_add_u32 v{t1}, v{t1}, 1, v{t2}
v_bfe_u32 v{t2}, v{vL}, 2, 1
v_xor_b32 v{t2}, v{t2}, v{vH}
v_lshl_add_u32 v{t1}, v{t2}, 3, v{t1}
v_mul_u32_u24 v{t2}, {32*1792}, v{vH}
v_lshl_add_u32 v{vOut}, v{vN}, 2, v{t2}
s_mul_i32 s{sT1}, s{sTAG}, 3""", at=8)
    for i in range(8):
        f(f"v_cmp_eq_u32 vcc, {i}, v{t1}\ns_movk_i32 s{sOO+i}, {3584*i}\ns_nop 0\nv_cndmask_b32 v{Sel+i}, 0, v{t0}")
    ev = []
    for u in range(6):
        a_ = acc2 + 16 * (u & 1)
        x = []
        for p, r_ in enumerate((0, 1, 2, 8, 4, 5, 6, 9)):
            x += L(f"v_cvt_pk_bf16_f32 v{stg+r_}, v{a_+2*p}, v{a_+2*p+1}")
        x += L(f"s_mul_i32 s{sT0}, s{sU+u}, {4*PIN//128}\ns_add_u32 s{sT0}, s{sT0}, {3072*u}")
        x += L("\n".join(f"buffer_store_dwordx4 {V(stg+4*i,4)}, v{vLin}, {S(dPO,4)}, s{sT0} offen offset:{1024*i} sc1" for i in range(3)))
        ev.append((24 * u + 26, x))
    def pl(u):
        return f"s_movk_i32 s{sT0}, {3072*u}\n" + "\n".join(
            f"buffer_load_dwordx4 {V(inb[u]+4*i,4)}, v{vLin}, {S(dPI,4)}, s{sT0} offen offset:{1024*i} sc1" for i in range(3))
    for u in range(6): ev.append((P["pld"][u], L(pl(u))))
    ev.sort(key=lambda t: t[0])
    for at, x in ev:
        for i_ in x: i_.at = at
        F += x
    st, left = spine(mf, post, F, P["bud"])
    M += st
    M += left
    M += stamp()
    for u in range(6):
        c = f"v_add3_u32 v{t0}, v{inb[u]+3}, v{inb[u]+7}, v{inb[u]+11}\nv_cmp_ne_u32 vcc, s{sT1}, v{t0}"
        e(f"""{c}
s_cbranch_vccnz L_pretry{u}
L_pback{u}:
v_mov_b32 v{inb[u]+3}, v{inb[u]+8}
v_mov_b32 v{inb[u]+7}, v{inb[u]+9}
v_mfma_f32_32x32x16_bf16 {V(accD,16)}, {V(Sel,4)}, {V(inb[u],4)}, {V(accD,16)}
v_mfma_f32_32x32x16_bf16 {V(accD,16)}, {V(Sel+4,4)}, {V(inb[u]+4,4)}, {V(accD,16)}""")
        OUT += L(f"""L_pretry{u}:
{pl(u)}
s_add_u32 s{sCNT}, s{sCNT}, 1
s_waitcnt vmcnt(0)
s_cmp_gt_u32 s{sCNT}, 0x8000
s_cbranch_scc1 L_pback{u}
{c}
s_cbranch_vccnz L_pretry{u}
s_branch L_pback{u}""")
    M += stamp()
    for q in range(16):
        e(f"buffer_store_dword v{accD+q}, v{vOut}, {S(dO,4)}, s{sOO+q//2} offen offset:{1792*(q&1)} {P['ost']}")
    if P["prof"]:
        M += [vm0()] + stamp() + L("s_waitcnt lgkmcnt(0)")
        e(f"""s_memrealtime s[42:43]
s_mul_i32 s{sT0}, s{sR}, 7
s_add_u32 s{sT0}, s{sT0}, s{sJ}
s_lshl_b32 s{sT0}, s{sT0}, 2
s_add_u32 s{sT0}, s{sT0}, s{sW}
s_lshl_b32 s{sT0}, s{sT0}, 6
s_add_u32 s{sT0}, s{sT0}, {WS_DBG}
v_mov_b32 v0, s{sT0}
s_waitcnt lgkmcnt(0)""")
        for i in range(nst[0]):
            e(f"v_mov_b32 v4, s{sST+2*i}\nglobal_store_dword v0, v4, {S(pWS,2)} offset:{4*i}")
        e(f"v_mov_b32 v4, s{sCNT}\nglobal_store_dword v0, v4, {S(pWS,2)} offset:56")
        e(f"v_mov_b32 v4, s42\nglobal_store_dword v0, v4, {S(pWS,2)} offset:60")
    e(f"""s_lshl_b32 s{sT0}, s{sJ}, 2
s_add_u32 s{sT0}, s{sT0}, s{sW}
s_lshl_b32 s{sT0}, s{sT0}, 5
s_add_u32 s{sT0}, s{sT0}, s{sR}
s_cmp_lg_u32 s{sT0}, 31
s_cbranch_scc1 L_exit
v_mov_b32 v0, 0
global_store_dword v0, v{stg+3}, {S(pWS,2)} sc1
L_exit:
s_endpgm""")
    body, nops = finalize(M, P.get("verbose"))
    info["nops"] = nops; info["n"] = len(body)
    PF = L("L_pf:\ns_endpgm")
    txt = [f"; @launch grid=(256,1,1) block=(256,1,1) lds=163840",
           '.amdgcn_target "amdgcn-amd-amdhsa--gfx950"', ".text", f".globl {NAME}_kernel", ".p2align 8",
           f".type {NAME}_kernel,@function", f"{NAME}_kernel:"]
    txt += [x.text for x in body + OUT + PF]
    txt.append(f""".section .rodata,"a"
.p2align 6
.amdhsa_kernel {NAME}_kernel
  .amdhsa_next_free_vgpr 512
  .amdhsa_next_free_sgpr 102
  .amdhsa_accum_offset 256
  .amdhsa_group_segment_fixed_size 0
  .amdhsa_kernarg_size 136
  .amdhsa_user_sgpr_count 2
  .amdhsa_user_sgpr_kernarg_segment_ptr 1
  .amdhsa_system_sgpr_workgroup_id_x 1
.end_amdhsa_kernel""")
    return "\n".join(txt) + "\n", info

if __name__ == "__main__":
    kw = {}
    for a in sys.argv[2:]:
        k, v = a.split("=", 1); kw[k] = eval(v)
    t, info = gen(**kw)
    open(sys.argv[1], "w").write(t)
    print(info)
```

```python
import sys
from hx import *

HEAD = """; @launch grid=({nwg},1,1) block=(256,1,1) lds=163840
.amdgcn_target "amdgcn-amd-amdhsa--gfx950"
.text
.globl mb_kernel
.p2align 8
.type mb_kernel,@function
mb_kernel:
s_load_dwordx4 s[4:7], s[0:1], 0
s_load_dwordx2 s[40:41], s[0:1], 16
s_waitcnt lgkmcnt(0)
s_mov_b32 s8, s4
s_mov_b32 s9, s5
s_mov_b32 s10, 0x10000000
s_mov_b32 s11, 0x20000
s_mov_b32 s12, s6
s_mov_b32 s13, s7
s_mov_b32 s14, 0x100000
s_mov_b32 s15, 0x20000
v_lshrrev_b32 v1, 6, v0
v_and_b32 v2, 63, v0
s_nop 1
v_readfirstlane_b32 s18, v1
v_lshlrev_b32 v2, 4, v2
s_nop 3
"""
TAIL = """s_lshl_b32 s3, s2, 4
v_mov_b32 v1, s3
v_cmp_eq_u32 vcc, 0, v0
s_and_saveexec_b64 s[32:33], vcc
s_cbranch_execz L_end
buffer_store_dwordx4 v[4:7], v1, s[12:15], 0 offen
L_end:
s_endpgm
.section .rodata,"a"
.p2align 6
.amdhsa_kernel mb_kernel
  .amdhsa_next_free_vgpr 512
  .amdhsa_next_free_sgpr 96
  .amdhsa_accum_offset 256
  .amdhsa_group_segment_fixed_size 0
  .amdhsa_kernarg_size 24
  .amdhsa_user_sgpr_count 2
  .amdhsa_user_sgpr_kernarg_segment_ptr 1
  .amdhsa_system_sgpr_workgroup_id_x 1
.end_amdhsa_kernel
"""

def gen_mix(nst, flags, units=6):
    L = [HEAD.format(nwg=224)]
    A = L.append
    A("s_mul_i32 s16, s18, 73728")
    A("s_mul_i32 s17, s2, 131072\ns_add_u32 s17, s17, 0x1000000")
    A("s_lshl_b32 s19, s18, 15\ns_add_u32 s17, s17, s19")
    A("s_barrier\ns_memtime s[20:21]\ns_memrealtime s[24:25]")
    n = 0
    for u in range(units):
        for i in range(12):
            A(f"s_add_u32 s22, s16, {n*1024}")
            A(f"s_add_u32 m0, s19, {(n%32)*1024}")
            A("s_nop 0")
            A("buffer_load_dwordx4 v2, s[8:11], s22 offen lds")
            n += 1
            if i < nst:
                A(f"s_add_u32 s22, s17, {(u*nst+i)*1024}")
                A(f"buffer_store_dwordx4 v[8:11], v2, s[8:11], s22 offen {flags}")
        A(f"s_waitcnt vmcnt({min(63, 2*(12+nst))})")
    A("s_memtime s[30:31]\ns_waitcnt vmcnt(0)\ns_barrier\ns_memtime s[22:23]\ns_memrealtime s[28:29]\ns_waitcnt lgkmcnt(0)")
    A("s_sub_u32 s22, s22, s20\ns_sub_u32 s30, s30, s20")
    A("v_mov_b32 v4, s22\nv_mov_b32 v5, s24\nv_mov_b32 v6, s28\nv_mov_b32 v7, s30")
    A(TAIL)
    return "\n".join(L)

def gen_ring(nst, rounds, dist, nwg=224):
    L = [HEAD.format(nwg=nwg)]
    A = L.append
    A(f"s_add_u32 s17, s2, {dist}\ns_cmp_ge_u32 s17, {nwg}\ns_cselect_b32 s19, {nwg}, 0\ns_sub_u32 s17, s17, s19")
    A("s_lshl_b32 s19, s18, 16")
    A("s_lshl_b32 s17, s17, 18\ns_add_u32 s17, s17, s19")
    A("s_lshl_b32 s16, s2, 18\ns_add_u32 s16, s16, s19")
    A("s_mov_b32 s34, 0\ns_mov_b32 s35, 0")
    A("v_mov_b32 v11, s40")
    for r in range(rounds):
        if r == 1:
            A("s_memtime s[20:21]\ns_memrealtime s[24:25]")
        for i in range(nst):
            A(f"buffer_store_dwordx4 v[8:11], v2, s[8:11], s17 offen offset:{i*1024} sc1")
        A(f"L_spin{r}:")
        for i in range(nst):
            A(f"buffer_load_dwordx4 v[{12+4*i}:{15+4*i}], v2, s[8:11], s16 offen offset:{i*1024} sc1")
        A("s_add_u32 s35, s35, 1")
        A("s_cmp_gt_u32 s35, 20000")
        A(f"s_cbranch_scc1 L_bail")
        A("s_waitcnt vmcnt(0)")
        A("v_xor_b32 v40, v15, v11")
        for i in range(1, nst):
            A(f"v_xor_b32 v41, v{15+4*i}, v11\nv_or_b32 v40, v40, v41")
        A("v_cmp_ne_u32 vcc, 0, v40")
        A(f"s_cbranch_vccnz L_spin{r}")
        A("s_add_u32 s17, s17, 4096\ns_add_u32 s16, s16, 4096")
    A("L_bail:")
    A("s_memtime s[22:23]\ns_memrealtime s[28:29]\ns_waitcnt lgkmcnt(0)")
    A("s_sub_u32 s22, s22, s20")
    A("v_mov_b32 v4, s22\nv_mov_b32 v5, s24\nv_mov_b32 v6, s28\nv_mov_b32 v7, s35")
    A(TAIL)
    return "\n".join(L)

if __name__ == "__main__":
    gpu = os.path.exists('/dev/kfd')
    C = []
    for nst, fl in ((0, ''), (2, 'sc1'), (3, 'sc1'), (4, 'sc1'), (2, ''), (3, ''), (6, 'sc1')):
        C.append((f"mix 72 loads + {nst*6} stores [{fl}] per wave", gen_mix(nst, fl), 1))
    for nst in (1, 3):
        for dist in (1, 8, 4):
            C.append((f"ring nst={nst} dist={dist} (per round)", gen_ring(nst, 11, dist), 10))
    if gpu:
        src = DeviceBuffer(256 << 20); out = DeviceBuffer(1 << 20); flush = DeviceBuffer(512 << 20)
        memset(src, 1); sync()
    tag = 1000
    for ci, c in enumerate(C):
        p = f"mb6_{ci}.s"
        open(p, "w").write(c[1])
        if not gpu:
            build(p, "mb_kernel", 3); continue
        k = Kern(p, "mb_kernel", 3)
        line = f"{c[0]:50s}"
        for cold in (0, 1):
            rows = []
            for rep in range(6):
                if cold:
                    memset(flush, rep); sync()
                tag += 1
                k.launch([src.ptr, out.ptr, tag]); sync()
                o = out.to_numpy(np.uint32, (224, 4)).astype(np.int64)
                rows.append((np.median(o[:, 0]), o[:, 0].max(), np.median(o[:, 3]), np.median(o[:, 2] - o[:, 1])))
            r = np.median(np.array(rows[1:]), axis=0) / c[2]
            line += f" | {'cold' if cold else 'warm'} cyc={r[0]:.0f} max={r[1]:.0f} aux={r[2]:.1f} us={r[3]/100:.3f}"
        print(line, flush=True)
```

```python
import sys
from hx import *
from mb6 import HEAD, TAIL
def V(a, n=1): return f"v{a}" if n == 1 else f"v[{a}:{a+n-1}]"
def wrap(body):
    L = [HEAD.format(nwg=224)]
    for i in range(80, 256): L.append(f"v_mov_b32 v{i}, 0.5")
    L.append("s_mov_b32 s50, 0\nL_rep:\ns_barrier\ns_memtime s[20:21]\ns_waitcnt lgkmcnt(0)")
    L += body
    L.append("s_memtime s[22:23]\ns_waitcnt lgkmcnt(0)\ns_add_u32 s50, s50, 1\ns_cmp_lt_u32 s50, 3\ns_cbranch_scc1 L_rep\ns_sub_u32 s22, s22, s20\nv_mov_b32 v4, s22")
    L.append(TAIL)
    return "\n".join(L)
K1, K3, K4, om = 80, 82, 84, 86
def stages(h, mt, mh, o):
    S = []
    S.append([f"v_pk_fma_f32 {V(mt+2*p,2)}, {V(h+2*p,2)}, {V(K1,2)}, {V(K4,2)} neg_lo:[0,0,1] neg_hi:[0,0,1]" for p in range(4)])
    S.append([f"v_exp_f32 v{mt+p}, v{mt+p}" for p in range(8)])
    S.append([f"v_pk_add_f32 {V(mt+2*p,2)}, {V(mt+2*p,2)}, {V(K3,2)}" for p in range(4)])
    S.append([f"v_pk_fma_f32 {V(mt+2*p,2)}, {V(mt+2*p,2)}, {V(mt+2*p,2)}, {V(K4,2)}" for p in range(4)])
    S.append([f"v_rcp_f32 v{mt+p}, v{mt+p}" for p in range(8)])
    S.append([f"v_pk_mul_f32 {V(mh+2*p,2)}, {V(h+2*p,2)}, {V(om,2)}" for p in range(4)])
    S.append([f"v_pk_fma_f32 {V(mh+2*p,2)}, {V(mh+2*p,2)}, {V(mt+2*p,2)}, {V(mh+2*p,2)} neg_lo:[1,0,0] neg_hi:[1,0,0]" for p in range(4)])
    S.append([f"v_cvt_pk_bf16_f32 v{o+p}, v{mh+2*p}, v{mh+2*p+1}" for p in range(4)])
    return S
def cur():
    B = []
    for b in range(8):
        for s in stages(192 + 8 * b, 88, 96, 104): B += s
    return B
def only(idx, rep=8):
    B = []
    for b in range(rep):
        st = stages(192 + 8 * b, 88, 96, 104)
        for i in idx: B += st[i]
    return B
def zipl(a, b):
    o = []
    a, b = list(a), list(b)
    while a or b:
        if a: o.append(a.pop(0))
        if b: o.append(b.pop(0))
    return o
def inter():
    B = []
    st = [stages(192 + 8 * b, 112 + 16 * (b % 3), 120 + 16 * (b % 3), 104) for b in range(8)]
    for b in range(10):
        tr, ot = [], []
        if b < 8: B += st[b][0][:1]; ot += st[b][0][1:]; tr += st[b][1]
        if 1 <= b < 9: ot = ot + st[b-1][2] + st[b-1][3] + st[b-1][5]
        B += zipl(ot[:3], []) + zipl(tr, ot[3:])
        tr, ot = [], []
        if 1 <= b < 9: tr = st[b-1][4]
        if 2 <= b: ot = st[b-2][6] + st[b-2][7]
        B += zipl(tr, ot)
    return B
C = [("empty", []), ("current", cur()), ("exp64", only([1])), ("rcp64", only([4])), ("pkfma32", only([0])), ("pkadd32", only([2])),
     ("pkfma_dep32", only([3])), ("pkmul32", only([5])), ("cvt32", only([7])), ("allpk160", only([0, 2, 3, 5, 6])), ("inter", inter()),
     ("exp+fma zip 64+64", zipl(only([1]), [f"v_fma_f32 v{120+i%32}, v{160+i%32}, v80, v81" for i in range(64)])),
     ("exp+pk zip 64+64", zipl(only([1]), [f"v_pk_fma_f32 {V(120+2*(i%16),2)}, {V(160+2*(i%16),2)}, v[80:81], v[82:83]" for i in range(64)])),
     ("fma64", [f"v_fma_f32 v{120+i%32}, v{160+i%32}, v80, v81" for i in range(64)]),
     ("fmac64", [f"v_fmac_f32 v{120+i%32}, v{160+i%32}, v80" for i in range(64)]),
     ("exp_f16 64", [f"v_exp_f16 v{120+i%32}, v{160+i%32}" for i in range(64)]),
     ]
if __name__ == "__main__":
    gpu = os.path.exists('/dev/kfd')
    if gpu: src = DeviceBuffer(1 << 20); out = DeviceBuffer(1 << 20)
    for ci, c in enumerate(C):
        p = f"mb10_{ci}.s"
        open(p, "w").write(wrap(c[1]))
        if not gpu: build(p, "mb_kernel", 3); continue
        k = Kern(p, "mb_kernel", 3)
        k.launch([src.ptr, out.ptr, 0]); sync()
        o = out.to_numpy(np.uint32, (224, 4)).astype(np.int64)
        print(f"{c[0]:24s} n={len(c[1])} cyc={np.median(o[:,0]):.0f}", flush=True)
```

```python
import sys, collections
from asmlib import *

NAME = "gated_mix__ssm_conv_s5__dense_activation_mish__prompt"
LOG2E = 1.4426950408889634
EPC = 0x9E3779B9
XSZ, MSZ, WSZ, OSZ = 2048 * 896, 448 * 896, 448 * 3584, 2048 * 1792
WS_E, WS_P, WS_DBG = 4096, 1 << 20, 18 << 20
PIN = 18432
SL = 16384
XB = 6 * SL; HB = 6 * SL; AB = 7 * SL
GP = 152 * 1024; GT = 153 * 1024; PR = 154 * 1024
sW, sKB, sR, sJ, sROT, sTAG, sWQ = 3, 4, 11, 12, 13, 14, 15
pX, pLRE, pLIM, pBRE, pBIM, pCRE, pCIM, pDT, pDS, pW1, pB1, pW2, pGW, pOUT, pWS = 16, 18, 20, 22, 24, 26, 28, 30, 32, 36, 38, 40, 42, 44, 48
sT0, sT1 = 50, 51
dX, dBR, dBI, dW1, dC, dW2, dE, dPI, dPO, dO = 52, 56, 60, 64, 68, 72, 76, 80, 84, 88
sU, sCNT, sSO, sT3 = 92, 99, 100, 101
sOO = 34
sST = 16
vL, vN, vH = 1, 2, 3
vdX, vdB, vdW1, vdC, vdW2 = 4, 6, 10, 14, 18
vX, vB, vG, vW1, vP, vP2, vXD = 22, 26, 34, 35, 39, 40, 41
cL, cL16, cL32, cL64, cL512, cL1K, cS = 43, 45, 47, 49, 51, 53, 55
vT = 57
accD, dia, xD, Gx, gwf, raw = 64, 80, 88, 96, 104, 108
Bfr, rawb, accS, Wfr, accF = 112, 128, 144, 176, 192
scr = 208
aG, aH = 224, 224
omg = 4
vE0, vE1 = 8, 9
vC = [22 + i for i in range(8)] + [30, 31, 32, 33, 34, 39, 40, 41]
Eg, gR = 112, 80
F2 = 144
vW2 = 168
vHr, vAw, vAr, vLin, vOut = 171, 172, 173, 174, 175
stg, acc2, Sel = 176, 192, 248
inb = [80, 92, 104, 116, 128, 224]

DEF = dict(z=2, d=4, la=12, egat=118, echk=150, pld=(72, 96, 120, 146, 158, 167), ost="", prof=0, dump=None,
           pf=0, bud=24)

def gen(**kw):
    P = dict(DEF); P.update(kw)
    z, d, LA = P["z"], P["d"], P["la"]
    M = []
    def e(t, **k):
        for x in t.split("\n"):
            if x.strip(): M.append(I(x, **k))
    def L(t, **k): return [I(x, **k) for x in t.split("\n") if x.strip()]
    nst = [0]
    def stamp(custom=False):
        if not P["prof"]: return []
        if (P.get("st1") or P.get("st2")) and not custom: return []
        nst[0] += 1
        return [I(f"{'s_memrealtime' if P.get('amp') else 's_memtime'} {S(sST + 2 * (nst[0] - 1), 2)}")]
    def dump(tag):
        if not P["dump"] or P["dump"][0] != tag: return []
        o = [vm0(), lgkm0(), I("s_nop 7"), I("s_nop 7")]
        o += L(f"""s_mul_i32 s{sT0}, s{sR}, 7
s_add_u32 s{sT0}, s{sT0}, s{sJ}
s_lshl_b32 s{sT0}, s{sT0}, 2
s_add_u32 s{sT0}, s{sT0}, s{sW}
s_lshl_b32 s{sT0}, s{sT0}, 15
s_add_u32 s{sT0}, s{sT0}, {WS_DBG}
v_lshlrev_b32 v0, 2, v{vL}
v_add_u32 v0, s{sT0}, v0""")
        for i, r in enumerate(P["dump"][1]):
            o += L(f"global_store_dword v0, {r}, {S(pWS, 2)}\nv_add_u32 v0, 256, v0")
        o += L("s_endpgm")
        return o

    if P["prof"]: e("s_memrealtime s[98:99]\ns_memtime s[96:97]")
    e(f"""s_cmp_ge_u32 s2, 256
s_cbranch_scc1 L_exit
s_load_dwordx16 s[16:31], s[0:1], 0
s_load_dwordx16 s[32:47], s[0:1], 64
s_load_dwordx2 s[48:49], s[0:1], 128
s_cmp_lt_u32 s2, 32
s_cbranch_scc1 L_pf
v_lshrrev_b32 v{vT}, 6, v0
v_and_b32 v{vL}, 63, v0
v_readfirstlane_b32 s{sW}, v{vT}
s_and_b32 s{sT0}, s2, 7
s_lshr_b32 s{sT1}, s2, 3
s_and_b32 s{sR}, s{sT0}, {(1 << z) - 1}
s_mul_i32 s{sR}, s{sR}, 28
s_add_u32 s{sT1}, s{sT1}, s{sR}
s_sub_u32 s{sT1}, s{sT1}, 4
s_lshr_b32 s{sJ}, s{sT1}, {2 + z}
s_and_b32 s{sT1}, s{sT1}, {(4 << z) - 1}
s_lshr_b32 s{sT0}, s{sT0}, {z}
s_lshl_b32 s{sT0}, s{sT0}, {2 + z}
s_add_u32 s{sR}, s{sT0}, s{sT1}
s_add_u32 s{sROT}, s{sR}, s{sJ}
s_mul_i32 s{sT0}, s{sROT}, 37
s_lshr_b32 s{sT0}, s{sT0}, 8
s_mul_i32 s{sT0}, s{sT0}, 7
s_sub_u32 s{sROT}, s{sROT}, s{sT0}
s_lshl_b32 s{sKB}, s{sROT}, 7
s_lshl_b32 s{sWQ}, s{sW}, 12""")
    for s in range(1, 7):
        e(f"""s_add_u32 s{sKB+s}, s{sKB+s-1}, 128
s_cmp_ge_u32 s{sKB+s}, 896
s_cselect_b32 s{sKB+s}, 0, s{sKB+s}""")
    e(f"""s_lshl_b32 s{sT0}, s{sR}, 3
s_add_u32 s{sT0}, s{sT0}, s{sW}
s_mul_i32 s{dX}, s{sT0}, 7168
s_sub_u32 s{dX+2}, {XSZ}, s{dX}
s_lshl_b32 s{sT1}, s{sJ}, 2
s_add_u32 s{sT1}, s{sT1}, s{sW}
s_mul_i32 s{dBR}, s{sT1}, 14336
s_sub_u32 s{dBR+2}, {MSZ}, s{dBR}
s_add_u32 s{dBI+2}, s{dBR+2}, 1024""")
    for dd in (dX, dBR, dBI, dW1, dC, dW2, dE, dPI, dPO, dO):
        e(f"s_mov_b32 s{dd+3}, 0x20000")
    t0, t1, t2, t3, t4 = vT, vT + 1, vT + 2, vT + 3, vT + 4
    e(f"""v_and_b32 v{vN}, 31, v{vL}
v_lshrrev_b32 v{vH}, 5, v{vL}
v_lshrrev_b32 v{t0}, 3, v{vL}
v_lshrrev_b32 v{t1}, 4, v{vL}
v_and_b32 v{t3}, 1, v{t1}
v_lshlrev_b32 v{t3}, 2, v{t3}
v_xor_b32 v{t3}, v{t3}, v{vL}
v_and_b32 v{t3}, 7, v{t3}
v_lshlrev_b32 v{t3}, 4, v{t3}
v_xor_b32 v{t1}, v{t1}, v{vL}
v_and_b32 v{t1}, 7, v{t1}
v_lshlrev_b32 v{t1}, 4, v{t1}
v_xor_b32 v{t2}, 64, v{t1}
v_and_b32 v{t4}, 3, v{t0}
v_lshl_add_u32 v{t4}, v{vH}, 5, v{t4}
v_mul_u32_u24 v{t4}, 896, v{t4}
v_add_u32 v{vdX}, v{t4}, v{t1}
v_add_u32 v{vdX+1}, v{t4}, v{t2}
v_add_u32 v{vdX+1}, {3584-1024}, v{vdX+1}
v_mul_u32_u24 v{t4}, 896, v{t0}
v_add_u32 v{vdB}, v{t4}, v{t1}
v_add_u32 v{vdB+1}, v{t4}, v{t2}
v_add_u32 v{vdB+2}, {7168-2048}, v{vdB}
v_add_u32 v{vdB+3}, {7168-2048}, v{vdB+1}
v_add_u32 v{vdW2}, v{t4}, v{t3}
v_mul_u32_u24 v{t4}, 3584, v{t0}
v_add_u32 v{vdW1}, v{t4}, v{t3}""")
    e(f"""v_add_u32 v{t0}, s{sROT}, v{t0}
v_subrev_u32 v{t1}, 7, v{t0}
v_min_u32 v{t0}, v{t0}, v{t1}
v_and_b32 v{t1}, 7, v{vL}
v_lshlrev_b32 v{t4}, 2, v{t1}
v_lshl_add_u32 v{t0}, v{t0}, 7, v{t4}
s_lshl_b32 s{sT0}, s{sW}, 5
v_add_u32 v{t0}, s{sT0}, v{t0}
v_lshrrev_b32 v{t2}, 4, v{vN}
v_lshl_add_u32 v{t2}, v{t2}, 3, v{t1}
s_lshl_b32 s{sT0}, s{sT1}, 4
v_add_lshl_u32 v{t2}, v{t2}, s{sT0}, 1
s_lshl_b32 s{sT0}, s{sT1}, 5
v_add_lshl_u32 v{t1}, v{vN}, s{sT0}, 2
s_and_b32 s{sT3}, s{sW}, 1
s_lshl_b32 s{sT0}, s{sJ}, 1
s_add_u32 s{sT0}, s{sT0}, s{sT3}
s_lshl_b32 s{sT0}, s{sT0}, 5
v_add_lshl_u32 v{t3}, v{vN}, s{sT0}, 1
s_lshr_b32 s{sSO}, s{sWQ}, 1""")
    M.append(lgkm0())
    if P["prof"]: e("s_mov_b32 s46, s98\ns_mov_b32 s47, s96")
    e(f"""s_add_u32 s{dX}, s{dX}, s{pX}
s_addc_u32 s{dX+1}, s{pX+1}, 0
s_load_dword s{sTAG}, {S(pWS, 2)}, 0""")

    D = []
    def dgrp(tok, pre, lines):
        for i, t in enumerate(lines):
            D.append([(L(pre) if i == 0 else []) + [I(t, tok=tok if i == len(lines) - 1 else None)], tok])
    def slot(g):
        if g < 27: return g % 6
        if g < 30: return g - 21
        return slot(g - 9)
    for s in range(7):
        dgrp(("x", s), f"s_add_u32 m0, s{sSO}, {XB + s * 8192}",
             [f"buffer_load_dwordx4 v{vdX+i}, {S(dX,4)}, s{sKB+s} offen offset:{1024*i} lds" for i in range(2)])
        dgrp(("g", s), f"s_add_u32 m0, s{sWQ}, {slot(s) * SL}",
             [f"buffer_load_dwordx4 v{vdB+i}, {S(dBI if i & 1 else dBR,4)}, s{sKB+s} offen offset:{1024*i} lds" for i in range(4)])
    for y in range(14):
        so = f"s_mul_i32 s{sSO}, s{sKB+y//2}, 1792" if y % 2 == 0 else f"s_add_u32 s{sSO}, s{sSO}, 114688"
        dgrp(("g", 7 + y), f"s_add_u32 m0, s{sWQ}, {slot(7 + y) * SL}\n{so}",
             [f"buffer_load_dwordx4 v{vdW1+i}, {S(dW1,4)}, s{sSO} offen offset:{1024*i} lds" for i in range(4)])
    for q in range(21):
        u, k = q // 3, q % 3
        so = (f"s_mul_i32 s{sSO}, s{sU+u}, 448", f"s_mov_b32 s{sSO}, s{sU+u}", f"s_add_u32 s{sSO}, s{sSO}, 114688")[k]
        vd, dd = (vdC, dC) if k == 0 else (vdW2, dW2)
        dgrp(("g", 21 + q), f"s_add_u32 m0, s{sWQ}, {slot(21 + q) * SL}\n{so}",
             [f"buffer_load_dwordx4 v{vd+i}, {S(dd,4)}, s{sSO} offen offset:{1024*i} lds" for i in range(4)])
    NS01 = 42 + 56

    def put(n):
        for x in D[n][0]: M.append(x)
    put(0); put(1)
    e(f"""s_add_u32 s{dBI}, s{dBR}, s{pBIM}
s_addc_u32 s{dBI+1}, s{pBIM+1}, 0
s_add_u32 s{dBR}, s{dBR}, s{pBRE}
s_addc_u32 s{dBR+1}, s{pBRE+1}, 0
s_sub_u32 s{dBI}, s{dBI}, 1024
s_subb_u32 s{dBI+1}, s{dBI+1}, 0""")
    for n in range(2, 6): put(n)
    e(f"""s_lshr_b32 s{sT0}, s{sWQ}, 3
s_add_u32 m0, s{sT0}, {PR}
global_load_ushort v{raw}, v{t2}, {S(pLRE,2)}
global_load_lds_dword v{t0}, {S(pGW,2)}
s_add_u32 m0, s{sT0}, {PR + 256}
global_load_ushort v{raw+1}, v{t2}, {S(pLIM,2)}""")
    e(f"global_load_lds_dword v{t1}, {S(pB1,2)}", tok="par")
    e(f"""global_load_ushort v{raw+2}, v{t2}, {S(pDT,2)}
global_load_ushort v{raw+3}, v{t3}, {S(pDS,2)}""")
    for n in range(6, LA): put(n)

    e(f"""s_lshl_b32 s{dW1}, s{sT1}, 7
s_sub_u32 s{dW1+2}, {WSZ}, s{dW1}
s_add_u32 s{dW1}, s{dW1}, s{pW1}
s_addc_u32 s{dW1+1}, s{pW1+1}, 0
s_mul_i32 s{dC}, s{sT3}, 28672
s_lshl_b32 s{dC+1}, s{sJ}, 7
s_add_u32 s{dC}, s{dC}, s{dC+1}
s_sub_u32 s{dC+2}, {MSZ}, s{dC}
s_cmp_ge_u32 s{sW}, 2
s_cselect_b32 s{pCRE}, s{pCIM}, s{pCRE}
s_cselect_b32 s{pCRE+1}, s{pCIM+1}, s{pCRE+1}
s_add_u32 s{dC}, s{dC}, s{pCRE}
s_addc_u32 s{dC+1}, s{pCRE+1}, 0
s_lshl_b32 s{dW2}, s{sJ}, 3
s_add_u32 s{dW2}, s{dW2}, s{sW}
s_mul_i32 s{dW2}, s{dW2}, 28672
s_sub_u32 s{dW2+2}, {WSZ}, s{dW2}
s_add_u32 s{dW2}, s{dW2}, s{pW2}
s_addc_u32 s{dW2+1}, s{pW2+1}, 0
s_lshl_b32 s{dE}, s{sT1}, 13
s_add_u32 s{dE}, s{dE}, {WS_E}
s_add_u32 s{dE}, s{dE}, s{pWS}
s_addc_u32 s{dE+1}, s{pWS+1}, 0
s_mov_b32 s{dE+2}, 8192
s_mul_i32 s{dPO}, s{sR}, 28
s_add_u32 s{dPO}, s{dPO}, s{sW}
s_mul_i32 s{dPO}, s{dPO}, {PIN}
s_add_u32 s{dPO}, s{dPO}, {WS_P}
s_mul_i32 s{dPI}, s{sJ}, {4*PIN}
s_add_u32 s{dPI}, s{dPI}, s{dPO}
s_add_u32 s{dPO}, s{dPO}, s{pWS}
s_addc_u32 s{dPO+1}, s{pWS+1}, 0
s_mov_b32 s{dPO+2}, {25*PIN}
s_add_u32 s{dPI}, s{dPI}, s{pWS}
s_addc_u32 s{dPI+1}, s{pWS+1}, 0
s_mov_b32 s{dPI+2}, {PIN}
s_lshr_b32 s{sCNT}, s{sW}, 1
s_lshl_b32 s{dO}, s{sR}, 2
s_add_u32 s{dO}, s{dO}, s{sCNT}
s_mul_i32 s{dO}, s{dO}, {16*1792}
s_lshl_b32 s{dO+1}, s{sJ}, 1
s_add_u32 s{dO+1}, s{dO+1}, s{sT3}
s_lshl_b32 s{dO+1}, s{dO+1}, 7
s_add_u32 s{dO}, s{dO}, s{dO+1}
s_sub_u32 s{dO+2}, {OSZ}, s{dO}
s_add_u32 s{dO}, s{dO}, s{pOUT}
s_addc_u32 s{dO+1}, s{pOUT+1}, 0
s_mul_i32 s{sT1}, s{sR}, 43
s_lshr_b32 s{sT1}, s{sT1}, 8
s_mul_i32 s{sT1}, s{sT1}, 6
s_sub_u32 s{sT1}, s{sR}, s{sT1}""")
    for s in range(6):
        e(f"""s_add_u32 s{sU+s}, s{sT1}, s{sJ}
s_add_u32 s{sU+s}, s{sU+s}, 1
s_cmp_ge_u32 s{sU+s}, 7
s_cselect_b32 s{sU+6}, 7, 0
s_sub_u32 s{sU+s}, s{sU+s}, s{sU+6}
s_lshl_b32 s{sU+s}, s{sU+s}, 7""")
        if s < 5:
            e(f"""s_add_u32 s{sT1}, s{sT1}, 1
s_cmp_ge_u32 s{sT1}, 6
s_cselect_b32 s{sT1}, 0, s{sT1}""")
    e(f"s_lshl_b32 s{sU+6}, s{sJ}, 7")
    for i in range(1, 4):
        e(f"v_add_u32 v{vdW1+i}, {i*(28672-1024)}, v{vdW1}\nv_add_u32 v{vdW2+i}, {i*6144}, v{vdW2}")
    e(f"""v_mov_b32 v{vdC}, v{vdB}
v_add_u32 v{vdC+1}, 6144, v{vdB+1}
v_add_u32 v{vdC+2}, {2*6144}, v{vdB}
v_add_u32 v{vdC+3}, {3*6144}, v{vdB+1}
v_lshrrev_b32 v{t0}, 1, v{vN}
v_xor_b32 v{t0}, v{t0}, v{vH}
v_and_b32 v{t0}, 7, v{t0}
v_lshlrev_b32 v{t0}, 4, v{t0}
v_lshl_add_u32 v{t0}, v{vN}, 7, v{t0}""")
    for k in range(4):
        e(f"""v_xor_b32 v{t1}, {32*k}, v{t0}
v_add_u32 v{vX+k}, {XB}, v{t1}
v_add_u32 v{vB+k}, s{sWQ}, v{t1}
v_add_u32 v{vB+4+k}, 0x10000, v{vB+k}""")
    e(f"""s_lshl_b32 s{sT1}, s{sW}, 5
v_xor_b32 v{vG}, s{sT1}, v{vX}
s_add_u32 s{sT0}, s{sT0}, {PR}
v_lshl_add_u32 v{vP}, v{vH}, 4, s{sT0}
v_lshl_add_u32 v{vP2}, v{vH}, 5, s{sT0}
s_sub_u32 s{sT0}, s{sJ}, s{sROT}
s_cselect_b32 s{sT1}, 7, 0
s_add_u32 s{sT0}, s{sT0}, s{sT1}
s_lshl_b32 s{sT0}, s{sT0}, 1
s_add_u32 s{sT0}, s{sT0}, s{sCNT}
s_lshl_b32 s{sT0}, s{sT0}, 12
s_lshl_b32 s{sT1}, s{sT3}, 6
v_xor_b32 v{vXD}, s{sT1}, v{vX}
v_add_u32 v{vXD}, s{sT0}, v{vXD}
v_xor_b32 v{vXD+1}, 32, v{vXD}
v_bfe_u32 v{t0}, v{vL}, 2, 2
v_lshl_add_u32 v{t0}, v{vH}, 3, v{t0}
v_lshlrev_b32 v{t0}, 7, v{t0}
v_bfe_u32 v{t1}, v{vL}, 3, 1
v_lshl_add_u32 v{t0}, v{t1}, 6, v{t0}
v_and_b32 v{t1}, 1, v{vL}
v_lshl_add_u32 v{t0}, v{t1}, 5, v{t0}
v_and_b32 v{t1}, 16, v{vL}
v_add_u32 v{t0}, v{t0}, v{t1}
v_and_b32 v{t1}, 2, v{vL}
v_lshl_add_u32 v{t0}, v{t1}, 2, v{t0}
v_add_u32 v{vW1}, s{sWQ}, v{t0}
v_xor_b32 v{vW1+1}, 64, v{vW1}
v_add_u32 v{vW1+2}, 0x10000, v{vW1}
v_add_u32 v{vW1+3}, 0x10000, v{vW1+1}
s_mov_b32 s{sCNT}, 0""")
    if P["prof"]: e("s_mov_b32 s44, 0\ns_mov_b32 s45, 0")
    M.append(lgkm0())
    e(f"s_add_u32 s{sTAG}, s{sTAG}, {EPC}")
    M += stamp()

    mf, post = [], collections.defaultdict(list)
    def rd(k, ins): post[max(-1, k)].extend(ins if isinstance(ins, list) else [ins])
    def mfma(dst, a, b, c, exp=None):
        mf.append(I(f"v_mfma_f32_32x32x16_bf16 {dst}, {a}, {b}, {c}", exp=exp)); return len(mf) - 1
    def xa(s, ks, rt): return A(((s * 4 + ks) * 2 + rt) * 4, 4)
    tneed, tlast = {}, {}
    nb = 0
    for s in range(7):
        k0 = len(mf)
        tneed[("x", s)] = tneed[("g", s)] = k0 - d
        rd(k0 - d, [need(("g", s)), I("s_barrier")])
        wn, of = (0, slot(s) * SL) if slot(s) < 4 else (4, slot(s) * SL - 65536)
        for ks in range(4):
            b = V(Bfr + 4 * (nb % 4), 4); nb += 1
            k = len(mf)
            rd(k - d, I(f"ds_read_b128 {b}, v{vB+wn+ks} offset:{of}", ver=("B", s, ks)))
            for rt in range(2):
                rd(k + rt - d, I(f"ds_read_b128 {xa(s,ks,rt)}, v{vX+ks} offset:{s*8192+rt*4096}", ver=("x", s, ks, rt)))
                acc = V(accS + 16 * rt, 16)
                mfma(acc, xa(s, ks, rt), b, acc if s or ks else "0", [(b, ("B", s, ks)), (xa(s, ks, rt), ("x", s, ks, rt))])
        tlast[s] = len(mf) - 1
        k = len(mf)
        if s == 0: rd(k - d, need("par"))
        rd(k - d, I(f"ds_read_b128 {V(gwf,4)}, v{vP} offset:{32*s}", ver=("gw", s)))
        for rt in range(2):
            g = V(Gx + 4 * rt, 4)
            rd(k + rt - d, I(f"ds_read_b128 {g}, v{vG} offset:{s*8192+rt*4096}", ver=("gx", s, rt)))
            acc = A(aG + 16 * rt, 16)
            mfma(acc, V(gwf, 4), g, acc if s else "0", [(V(gwf, 4), ("gw", s)), (g, ("gx", s, rt))])
    for kk in range(2):
        k = len(mf)
        rd(k - d, I(f"ds_read_b128 {V(xD+4*kk,4)}, v{vXD+kk}", ver=("xd", kk), tok=("xd", kk)))
        mfma(V(accD, 16), V(xD + 4 * kk, 4), V(dia + 4 * kk, 4), V(accD, 16) if kk else "0",
             [(V(xD + 4 * kk, 4), ("xd", kk)), (V(dia + 4 * kk, 4), "dia")])
    S1 = len(mf)
    nw = 0
    for y in range(14):
        g = 7 + y
        tneed[("g", g)] = len(mf) - d - 1
        rd(len(mf) - d - 1, need(("g", g)))
        wn, of = (0, slot(g) * SL) if slot(g) < 4 else (2, slot(g) * SL - 65536)
        for k2 in range(2):
            s, ks = y // 2, 2 * (y % 2) + k2
            for ft in range(2):
                wr = Wfr + 4 * (nw % 4); nw += 1
                k = len(mf)
                for ee in range(2):
                    rd(k - d - 1 + ee, I(f"ds_read_b64_tr_b16 {V(wr+2*ee,2)}, v{vW1+wn+ft} offset:{of+(16*k2+4*ee)*128}", ver=("W", y, k2, ft)))
                for rt in (1, 0):
                    acc = V(accF + 32 * ft + 16 * rt, 16)
                    c = acc if (y or k2) else V(accF + 32 * ft, 16)
                    ex = [(V(wr, 4), ("W", y, k2, ft)), (xa(s, ks, rt), ("x", s, ks, rt))]
                    if not (y or k2): ex.append((c, "bias"))
                    mfma(acc, V(wr, 4), xa(s, ks, rt), c, ex)
        tlast[g] = len(mf) - 1
    NM1 = len(mf)
    ts, prev, n = [], -d - 10, 0
    for s in range(7):
        t = tneed[("g", s)]
        ts += [prev + (t - prev) * (i + 1) / 6 for i in range(6)]; prev = t
    for g in range(7, 21):
        t = tneed[("g", g)]
        ts += [prev + (t - prev) * (i + 1) / 4 for i in range(4)]; prev = t
    nd = LA
    last = -1
    while nd - LA < len(ts):
        p = max(int(ts[nd - LA]) + 1, last, 0)
        tok = D[nd][1]
        if tok[0] == "g" and tok[1] >= 6: p = max(p, tlast[tok[1] - 6])
        if p >= NM1: break
        post[p].extend(D[nd][0]); last = p; nd += 1

    F = []
    def f(t, **k): F.extend(L(t, **k))
    z0, z1, z2, z3, z4, z5, z6 = range(scr, scr + 7)
    f(f"""v_lshlrev_b32 v{raw+2}, 16, v{raw+2}
v_mul_f32 v{raw+2}, {fb(LOG2E)}, v{raw+2}
v_exp_f32 v{raw+2}, v{raw+2}
v_lshlrev_b32 v{raw}, 16, v{raw}
v_lshlrev_b32 v{raw+1}, 16, v{raw+1}
v_cvt_pk_bf16_f32 v{raw+2}, v{raw+2}, v{raw+2}
v_lshlrev_b32 v{z0}, 28, v{vL}
v_and_b32 v{z0}, 0x80000000, v{z0}
v_lshlrev_b32 v{raw+2}, 16, v{raw+2}
v_xor_b32 v{raw+1}, v{z0}, v{raw+1}
v_xor_b32 v{raw+1}, 0x80000000, v{raw+1}
v_xor_b32 v{z0}, 2.0, v{z0}
v_mul_f32 v{z1}, v{raw+2}, v{raw}
v_mul_f32 v{z2}, v{raw+2}, v{raw+1}
v_mul_f32 v{z1}, {fb(LOG2E)}, v{z1}
v_mul_f32 v{z2}, 0.15915494, v{z2}
v_exp_f32 v{z1}, v{z1}
v_rndne_f32 v{z3}, v{z2}
v_sub_f32 v{z2}, v{z2}, v{z3}
v_cos_f32 v{z3}, v{z2}
v_sin_f32 v{z4}, v{z2}
v_mul_f32 v{z5}, v{raw}, v{raw}
v_fmac_f32 v{z5}, v{raw+1}, v{raw+1}
v_rcp_f32 v{z5}, v{z5}
v_mul_f32 v{cL}, v{z3}, v{z1}
v_mul_f32 v{cL+1}, v{z4}, v{z1}
v_mul_f32 v{z5}, v{z5}, v{z0}
v_add_f32 v{z1}, -1.0, v{cL}
v_mul_f32 v{z2}, v{z1}, v{raw}
v_fmac_f32 v{z2}, v{cL+1}, v{raw+1}
v_mul_f32 v{cS}, v{z2}, v{z5}
v_mul_f32 v{z2}, v{cL+1}, v{raw}
v_fma_f32 v{z2}, -v{z1}, v{raw+1}, v{z2}
v_mul_f32 v{cS+1}, v{z2}, v{z5}""", at=8)
    def sq(dst, src):
        f(f"""v_mul_f32 v{z6}, v{src+1}, v{src+1}
v_add_f32 v{z5}, v{src}, v{src}
v_fma_f32 v{dst}, v{src}, v{src}, -v{z6}
v_mul_f32 v{dst+1}, v{z5}, v{src+1}""")
    sq(z0, cL); sq(z0, z0); sq(z0, z0); sq(cL16, z0); sq(cL32, cL16); sq(cL64, cL32)
    sq(z0, cL64); sq(z0, z0); sq(cL512, z0); sq(cL1K, cL512)
    f(f"""v_and_b32 v{z0}, 1, v{vL}
v_lshlrev_b32 v{z0}, 4, v{z0}
v_lshlrev_b32 v{z0}, v{z0}, v{raw+3}
v_bfe_u32 v{z1}, v{vL}, 1, 2
v_bfe_u32 v{z2}, v{vL}, 4, 1
v_lshl_add_u32 v{z1}, v{z2}, 2, v{z1}
v_bfe_u32 v{z2}, v{vL}, 3, 1
v_xor_b32 v{z2}, v{z2}, v{vH}
v_lshl_add_u32 v{z1}, v{z2}, 3, v{z1}""")
    for i in range(4):
        f(f"ds_read_b128 {V(rawb+4*i,4)}, v{vP2} offset:{256+64*(i>>1)+16*(i&1)}")
    for i in range(8):
        f(f"v_cmp_eq_u32 vcc, {i}, v{z1}")
        f(f"v_lshlrev_b32 v{accF+32*(i>>2)+4*(i&3)}, 16, v{rawb+2*i}", ver="bias")
        f(f"v_and_b32 v{accF+32*(i>>2)+4*(i&3)+1}, 0xffff0000, v{rawb+2*i}", ver="bias")
        f(f"v_cndmask_b32 v{dia+i}, 0, v{z0}", ver="dia")
        f(f"v_lshlrev_b32 v{accF+32*(i>>2)+4*(i&3)+2}, 16, v{rawb+2*i+1}", ver="bias")
        f(f"v_and_b32 v{accF+32*(i>>2)+4*(i&3)+3}, 0xffff0000, v{rawb+2*i+1}", ver="bias")
    NFA = len(F)

    DPP = "row_ror:8 row_mask:0xf bank_mask:0xf"
    def cm1(dst, m, zz, add): return f"v_fma_f32 v{dst}, v{m}, v{zz}, {add}"
    def cm2(dst, m, zz, neg=""): return f"v_fmac_f32_dpp v{dst}, v{zz}, {neg}v{m+1} {DPP}"
    ea, eb = [vT, vT + 1], [vT + 2, vT + 3]
    pa, pb = accS, accS + 16
    for q in range(1, 16):
        da, db = ea[q & 1], eb[q & 1]
        f("\n".join([cm1(da, cL, pa, f"v{accS+q}"), cm1(db, cL, pb, f"v{accS+16+q}"), cm2(da, cL, pa), cm2(db, cL, pb)]),
          at=S1 - 1)
        pa, pb = da, db
    e0, e32, elo, ehi = pa, vT, vT + 4, vT + 5
    f(f"""v_lshlrev_b32 v{vT+6}, 4, v{vN}
s_lshl_b32 s{sT0}, s{sW}, 2
{cm1(elo, cL16, e0, f'v{pb}')}
{cm2(elo, cL16, e0)}
s_add_u32 s{sT0}, s{sT0}, {GP}
v_mov_b32 v{ehi}, v{elo}
v_add_u32 v{vT+2}, s{sT0}, v{vT+6}
s_sub_u32 s{sT1}, 31, s{sR}
v_permlane32_swap_b32 v{elo}, v{ehi}
s_lshl_b32 s{sT1}, s{sT1}, 8
v_mov_b32 v{vE1}, s{sTAG}
{cm1(vE0, cL32, elo, f'v{ehi}')}
{cm2(vE0, cL32, elo)}
v_lshl_add_u32 v{vT}, v{vN}, 3, s{sT1}
buffer_store_dwordx2 {V(vE0,2)}, v{vT}, {S(dE,4)}, 0 offen sc1
ds_write_b32 v{vT+2}, a{aG}
ds_write_b32 v{vT+2}, a{aG+16} offset:512""")
    F[-1].tok = "gpw"
    vEg = vT
    f(f"""v_lshl_add_u32 v{vEg}, v{vH}, 12, v{vT}
v_add_u32 v{vEg}, 256, v{vEg}
v_add_u32 v{vT+6}, {GP}, v{vT+6}""")
    F.append(needlg("gpw")); f("s_barrier")
    g0 = rawb
    f(f"""ds_read_b128 {V(g0,4)}, v{vT+6}
ds_read_b128 {V(g0+4,4)}, v{vT+6} offset:512""")
    def scale(lo, hi):
        for q in range(lo, hi):
            t = vT + 2 + (q & 1)
            f(f"v_mul_f32_dpp v{t}, v{accS+q}, v{cS+1} {DPP}\nv_fma_f32 v{accS+q}, v{accS+q}, v{cS}, v{t}")
    scale(0, 8)
    f(f"""v_add_f32 v{g0}, v{g0}, v{g0+1}
v_add_f32 v{g0+4}, v{g0+4}, v{g0+5}
v_add_f32 v{g0+2}, v{g0+2}, v{g0+3}
v_add_f32 v{g0+6}, v{g0+6}, v{g0+7}
v_add_f32 v{g0}, v{g0}, v{g0+2}
v_add_f32 v{g0+4}, v{g0+4}, v{g0+6}
v_mul_f32 v{g0}, {fb(-LOG2E)}, v{g0}
v_mul_f32 v{g0+4}, {fb(-LOG2E)}, v{g0+4}
v_exp_f32 v{g0}, v{g0}
v_exp_f32 v{g0+4}, v{g0+4}
v_bfe_u32 v{g0+1}, v{vN}, 2, 1
v_add_f32 v{g0}, 1.0, v{g0}
v_add_f32 v{g0+4}, 1.0, v{g0+4}
v_rcp_f32 v{g0}, v{g0}
v_rcp_f32 v{g0+4}, v{g0+4}
v_lshrrev_b32 v{g0+2}, 3, v{vN}
v_lshl_add_u32 v{g0+1}, v{g0+1}, 3, v{g0+2}
v_and_b32 v{g0+2}, 3, v{vN}
v_lshl_add_u32 v{g0+1}, v{g0+1}, 2, v{g0+2}
v_lshlrev_b32 v{g0+1}, 2, v{g0+1}
v_add_u32 v{g0+1}, {GT}, v{g0+1}
v_sub_f32 v{omg}, 1.0, v{g0}
v_sub_f32 v{omg+2}, 1.0, v{g0+4}
ds_write_b32 v{g0+1}, v{g0}
ds_write_b32 v{g0+1}, v{g0+4} offset:64
v_lshlrev_b32 v{g0+2}, 7, v{vH}
v_add_u32 v{g0+2}, {GT}, v{g0+2}
s_lshr_b32 s{sT0}, s{sW}, 1
s_lshl_b32 s{sT1}, s{sT0}, 6
v_add_u32 v{g0+3}, s{sT1}, v{g0+2}
v_mov_b32 v{omg+1}, v{omg}
v_mov_b32 v{omg+3}, v{omg+2}""")
    for i in range(4): f(f"ds_read_b128 {V(Eg+4*i,4)}, v{g0+3} offset:{16*i}")
    scale(8, 12)
    for i in range(8): f(f"ds_read_b128 {V(gR+4*i,4)}, v{g0+2} offset:{16*i}")
    for q in range(16): f(f"v_mul_f32 v{accD+q}, v{accD+q}, v{Eg+q}")
    gl = [f"buffer_load_dwordx2 {V(Eg+2*i,2)}, v{vEg}, {S(dE,4)}, 0 offen offset:{256*i} sc1" for i in range(16)]
    for i in range(16):
        f(gl[i], at=P["egat"])
        scale(12 + i, 13 + i)
    scale(28, 32)
    vCnt = vE1
    f(f"""v_lshlrev_b32 v{vT+2}, 4, v{vH}
v_sub_u32 v{vT+2}, s{sR}, v{vT+2}
v_med3_i32 v{vT+2}, v{vT+2}, 0, 16
v_mul_lo_u32 v{vCnt}, v{vT+2}, s{sTAG}
v_cmp_eq_u32 vcc, 1, v{vH}
v_lshrrev_b32 v{vT+2}, 1, v{vN}
v_and_b32 v{vT+2}, 7, v{vT+2}
v_cndmask_b32 v{cL32}, 1.0, v{cL32}
v_cndmask_b32 v{cL32+1}, 0, v{cL32+1}
v_cndmask_b32 v{elo}, 0, v{elo}
v_lshlrev_b32 v{vT+2}, 4, v{vT+2}
v_lshl_add_u32 v{vT+2}, v{vN}, 7, v{vT+2}
v_lshl_add_u32 v{vT+2}, v{vH}, 13, v{vT+2}
s_lshl_b32 s{sT1}, s{sT3}, 12
v_add_u32 v{vC[0]}, s{sT1}, v{vT+2}""")
    for k in range(1, 8): f(f"v_xor_b32 v{vC[k]}, {16*k}, v{vC[0]}")
    for k in range(8): f(f"v_add_u32 v{vC[8+k]}, 0x10000, v{vC[k]}")
    chk = [f"v_add3_u32 v{vE0}, v{Eg+1}, v{Eg+3}, v{Eg+5}"]
    for i in range(3, 15, 2): chk.append(f"v_add3_u32 v{vE0}, v{vE0}, v{Eg+2*i+1}, v{Eg+2*i+3}")
    chk += [f"v_add_u32 v{vE0}, v{vE0}, v{Eg+31}", f"v_cmp_ne_u32 vcc, v{vE0}, v{vCnt}"]
    f("\n".join(chk), at=P["echk"])
    f("s_cbranch_vccnz L_eretry\nL_eback:")
    OUT = L("L_eretry:\n" + ("s_add_u32 s44, s44, 1\n" if P["prof"] else "") + "\n".join(gl) + f"""
s_add_u32 s{sCNT}, s{sCNT}, 1
s_waitcnt vmcnt(0)
s_cmp_gt_u32 s{sCNT}, 0x8000
s_cbranch_scc1 L_eback
""" + "\n".join(chk) + "\ns_cbranch_vccnz L_eretry\ns_branch L_eback")
    for i in range(6, -1, -1):
        a0, a1, b0, b1 = Eg + 2 * i, Eg + 2 * i + 2, Eg + 16 + 2 * i, Eg + 16 + 2 * i + 2
        f(f"v_fmac_f32 v{a0}, v{cL64}, v{a1}\nv_fmac_f32 v{b0}, v{cL64}, v{b1}\n{cm2(a0, cL64, a1)}\n{cm2(b0, cL64, b1)}")
    k0, k1, c0, c1, hw = Eg, Eg + 1, Eg + 2, Eg + 3, Eg + 8
    f(f"""v_fmac_f32 v{k0}, v{cL512}, v{Eg+16}
v_and_b32 v{hw}, 3, v{vN}
{cm2(k0, cL512, Eg+16)}
v_mov_b32 v{k1}, v{k0}
v_lshlrev_b32 v{hw}, 4, v{hw}
v_lshl_add_u32 v{hw}, v{vN}, 7, v{hw}
v_permlane32_swap_b32 v{k0}, v{k1}
v_lshl_add_u32 v{hw}, v{vH}, 6, v{hw}
v_fmac_f32 v{k0}, v{cL1K}, v{k1}
{cm2(k0, cL1K, k1)}
s_add_u32 s{sT1}, s{sWQ}, {HB}
{cm1(c0, cL32, k0, f'v{elo}')}
{cm2(c0, cL32, k0)}
v_add_u32 v{hw}, s{sT1}, v{hw}
{cm1(c1, cL16, c0, f'v{e0}')}
{cm2(c1, cL16, c0)}
v_mul_f32_dpp v{k0}, v{c0}, v{cS+1} {DPP}
v_xor_b32 v{hw+1}, 16, v{hw}
v_mul_f32_dpp v{k1}, v{c1}, v{cS+1} {DPP}
v_fmac_f32 v{k0}, v{c0}, v{cS}
v_fmac_f32 v{k1}, v{c1}, v{cS}""")
    pa, pb = k0, k1
    for q in range(16):
        da, db = accS + q, accS + 16 + q
        f(f"v_fmac_f32 v{da}, v{cL}, v{pa}\nv_fmac_f32 v{db}, v{cL}, v{pb}\n{cm2(da, cL, pa, '-')}\n{cm2(db, cL, pb, '-')}")
        pa, pb = da, db
    f(f"v_xor_b32 v{hw+2}, 32, v{hw}\nv_xor_b32 v{hw+3}, 48, v{hw}")
    for i in range(4):
        for q in range(8 * i, 8 * i + 8): f(f"v_mul_f32 v{gR+q}, v{gR+q}, v{accS+q}")
        for q in range(4): f(f"v_cvt_pk_bf16_f32 v{Eg+16+4*i+q}, v{gR+8*i+2*q}, v{gR+8*i+2*q+1}")
        f(f"ds_write_b128 v{hw+i}, {V(Eg+16+4*i,4)}")
    if P["prof"]:
        post[S1 - 1][0:0] = stamp()
        for k in P.get("st1", []): post[k][0:0] = stamp(True)
    st, left = spine(mf, post, F, P["bud"])
    info = dict(left=len(left), nd=nd)
    M += st
    M += dump("s1")
    M += stamp()
    M += left
    M += dump("scan")
    M += stamp()

    K1, K3, K4, mt, mh, mo = 80, 82, 84, 88, 96, 104
    e(f"""v_mov_b32 v{K1}, {fb(LOG2E)}
v_mov_b32 v{K1+1}, {fb(LOG2E)}
v_mov_b32 v{K3}, {fb(0.7071067811865476)}
v_mov_b32 v{K3+1}, {fb(0.7071067811865476)}
v_mov_b32 v{K4}, 0.5
v_mov_b32 v{K4+1}, 0.5
v_lshlrev_b32 v{vLin}, 4, v{vL}
s_add_u32 s{sT1}, s{sWQ}, {AB}
v_add_u32 v{vAw}, s{sT1}, v{vLin}
s_lshl_b32 s{sT1}, s{sT0}, 14
s_add_u32 s{sT1}, s{sT1}, {AB}
v_add_u32 v{vAr}, s{sT1}, v{vLin}
v_bfe_u32 v{t0}, v{vL}, 2, 2
v_lshl_add_u32 v{t1}, v{vH}, 3, v{t0}
v_lshlrev_b32 v{t1}, 7, v{t1}
v_and_b32 v{t2}, 1, v{vL}
v_lshl_add_u32 v{t1}, v{t2}, 6, v{t1}
v_and_b32 v{t2}, 2, v{vL}
v_lshl_add_u32 v{t1}, v{t2}, 2, v{t1}
v_lshlrev_b32 v{t2}, 4, v{t0}
v_and_b32 v{t3}, 16, v{vL}
v_xor_b32 v{t2}, v{t2}, v{t3}
s_lshl_b32 s{sT1}, s{sT0}, 5
v_xor_b32 v{t2}, s{sT1}, v{t2}
v_add_u32 v{t1}, v{t1}, v{t2}
v_add_u32 v{vHr}, {HB}, v{t1}
v_lshl_add_u32 v{t0}, v{vH}, 4, v{t0}
v_lshlrev_b32 v{t0}, 7, v{t0}
v_bfe_u32 v{t1}, v{vL}, 3, 1
v_xor_b32 v{t1}, s{sT3}, v{t1}
v_lshl_add_u32 v{t0}, v{t1}, 6, v{t0}
v_lshl_add_u32 v{t0}, v{t3}, 1, v{t0}
v_and_b32 v{t1}, 3, v{vL}
v_lshl_add_u32 v{vW2}, v{t1}, 3, v{t0}
v_add_u32 v{vW2+1}, 0x10000, v{vW2}
v_add_u32 v{vW2+2}, 0x20000, v{vW2}""")
    mf, post = [], collections.defaultdict(list)
    nf = [0]
    def fragreads(q, kx):
        fr = F2 + 4 * (nf[0] % 6); nf[0] += 1
        base = slot(21 + q) * SL
        wn, of = base >> 16, base & 0xffff
        if q % 3 == 0:
            return fr, [I(f"ds_read_b128 {V(fr,4)}, v{vC[8*wn+kx]} offset:{of}", ver=("F", q, kx))]
        return fr, [I(f"ds_read_b64_tr_b16 {V(fr+2*ee,2)}, v{vW2+wn} offset:{of+(32*(kx>>1)+8*(kx&1)+4*ee)*128}",
                      ver=("F", q, kx)) for ee in range(2)]
    early = []
    bpos = {}
    for q in range(21):
        u = q // 3
        acc = V(accD, 16) if u == 6 else V(acc2 + 16 * (u & 1), 16)
        if q >= 2:
            bpos[q] = len(mf) - d
            rd(len(mf) - d, ([needlg("act")] if q == 2 else []) + [need(("g", 21 + q)), I("s_barrier")])
        for kx in range(8):
            k = len(mf)
            fr, r_ = fragreads(q, kx)
            if k - d < 0: early.extend(r_)
            else: rd(k - d, r_)
            if q % 3 == 0: a_, av = A(aH + 4 * kx, 4), ("h", kx)
            else:
                ka = 8 * (q % 3 - 1) + kx
                a_, av = A(4 * ka, 4), ("act", ka)
            mfma(acc, a_, V(fr, 4), acc if (u == 6 or q % 3 or kx) else "0", [(V(fr, 4), ("F", q, kx)), (a_, av)])
    for ka in range(16):
        rd(ka // 2 - 1, I(f"ds_read_b128 {A(4*ka,4)}, v{vAr} offset:{1024*ka}", ver=("act", ka), tok="act" if ka == 15 else None))
    hreads = [I(f"ds_read_b64_tr_b16 {A(aH+4*kx+2*ee,2)}, v{vHr} offset:{(16*kx+4*ee)*128}", ver=("h", kx))
              for kx in range(8) for ee in range(2)] + early
    xd = []
    while D[nd][1][1] < 27: xd.append(D[nd][0]); nd += 1
    uses = [(0, 1), (0, 0), (1, 1), (1, 0)]
    for b in range(8):
        ft, rt = uses[b >> 1]; kk = b & 1
        h = accF + 32 * ft + 16 * rt + 8 * kk
        o = mo + 4 * (b & 1)
        B = []
        for p in range(4): B += L(f"v_pk_fma_f32 {V(mt+2*p,2)}, {V(h+2*p,2)}, {V(K1,2)}, {V(K4,2)} neg_lo:[0,0,1] neg_hi:[0,0,1]")
        for p in range(8): B += L(f"v_exp_f32 v{mt+p}, v{mt+p}")
        for p in range(4): B += L(f"v_pk_add_f32 {V(mt+2*p,2)}, {V(mt+2*p,2)}, {V(K3,2)}")
        for p in range(4): B += L(f"v_pk_fma_f32 {V(mt+2*p,2)}, {V(mt+2*p,2)}, {V(mt+2*p,2)}, {V(K4,2)}")
        for p in range(8): B += L(f"v_rcp_f32 v{mt+p}, v{mt+p}")
        for p in range(4): B += L(f"v_pk_mul_f32 {V(mh+2*p,2)}, {V(h+2*p,2)}, {V(omg+2*rt,2)}")
        for p in range(4): B += L(f"v_pk_fma_f32 {V(mh+2*p,2)}, {V(mh+2*p,2)}, {V(mt+2*p,2)}, {V(mh+2*p,2)} neg_lo:[1,0,0] neg_hi:[1,0,0]")
        for p in range(4): B += L(f"v_cvt_pk_bf16_f32 v{o+p}, v{mh+2*p}, v{mh+2*p+1}")
        B += L(f"ds_write_b128 v{vAw}, {V(o,4)} offset:{rt*16384+(2*ft+kk)*1024}")
        extra = []
        if b < 4:
            n_ = (len(xd) + 3 - b) // (4 - b)
            extra = xd[:n_]; xd = xd[n_:]
        else:
            n_ = (len(hreads) + 6 - b) // (7 - b) if b < 7 else 0
            extra = [[x] for x in hreads[:n_]]; hreads = hreads[n_:]
        if b == 4: M += [lgkm0(), need(("g", 21)), I("s_barrier")]
        step = max(1, len(B) // (len(extra) + 1))
        for i, x in enumerate(B):
            M.append(x)
            if extra and i % step == step - 1: M += extra.pop(0)
        assert not extra
    M += [lgkm0(), need(("g", 22)), I("s_barrier")]
    M += dump("x")
    M += stamp()

    last = -1
    while nd < len(D):
        g = D[nd][1][1]; q = g - 21
        lo = 0 if q == 6 else bpos[max(2, q - 7)]
        p = max(lo, last + (1 if q < 10 else 2))
        post[p].extend(D[nd][0]); last = p; nd += 1
    F = []
    f(f"""v_mov_b32 v{stg+3}, s{sTAG}
v_mov_b32 v{stg+7}, s{sTAG}
v_mov_b32 v{stg+10}, s{sTAG}
v_mov_b32 v{stg+11}, s{sTAG}
v_and_b32 v{t0}, 1, v{vL}
v_lshlrev_b32 v{t0}, 4, v{t0}
v_mov_b32 v{t1}, 0x3f80
v_lshlrev_b32 v{t0}, v{t0}, v{t1}
v_lshrrev_b32 v{t1}, 3, v{vN}
v_bfe_u32 v{t2}, v{vL}, 1, 1
v_lshl_add_u32 v{t1}, v{t1}, 1, v{t2}
v_bfe_u32 v{t2}, v{vL}, 2, 1
v_xor_b32 v{t2}, v{t2}, v{vH}
v_lshl_add_u32 v{t1}, v{t2}, 3, v{t1}
v_mul_u32_u24 v{t2}, {32*1792}, v{vH}
v_lshl_add_u32 v{vOut}, v{vN}, 2, v{t2}
s_mul_i32 s{sT1}, s{sTAG}, 3""", at=8)
    for i in range(8):
        f(f"v_cmp_eq_u32 vcc, {i}, v{t1}\ns_movk_i32 s{sOO+i}, {3584*i}\ns_nop 0\nv_cndmask_b32 v{Sel+i}, 0, v{t0}")
    ev = []
    for u in range(6):
        a_ = acc2 + 16 * (u & 1)
        x = []
        for p, r_ in enumerate((0, 1, 2, 8, 4, 5, 6, 9)):
            x += L(f"v_cvt_pk_bf16_f32 v{stg+r_}, v{a_+2*p}, v{a_+2*p+1}")
        x += L(f"s_mul_i32 s{sT0}, s{sU+u}, {4*PIN//128}\ns_add_u32 s{sT0}, s{sT0}, {3072*u}")
        ev.append((24 * u + 26, x))
        for i in range(3):
            sp = P.get("sp", 0) if u < 5 else 0
            ev.append((24 * u + 26 + sp * i + 0.1, L(f"buffer_store_dwordx4 {V(stg+4*i,4)}, v{vLin}, {S(dPO,4)}, s{sT0} offen offset:{1024*i} sc1")))
    def pl(u):
        return f"s_movk_i32 s{sROT}, {3072*u}\n" + "\n".join(
            f"buffer_load_dwordx4 {V(inb[u]+4*i,4)}, v{vLin}, {S(dPI,4)}, s{sROT} offen offset:{1024*i} {P.get('plf', 'sc1')}" for i in range(3))
    for u in range(6): ev.append((P["pld"][u], L(pl(u))))
    ev.sort(key=lambda t: t[0])
    for at, x in ev:
        for i_ in x: i_.at = int(at)
        F += x
    for k in P.get("st2", []): post[k][0:0] = stamp(True)
    st, left = spine(mf, post, F, P["bud"])
    M += st
    M += left
    M += stamp()
    for u in range(6):
        c = f"v_add3_u32 v{t0}, v{inb[u]+3}, v{inb[u]+7}, v{inb[u]+11}\nv_cmp_ne_u32 vcc, s{sT1}, v{t0}"
        e(f"""{c}
s_cbranch_vccnz L_pretry{u}
L_pback{u}:
v_mov_b32 v{inb[u]+3}, v{inb[u]+8}
v_mov_b32 v{inb[u]+7}, v{inb[u]+9}
v_mfma_f32_32x32x16_bf16 {V(accD,16)}, {V(Sel,4)}, {V(inb[u],4)}, {V(accD,16)}
v_mfma_f32_32x32x16_bf16 {V(accD,16)}, {V(Sel+4,4)}, {V(inb[u]+4,4)}, {V(accD,16)}""")
        OUT += L(f"""L_pretry{u}:
{f"s_or_b32 s45, s45, {1 << u}" if P["prof"] else ""}
{pl(u)}
s_add_u32 s{sCNT}, s{sCNT}, 1
s_waitcnt vmcnt(0)
s_cmp_gt_u32 s{sCNT}, 0x8000
s_cbranch_scc1 L_pback{u}
{c}
s_cbranch_vccnz L_pretry{u}
s_branch L_pback{u}""")
    M += stamp()
    for q in range(16):
        e(f"buffer_store_dword v{accD+q}, v{vOut}, {S(dO,4)}, s{sOO+q//2} offen offset:{1792*(q&1)} {P['ost']}")
    if P.get("amp"):
        a_, b_ = P["amp"]
        M += [vm0()] + stamp() + L("s_waitcnt lgkmcnt(0)")
        e(f"""s_cmp_lg_u32 s2, 141
s_cbranch_scc1 L_noamp
s_sub_u32 s44, s{sST+2*b_}, s{46 if a_ < 0 else sST+2*a_}
s_min_u32 s44, s44, 10000
s_lshl_b32 s44, s44, 4
L_amp:
s_memrealtime s[42:43]
s_waitcnt lgkmcnt(0)
s_sub_u32 s45, s42, s{sST+14}
s_cmp_lt_u32 s45, s44
s_cbranch_scc1 L_amp
L_noamp:""")
    elif P["prof"]:
        M += [vm0()] + stamp() + L("s_waitcnt lgkmcnt(0)")
        e(f"""s_memrealtime s[42:43]
s_mul_i32 s{sT0}, s{sR}, 7
s_add_u32 s{sT0}, s{sT0}, s{sJ}
s_lshl_b32 s{sT0}, s{sT0}, 2
s_add_u32 s{sT0}, s{sT0}, s{sW}
s_lshl_b32 s{sT0}, s{sT0}, 6
s_add_u32 s{sT0}, s{sT0}, {WS_DBG}
v_mov_b32 v0, s{sT0}
s_waitcnt lgkmcnt(0)""")
        for i in range(nst[0]):
            e(f"v_mov_b32 v4, s{sST+2*i}\nglobal_store_dword v0, v4, {S(pWS,2)} offset:{4*i}")
        e(f"v_mov_b32 v4, s44\nglobal_store_dword v0, v4, {S(pWS,2)} offset:40")
        e(f"v_mov_b32 v4, s45\nglobal_store_dword v0, v4, {S(pWS,2)} offset:44")
        e(f"v_mov_b32 v4, s46\nglobal_store_dword v0, v4, {S(pWS,2)} offset:52")
        e(f"v_mov_b32 v4, s47\nglobal_store_dword v0, v4, {S(pWS,2)} offset:48")
        e(f"v_mov_b32 v4, s{sCNT}\nglobal_store_dword v0, v4, {S(pWS,2)} offset:56")
        e(f"v_mov_b32 v4, s42\nglobal_store_dword v0, v4, {S(pWS,2)} offset:60")
    e(f"""s_lshl_b32 s{sT0}, s{sJ}, 2
s_add_u32 s{sT0}, s{sT0}, s{sW}
s_lshl_b32 s{sT0}, s{sT0}, 5
s_add_u32 s{sT0}, s{sT0}, s{sR}
s_cmp_lg_u32 s{sT0}, 31
s_cbranch_scc1 L_exit
v_mov_b32 v0, 0
global_store_dword v0, v{stg+3}, {S(pWS,2)} sc1
L_exit:
s_endpgm""")
    pre = P.get("pre", "")
    if "pld" in pre: M = [x for x in M if not (x.kind == "vld" and x.op.endswith("x4")) and "L_pretry" not in x.text]
    if "pst" in pre: M = [x for x in M if not (x.kind == "vst" and x.op.endswith("x4")) and "L_pretry" not in x.text]
    if "p3" in pre: M = [x for x in M if not (x.kind in ("vst", "vld") and x.op.endswith("x4") and "offset:2048" in x.text) and "L_pretry" not in x.text]
    if "plain" in pre:
        M = [x for x in M if "L_pretry" not in x.text]
        for x in M:
            if x.kind == "vst" and x.op.endswith("x4"): x.text = x.text.replace(" sc1", "")
    if "eld" in pre: M = [x for x in M if not (x.kind == "vld" and x.op.endswith("x2")) and "L_eretry" not in x.text]
    if "esto" in pre: M = [x for x in M if not (x.kind == "vst" and x.op.endswith("x2")) and "L_eretry" not in x.text]
    body, nops = finalize(M, P.get("verbose"))
    drop = P.get("drop", "")
    if "dma" in drop: body = [x for x in body if x.kind != "dma"]
    if "pst" in drop: body = [x for x in body if not (x.kind in ("vst", "vld") and x.op.endswith("x4")) and "L_pretry" not in x.text]
    if "est" in drop: body = [x for x in body if not (x.kind in ("vst", "vld") and x.op.endswith("x2")) and "L_eretry" not in x.text]
    if "bar" in drop: body = [x for x in body if x.op != "s_barrier"]
    if "dsr" in drop: body = [x for x in body if x.kind != "dsr"]
    if "dsw" in drop: body = [x for x in body if x.kind != "dsw"]
    if "wait" in drop: body = [x for x in body if not (x.op == "s_waitcnt" and "lgkmcnt(0)" not in x.text)]
    if "mfma" in drop: body = [x for x in body if x.kind != "mfma"]
    info["nops"] = nops; info["n"] = len(body)
    PF = L("L_pf:")
    if P["pf"]:
        PF += L("""s_lshl_b32 s50, s2, 8
v_add_lshl_u32 v1, v0, s50, 7
s_mov_b32 s55, 0x20000
s_waitcnt lgkmcnt(0)""")
        k = 2
        for ptr, sz in P.get("pfl", ((pW1, WSZ), (pCRE, MSZ), (pCIM, MSZ), (pW2, WSZ))):
            PF += L(f"s_mov_b32 s52, s{ptr}\ns_mov_b32 s53, s{ptr+1}\ns_mov_b32 s54, {sz}")
            PF += L(f"buffer_load_dword v{k}, v1, s[52:55], 0 offen"); k += 1
            if sz > 1 << 20:
                PF += L(f"v_add_u32 v{k}, 0x100000, v1\nbuffer_load_dword v{k}, v{k}, s[52:55], 0 offen"); k += 1
        if P.get("pfws"):
            PF += L(f"s_add_u32 s52, s{pWS}, {WS_P}\ns_addc_u32 s53, s{pWS+1}, 0\ns_mov_b32 s54, {896*PIN}")
            if P["pfws"] > 1: PF += L("s_waitcnt vmcnt(0)")
            for i in range(16):
                PF += L(f"v_add_u32 v{k}, {i << 20}, v1\nbuffer_load_dword v{k}, v{k}, s[52:55], 0 offen {P.get('pfwf', '')}"); k += 1
                if P["pfws"] > 2: PF += L(f"s_waitcnt vmcnt({P['pfws'] - 2})")
    PF += L("s_endpgm")
    txt = [f"; @launch grid=(256,1,1) block=(256,1,1) lds=163840",
           '.amdgcn_target "amdgcn-amd-amdhsa--gfx950"', ".text", f".globl {NAME}_kernel", ".p2align 8",
           f".type {NAME}_kernel,@function", f"{NAME}_kernel:"]
    txt += [x.text for x in body + OUT + PF]
    txt.append(f""".section .rodata,"a"
.p2align 6
.amdhsa_kernel {NAME}_kernel
  .amdhsa_next_free_vgpr 512
  .amdhsa_next_free_sgpr 102
  .amdhsa_accum_offset 256
  .amdhsa_group_segment_fixed_size 0
  .amdhsa_kernarg_size 136
  .amdhsa_user_sgpr_count 2
  .amdhsa_user_sgpr_kernarg_segment_ptr 1
  .amdhsa_system_sgpr_workgroup_id_x 1
.end_amdhsa_kernel""")
    return "\n".join(txt) + "\n", info

if __name__ == "__main__":
    kw = {}
    for a in sys.argv[2:]:
        k, v = a.split("=", 1); kw[k] = eval(v)
    t, info = gen(**kw)
    open(sys.argv[1], "w").write(t)
    print(info)
```

```python
import re, struct

def fb(x):
    return "0x%08x" % struct.unpack("<I", struct.pack("<f", x))[0]

_REG = re.compile(r"\b([vas])\[(\d+):(\d+)\]|\b([vas])(\d+)\b|\b(vcc|exec|m0)\b")

def regs_of(s):
    out = set()
    for m in _REG.finditer(s):
        if m.group(1):
            out.update((m.group(1), i) for i in range(int(m.group(2)), int(m.group(3)) + 1))
        elif m.group(4):
            out.add((m.group(4), int(m.group(5))))
        else:
            out.add((m.group(6), 0))
    return out

def R(f, a, n=1):
    return f"{f}{a}" if n == 1 else f"{f}[{a}:{a+n-1}]"
def V(a, n=1): return R("v", a, n)
def A(a, n=1): return R("a", a, n)
def S(a, n=1): return R("s", a, n)

TRANS = ("v_exp_f32", "v_log_f32", "v_rcp_f32", "v_rsq_f32", "v_sqrt_f32", "v_sin_f32", "v_cos_f32")

class I:
    def __init__(self, text, tok=None, ver=None, exp=None, at=None):
        self.text = text.strip()
        self.tok = tok
        self.ver = ver
        self.exp = exp
        self.at = at
        self.rd, self.wr, self.srcc, self.data = set(), set(), set(), set()
        t = self.text
        op = t.split()[0]
        self.op = op
        rest = t[len(op):]
        ops = [o.strip() for o in rest.split(",")]
        allr = regs_of(rest)
        first = regs_of(ops[0]) if ops and ops[0] else set()
        others = regs_of(",".join(ops[1:])) if len(ops) > 1 else set()
        self.cost = 4
        if op.startswith("@"):
            self.kind = "pseudo"; self.cost = 4 if op in ("@need", "@needlg", "@lgkm0", "@vm0") else 0
        elif t.endswith(":") or op.startswith(".") or op.startswith(";"):
            self.kind = "label"; self.cost = 0
        elif op.startswith("v_mfma"):
            self.kind = "mfma"; self.wr = first; self.rd = others; self.srcc = regs_of(ops[3]); self.cost = 8
            self.ab = regs_of(ops[1]) | regs_of(ops[2])
        elif op.startswith("v_"):
            self.kind = "valu"; self.wr = first; self.rd = others
            self.trans = any(op.startswith(x) for x in TRANS)
            self.dpp = "row_" in t or "quad_perm" in t
            self.perm = op.startswith("v_permlane")
            if self.trans or self.perm: self.cost = 8
            if op.startswith(("v_fmac", "v_dot2c", "v_mac")) or self.dpp: self.rd = others | first
            if self.perm: self.rd = self.wr = allr
            if op.startswith("v_cndmask") and len(ops) == 3: self.rd = others | {("vcc", 0)}
        elif op.startswith("ds_read"):
            self.kind = "dsr"; self.wr = first; self.rd = others
        elif op.startswith("ds_write"):
            self.kind = "dsw"; self.rd = allr
        elif op.startswith("global_load_lds") or (op.startswith("buffer_load") and t.split()[-1] == "lds"):
            self.kind = "dma"; self.rd = allr | {("m0", 0)}
        elif op.startswith(("buffer_load", "global_load")):
            self.kind = "vld"; self.wr = first; self.rd = others
        elif op.startswith("buffer_store"):
            self.kind = "vst"; self.rd = allr
            if op.endswith(("x3", "x4")): self.data = first
        elif op.startswith("global_store"):
            self.kind = "vst"; self.rd = allr
            if op.endswith(("x3", "x4")): self.data = regs_of(ops[1])
        elif op.startswith(("s_load", "s_memtime", "s_memrealtime")):
            self.kind = "smem"; self.wr = first; self.rd = others
        elif op.startswith(("s_cmp", "s_bitcmp", "s_cbranch", "s_branch", "s_waitcnt", "s_barrier", "s_nop",
                            "s_endpgm", "s_setprio")):
            self.kind = "sctl"; self.rd = allr
        elif op.startswith("s_"):
            self.kind = "salu"; self.wr = first; self.rd = others
        else:
            raise ValueError(t)

    def states(self):
        if self.kind in ("label", "pseudo"): return 0
        if self.op == "s_nop": return int(self.text.split()[1]) + 1
        return 1

def need(tok): return I("@need", tok=tok)
def needlg(tok): return I("@needlg", tok=tok)
def lgkm0(): return I("@lgkm0")
def vm0(): return I("@vm0")

def _vg(s): return {r for r in s if r[0] in "va" and r[0] != "vcc"}
def _sg(s): return {r for r in s if r[0] in ("s", "vcc")}

def hazard(p, c):
    w = 0
    mem = c.kind in ("dsr", "dsw", "dma", "vld", "vst")
    if p.kind == "valu":
        pv, ps = _vg(p.wr), _sg(p.wr)
        if c.kind == "mfma" and pv & c.rd: w = max(w, 2)
        if c.kind == "valu":
            if (c.dpp or c.perm) and pv & c.rd:
                src0 = regs_of(c.text.split(",")[1]) if c.dpp else c.rd
                if pv & src0: w = max(w, 2)
            if c.op.startswith(("v_readfirstlane", "v_readlane")) and pv & c.rd: w = max(w, 1)
            if p.trans and not c.trans and pv & c.rd: w = max(w, 1)
            if ps & c.rd: w = max(w, 2)
            if p.op.startswith("v_dot") and pv & (c.rd | c.wr) and c.op != p.op: w = max(w, 3)
        if c.kind in ("dma", "vld", "vst") and ps & c.rd: w = max(w, 5)
    elif p.kind == "mfma":
        if c.kind == "mfma":
            if p.wr & c.ab: w = max(w, 12)
            if p.wr & c.srcc and p.wr != c.srcc: w = max(w, 10)
        elif c.kind == "valu" or mem:
            if p.wr & (c.rd | c.wr): w = max(w, 12)
            if p.srcc & c.wr: w = max(w, 7)
    elif p.kind == "salu":
        if ("m0", 0) in p.wr and c.kind == "dma": w = max(w, 1)
    elif p.kind == "vst":
        if p.data & c.wr: w = max(w, 2)
    return w

def finalize(ins, verbose=False):
    out, vm, lg, ver = [], [], [], {}
    seen = set()
    nops = 0
    def emit(c):
        nonlocal nops
        needw, dist = 0, 0
        dm = None
        for p in reversed(out):
            if p.kind == "mfma":
                if dm is not None: dist = max(dist, dm + 7)
                dm = dist
            if dist >= 13: break
            needw = max(needw, hazard(p, c) - dist)
            dist += p.states()
        if needw > 0:
            nops += needw
            if verbose: print(f"  nop {needw} before [{len(out)}] {c.text}")
            out.append(I(f"s_nop {needw-1}"))
        out.append(c)
    for c in ins:
        touched = c.rd | c.wr
        vi = li = -1
        if c.op == "@need":
            assert c.tok in seen, ("need before issue", c.tok)
            for k, e in enumerate(vm):
                if e.tok == c.tok: vi = k
        elif c.op == "@needlg":
            assert c.tok in seen, ("needlg before issue", c.tok)
            for k, e in enumerate(lg):
                if e.tok == c.tok: li = k
        elif c.op == "@lgkm0": li = len(lg) - 1
        elif c.op == "@vm0": vi = len(vm) - 1
        else:
            for k, e in enumerate(vm):
                if e.wr & touched: vi = k
            for k, e in enumerate(lg):
                if e.wr & touched: li = k
        if li >= 0 and any(e.kind == "smem" for e in lg): li = len(lg) - 1
        w = []
        if vi >= 0:
            n = min(63, len(vm) - 1 - vi); w.append(f"vmcnt({n})"); vm = vm[len(vm) - n:] if n else []
        if li >= 0:
            n = min(15, len(lg) - 1 - li); w.append(f"lgkmcnt({n})"); lg = lg[len(lg) - n:] if n else []
        if w:
            if out and out[-1].op == "s_waitcnt" and getattr(out[-1], "auto", False):
                prev = dict(re.findall(r"(\w+)\((\d+)\)", out[-1].text))
                prev.update(dict(re.findall(r"(\w+)\((\d+)\)", " ".join(w))))
                out.pop()
                w = [f"{k}({v})" for k, v in prev.items()]
            x = I("s_waitcnt " + " ".join(w)); x.auto = True
            out.append(x)
        if c.kind == "pseudo": continue
        if c.exp:
            for opnd, lab in c.exp:
                for r in regs_of(opnd):
                    assert ver.get(r) == lab, (c.text, opnd, lab, ver.get(r))
        emit(c)
        for r in c.wr: ver[r] = c.ver
        if c.tok is not None: seen.add(c.tok)
        if c.kind in ("dma", "vld", "vst"): vm.append(c)
        elif c.kind in ("dsr", "dsw"): lg.append(c)
        elif c.kind == "smem" and not c.op.startswith("s_mem"): lg.append(c)
    return out, nops

def icost(c, prev):
    k = c.kind
    if k == "label": return 0
    if k == "pseudo": return c.cost
    av = 4 if prev is not None and prev.kind == "valu" else 0
    if k == "valu":
        return (8 if c.trans or c.perm else 4) + (4 if prev is not None and prev.kind == "mfma" else 0)
    if k == "mfma": return 4
    if k == "dsr": return 8 + av
    if k == "dsw": return av + (24 if "b128" in c.op else 16 if "b64" in c.op else 12)
    if k in ("dma", "vld"): return 12 + av
    if k == "vst": return 28 if c.op.endswith("x4") else 20 if c.op.endswith("x2") else 16
    if c.op == "s_barrier" or c.op.startswith("s_cbranch"): return 8
    if c.op == "s_nop": return 4 * max(1, (c.states() + 0))
    return 4

def model(body):
    out, t, free, prev, t0 = [], 0, 0, None, 0
    for c in body:
        if c.op == "s_memtime": out.append(t - t0); t0 = t
        if c.kind == "mfma":
            t = max(t, free); free = t + 32
        t += icost(c, prev)
        if c.kind != "label": prev = c
    return out

def spine(mf, post, fillers, budget=24, start=0):
    out = list(post.get(-1, []))
    q = list(fillers)
    for k, m in enumerate(mf):
        out.append(m)
        used = 0
        for x in post.get(k, []):
            out.append(x); used += x.cost
        if m.exp: used += 2
        while q and (q[0].at is None or q[0].at <= k + start) and used + q[0].cost <= budget:
            used += q[0].cost
            out.append(q.pop(0))
    return out, q

class At:
    def __init__(self, ins, at=-1, dl=None, after=(), name=None, solo=False):
        self.ins = ins if isinstance(ins, list) else [ins]
        self.at, self.dl, self.after, self.name, self.solo = at, dl, tuple(after), name, solo

_uid = [0]
def sched(mf, queues, budget=32, co=2, minage=3, pre=()):
    qs = [list(q) for q in queues]
    def bud(k): return budget if isinstance(budget, int) else [b for g, b in budget if g <= k][-1]
    solo = {a.dl for q in qs for a in q if a.solo}
    out, done, lg = [], set(), [(x, -99) for x in pre]
    def cost(a, prev):
        t = 0
        for x in a.ins:
            t += icost(x, prev)
            if x.kind != "label": prev = x
        return t
    for k in range(-1, len(mf)):
        prev, used = None, 0
        if k >= 0: out.append(mf[k]); prev = mf[k]; used = 4
        wait = None
        if k + 1 < len(mf) and any(e.wr & mf[k + 1].rd for e, _ in lg): used += 4; wait = True
        def place(q):
            nonlocal prev, used
            a = q.pop(0); used += cost(a, prev)
            for x in a.ins:
                out.append(x)
                if x.kind != "label": prev = x
                if x.kind == "dsr": lg.append((x, k))
                if x.op == "@lgkm0": lg.clear()
            if a.name is not None: done.add(a.name)
        def ready(a): return a.at <= k and all(n in done for n in a.after)
        go = True
        while go:
            go = False
            for q in qs:
                while q and any(a.dl is not None and (a.dl <= k or (a.dl == k + 1 and k + 1 in solo and not a.solo and ready(a))) for a in q) and ready(q[0]):
                    place(q); go = True
        if k not in solo and k >= 0:
            go = True
            while go:
                go = False
                for q in qs:
                    if q and not q[0].solo and ready(q[0]) and used + cost(q[0], prev) <= bud(k):
                        place(q); go = True; break
        for q in qs: assert not any(a.dl is not None and a.dl <= k for a in q), ("deadline", k, q[0].ins[0].text, q[0].after)
        if k + 1 < len(mf):
            li = -1
            for i, (e_, g) in enumerate(lg):
                if e_.wr & mf[k + 1].rd: li = i
            if li >= 0:
                for m in mf[k + 2:k + 1 + co]:
                    for i, (e_, g) in enumerate(lg):
                        if e_.wr & m.rd and k - g >= minage - 1: li = max(li, i)
                e_ = lg[li][0]
                if e_.tok is None: _uid[0] += 1; e_.tok = ("u", _uid[0])
                out.append(needlg(e_.tok)); del lg[:li + 1]
    return out, [a for q in qs for a in q]
```

```python
import sys, collections, re
from asmlib import *

NAME = "gated_mix__ssm_conv_s5__dense_activation_mish__prompt"
LOG2E = 1.4426950408889634
EPC = 0x9E3779B9
XSZ, MSZ, WSZ, OSZ = 2048 * 896, 448 * 896, 448 * 3584, 2048 * 1792
WS_E, WS_P, WS_DBG = 4096, 1 << 20, 18 << 20
SL = 16384
XB = 6 * SL; HB = 6 * SL; AB = 7 * SL
GP = 152 * 1024; GT = 153 * 1024; PR = 154 * 1024
sW, sKB, sR, sJ, sROT, sTAG, sWQ = 3, 4, 11, 12, 13, 14, 15
pX, pLRE, pLIM, pBRE, pBIM, pCRE, pCIM, pDT, pDS, pW1, pB1, pW2, pGW, pOUT, pWS = 16, 18, 20, 22, 24, 26, 28, 30, 32, 36, 38, 40, 42, 44, 48
sT0, sT1 = 50, 51
dX, dBR, dBI, dW1, dC, dW2, dE, dPO, dO = 52, 56, 60, 64, 68, 72, 76, 84, 88
sA, sB, sTG1, sXT = 80, 81, 82, 83
vPo = 42
sU, sCNT, sSO, sT3 = 92, 99, 100, 101
sOO = 34
sST = 16
vL, vN, vH = 1, 2, 3
vdX, vdB, vdW1, vdC, vdW2 = 4, 6, 10, 14, 18
vX, vB, vG, vW1, vP, vP2, vXD = 22, 26, 34, 35, 39, 40, 41
cL, cL16, cL32, cL64, cL512, cL1K, cS = 43, 45, 47, 49, 51, 53, 55
vT = 57
accD, dia, xD, Gx, gwf, raw = 64, 80, 88, 96, 104, 108
Bfr, rawb, accS, Wfr, accF = 112, 128, 144, 176, 192
scr = 208
aG, aH = 224, 224
omg = 4
vE0, vE1 = 8, 9
vC = [22 + i for i in range(8)] + [30, 31, 32, 33, 34, 39, 40, 41]
Eg, gR = 112, 80
F2, RING = 64, 10
vW2 = 168
vHr, vAw, vAr, vLin, vOut = 171, 172, 173, 174, 175
stg, acc2, Sel = 176, 192, 248
vTag, vL4, vMo = 186, 187, 190
inb = [80 + 10 * i for i in range(6)]

DEF = dict(z=0, d=4, la=12, egat=118, echk=150, pld=(66, 90, 114, 130, 150, 168), sel=(92, 116, 140, 156, 168, 168),
           hel=4, sto=(5, 7, 9), nout=2, sfl="", d2=4, bd=5, co=2, ost="", prof=0, dump=None,
           pfo="ABC.f", bud=24)

def gen(**kw):
    P = dict(DEF); P.update(kw)
    z, d, LA = P["z"], P["d"], P["la"]
    NO = P["nout"]
    PCK = (3 - NO) * 2048
    PFL = PCK + 768
    PIN = PFL + 128
    M = []
    def e(t, **k):
        for x in t.split("\n"):
            if x.strip(): M.append(I(x, **k))
    def L(t, **k): return [I(x, **k) for x in t.split("\n") if x.strip()]
    nst = [0]
    def stamp(custom=False):
        if not P["prof"]: return []
        if (P.get("st1") or P.get("st2")) and not custom: return []
        nst[0] += 1
        return [I(f"{'s_memrealtime' if P.get('amp') else 's_memtime'} {S(sST + 2 * (nst[0] - 1), 2)}")]
    def dump(tag):
        if not P["dump"] or P["dump"][0] != tag: return []
        o = [vm0(), lgkm0(), I("s_nop 7"), I("s_nop 7")]
        o += L(f"""s_mul_i32 s{sT0}, s{sR}, 7
s_add_u32 s{sT0}, s{sT0}, s{sJ}
s_lshl_b32 s{sT0}, s{sT0}, 2
s_add_u32 s{sT0}, s{sT0}, s{sW}
s_lshl_b32 s{sT0}, s{sT0}, 15
s_add_u32 s{sT0}, s{sT0}, {WS_DBG}
v_lshlrev_b32 v0, 2, v{vL}
v_add_u32 v0, s{sT0}, v0""")
        for i, r in enumerate(P["dump"][1]):
            o += L(f"global_store_dword v0, {r}, {S(pWS, 2)}\nv_add_u32 v0, 256, v0")
        o += L("s_endpgm")
        return o

    if P["prof"]: e("s_memrealtime s[98:99]\ns_memtime s[96:97]")
    e(f"""s_cmp_ge_u32 s2, 256
s_cbranch_scc1 L_exit
s_load_dwordx16 s[16:31], s[0:1], 0
s_load_dwordx16 s[32:47], s[0:1], 64
s_load_dwordx2 s[48:49], s[0:1], 128
s_cmp_lt_u32 s2, 32
s_cbranch_scc1 L_pf
v_lshrrev_b32 v{vT}, 6, v0
v_and_b32 v{vL}, 63, v0
v_readfirstlane_b32 s{sW}, v{vT}
s_and_b32 s{sT0}, s2, 7
s_lshr_b32 s{sT1}, s2, 3
s_and_b32 s{sR}, s{sT0}, {(1 << z) - 1}
s_mul_i32 s{sR}, s{sR}, 28
s_add_u32 s{sT1}, s{sT1}, s{sR}
s_sub_u32 s{sT1}, s{sT1}, 4
s_lshr_b32 s{sJ}, s{sT1}, {2 + z}
s_and_b32 s{sT1}, s{sT1}, {(4 << z) - 1}
s_lshr_b32 s{sT0}, s{sT0}, {z}
s_lshl_b32 s{sT0}, s{sT0}, {2 + z}
s_add_u32 s{sR}, s{sT0}, s{sT1}
s_add_u32 s{sROT}, s{sR}, s{sJ}
s_mul_i32 s{sT0}, s{sROT}, 37
s_lshr_b32 s{sT0}, s{sT0}, 8
s_mul_i32 s{sT0}, s{sT0}, 7
s_sub_u32 s{sROT}, s{sROT}, s{sT0}
s_lshl_b32 s{sKB}, s{sROT}, 7
s_lshl_b32 s{sWQ}, s{sW}, 12""")
    for s in range(1, 7):
        e(f"""s_add_u32 s{sKB+s}, s{sKB+s-1}, 128
s_cmp_ge_u32 s{sKB+s}, 896
s_cselect_b32 s{sKB+s}, 0, s{sKB+s}""")
    e(f"""s_lshl_b32 s{sT0}, s{sR}, 3
s_add_u32 s{sT0}, s{sT0}, s{sW}
s_mul_i32 s{dX}, s{sT0}, 7168
s_sub_u32 s{dX+2}, {XSZ}, s{dX}
s_lshl_b32 s{sT1}, s{sJ}, 2
s_add_u32 s{sT1}, s{sT1}, s{sW}
s_mul_i32 s{dBR}, s{sT1}, 14336
s_sub_u32 s{dBR+2}, {MSZ}, s{dBR}
s_add_u32 s{dBI+2}, s{dBR+2}, 1024""")
    for dd in (dX, dBR, dBI, dW1, dC, dW2, dE, dPO, dO):
        e(f"s_mov_b32 s{dd+3}, 0x20000")
    t0, t1, t2, t3, t4 = vT, vT + 1, vT + 2, vT + 3, vT + 4
    e(f"""v_and_b32 v{vN}, 31, v{vL}
v_lshrrev_b32 v{vH}, 5, v{vL}
v_lshrrev_b32 v{t0}, 3, v{vL}
v_lshrrev_b32 v{t1}, 4, v{vL}
v_and_b32 v{t3}, 1, v{t1}
v_lshlrev_b32 v{t3}, 2, v{t3}
v_xor_b32 v{t3}, v{t3}, v{vL}
v_and_b32 v{t3}, 7, v{t3}
v_lshlrev_b32 v{t3}, 4, v{t3}
v_xor_b32 v{t1}, v{t1}, v{vL}
v_and_b32 v{t1}, 7, v{t1}
v_lshlrev_b32 v{t1}, 4, v{t1}
v_xor_b32 v{t2}, 64, v{t1}
v_and_b32 v{t4}, 3, v{t0}
v_lshl_add_u32 v{t4}, v{vH}, 5, v{t4}
v_mul_u32_u24 v{t4}, 896, v{t4}
v_add_u32 v{vdX}, v{t4}, v{t1}
v_add_u32 v{vdX+1}, v{t4}, v{t2}
v_add_u32 v{vdX+1}, {3584-1024}, v{vdX+1}
v_mul_u32_u24 v{t4}, 896, v{t0}
v_add_u32 v{vdB}, v{t4}, v{t1}
v_add_u32 v{vdB+1}, v{t4}, v{t2}
v_add_u32 v{vdB+2}, {7168-2048}, v{vdB}
v_add_u32 v{vdB+3}, {7168-2048}, v{vdB+1}
v_add_u32 v{vdW2}, v{t4}, v{t3}
v_mul_u32_u24 v{t4}, 3584, v{t0}
v_add_u32 v{vdW1}, v{t4}, v{t3}""")
    e(f"""v_add_u32 v{t0}, s{sROT}, v{t0}
v_subrev_u32 v{t1}, 7, v{t0}
v_min_u32 v{t0}, v{t0}, v{t1}
v_and_b32 v{t1}, 7, v{vL}
v_lshlrev_b32 v{t4}, 2, v{t1}
v_lshl_add_u32 v{t0}, v{t0}, 7, v{t4}
s_lshl_b32 s{sT0}, s{sW}, 5
v_add_u32 v{t0}, s{sT0}, v{t0}
v_lshrrev_b32 v{t2}, 4, v{vN}
v_lshl_add_u32 v{t2}, v{t2}, 3, v{t1}
s_lshl_b32 s{sT0}, s{sT1}, 4
v_add_lshl_u32 v{t2}, v{t2}, s{sT0}, 1
s_lshl_b32 s{sT0}, s{sT1}, 5
v_add_lshl_u32 v{t1}, v{vN}, s{sT0}, 2
s_and_b32 s{sT3}, s{sW}, 1
s_lshl_b32 s{sT0}, s{sJ}, 1
s_add_u32 s{sT0}, s{sT0}, s{sT3}
s_lshl_b32 s{sT0}, s{sT0}, 5
v_add_lshl_u32 v{t3}, v{vN}, s{sT0}, 1
s_lshr_b32 s{sSO}, s{sWQ}, 1""")
    M.append(lgkm0())
    if P["prof"]: e("s_mov_b32 s46, s98\ns_mov_b32 s47, s96")
    e(f"""s_add_u32 s{dX}, s{dX}, s{pX}
s_addc_u32 s{dX+1}, s{pX+1}, 0
s_load_dword s{sTAG}, {S(pWS, 2)}, 0""")

    D = []
    def dgrp(tok, pre, lines):
        for i, t in enumerate(lines):
            D.append([(L(pre) if i == 0 else []) + [I(t, tok=tok if i == len(lines) - 1 else None)], tok])
    def slot(g):
        if g < 27: return g % 6
        if g < 30: return g - 21
        return slot(g - 9)
    for s in range(7):
        dgrp(("x", s), f"s_add_u32 m0, s{sSO}, {XB + s * 8192}",
             [f"buffer_load_dwordx4 v{vdX+i}, {S(dX,4)}, s{sKB+s} offen offset:{1024*i} lds" for i in range(2)])
        dgrp(("g", s), f"s_add_u32 m0, s{sWQ}, {slot(s) * SL}",
             [f"buffer_load_dwordx4 v{vdB+i}, {S(dBI if i & 1 else dBR,4)}, s{sKB+s} offen offset:{1024*i} lds" for i in range(4)])
    for y in range(14):
        so = f"s_mul_i32 s{sSO}, s{sKB+y//2}, 1792" if y % 2 == 0 else f"s_add_u32 s{sSO}, s{sSO}, 114688"
        dgrp(("g", 7 + y), f"s_add_u32 m0, s{sWQ}, {slot(7 + y) * SL}\n{so}",
             [f"buffer_load_dwordx4 v{vdW1+i}, {S(dW1,4)}, s{sSO} offen offset:{1024*i} lds" for i in range(4)])
    for q in range(21):
        u, k = q // 3, q % 3
        so = (f"s_mul_i32 s{sSO}, s{sU+u}, 448", f"s_mov_b32 s{sSO}, s{sU+u}", f"s_add_u32 s{sSO}, s{sSO}, 114688")[k]
        vd, dd = (vdC, dC) if k == 0 else (vdW2, dW2)
        dgrp(("g", 21 + q), f"s_add_u32 m0, s{sWQ}, {slot(21 + q) * SL}\n{so}",
             [f"buffer_load_dwordx4 v{vd+i}, {S(dd,4)}, s{sSO} offen offset:{1024*i} lds" for i in range(4)])
    NS01 = 42 + 56

    def put(n):
        for x in D[n][0]: M.append(x)
    put(0); put(1)
    e(f"""s_add_u32 s{dBI}, s{dBR}, s{pBIM}
s_addc_u32 s{dBI+1}, s{pBIM+1}, 0
s_add_u32 s{dBR}, s{dBR}, s{pBRE}
s_addc_u32 s{dBR+1}, s{pBRE+1}, 0
s_sub_u32 s{dBI}, s{dBI}, 1024
s_subb_u32 s{dBI+1}, s{dBI+1}, 0""")
    for n in range(2, 6): put(n)
    e(f"""s_lshr_b32 s{sT0}, s{sWQ}, 3
s_add_u32 m0, s{sT0}, {PR}
global_load_ushort v{raw}, v{t2}, {S(pLRE,2)}
global_load_lds_dword v{t0}, {S(pGW,2)}
s_add_u32 m0, s{sT0}, {PR + 256}
global_load_ushort v{raw+1}, v{t2}, {S(pLIM,2)}""")
    e(f"global_load_lds_dword v{t1}, {S(pB1,2)}", tok="par")
    e(f"""global_load_ushort v{raw+2}, v{t2}, {S(pDT,2)}
global_load_ushort v{raw+3}, v{t3}, {S(pDS,2)}""")
    for n in range(6, LA): put(n)

    e(f"""s_lshl_b32 s{dW1}, s{sT1}, 7
s_sub_u32 s{dW1+2}, {WSZ}, s{dW1}
s_add_u32 s{dW1}, s{dW1}, s{pW1}
s_addc_u32 s{dW1+1}, s{pW1+1}, 0
s_mul_i32 s{dC}, s{sT3}, 28672
s_lshl_b32 s{dC+1}, s{sJ}, 7
s_add_u32 s{dC}, s{dC}, s{dC+1}
s_sub_u32 s{dC+2}, {MSZ}, s{dC}
s_cmp_ge_u32 s{sW}, 2
s_cselect_b32 s{pCRE}, s{pCIM}, s{pCRE}
s_cselect_b32 s{pCRE+1}, s{pCIM+1}, s{pCRE+1}
s_add_u32 s{dC}, s{dC}, s{pCRE}
s_addc_u32 s{dC+1}, s{pCRE+1}, 0
s_lshl_b32 s{dW2}, s{sJ}, 3
s_add_u32 s{dW2}, s{dW2}, s{sW}
s_mul_i32 s{dW2}, s{dW2}, 28672
s_sub_u32 s{dW2+2}, {WSZ}, s{dW2}
s_add_u32 s{dW2}, s{dW2}, s{pW2}
s_addc_u32 s{dW2+1}, s{pW2+1}, 0
s_lshl_b32 s{dE}, s{sT1}, 13
s_add_u32 s{dE}, s{dE}, {WS_E}
s_add_u32 s{dE}, s{dE}, s{pWS}
s_addc_u32 s{dE+1}, s{pWS+1}, 0
s_mov_b32 s{dE+2}, 8192
s_mul_i32 s{dPO}, s{sR}, 28
s_add_u32 s{dPO}, s{dPO}, s{sW}
s_mul_i32 s{dPO}, s{dPO}, {PIN}
s_add_u32 s{dPO}, s{dPO}, {WS_P}
s_add_u32 s{dPO}, s{dPO}, s{pWS}
s_addc_u32 s{dPO+1}, s{pWS+1}, 0
s_mov_b32 s{dPO+2}, {25*PIN}
s_lshr_b32 s{sCNT}, s{sW}, 1
s_lshl_b32 s{dO}, s{sR}, 2
s_add_u32 s{dO}, s{dO}, s{sCNT}
s_mul_i32 s{dO}, s{dO}, {16*1792}
s_lshl_b32 s{dO+1}, s{sT3}, 7
s_add_u32 s{dO}, s{dO}, s{dO+1}
s_sub_u32 s{dO+2}, {OSZ}, s{dO}
s_add_u32 s{dO}, s{dO}, s{pOUT}
s_addc_u32 s{dO+1}, s{pOUT+1}, 0
s_mul_i32 s{sT1}, s{sR}, 43
s_lshr_b32 s{sT1}, s{sT1}, 8
s_mul_i32 s{sT1}, s{sT1}, 6
s_sub_u32 s{sT1}, s{sR}, s{sT1}""")
    for s in range(6):
        e(f"""s_add_u32 s{sU+s}, s{sT1}, s{sJ}
s_add_u32 s{sU+s}, s{sU+s}, 1
s_cmp_ge_u32 s{sU+s}, 7
s_cselect_b32 s{sU+6}, 7, 0
s_sub_u32 s{sU+s}, s{sU+s}, s{sU+6}
s_lshl_b32 s{sU+s}, s{sU+s}, 7""")
        if s < 5:
            e(f"""s_add_u32 s{sT1}, s{sT1}, 1
s_cmp_ge_u32 s{sT1}, 6
s_cselect_b32 s{sT1}, 0, s{sT1}""")
    e(f"s_lshl_b32 s{sU+6}, s{sJ}, 7")
    for i in range(1, 4):
        e(f"v_add_u32 v{vdW1+i}, {i*(28672-1024)}, v{vdW1}\nv_add_u32 v{vdW2+i}, {i*6144}, v{vdW2}")
    e(f"""v_mov_b32 v{vdC}, v{vdB}
v_add_u32 v{vdC+1}, 6144, v{vdB+1}
v_add_u32 v{vdC+2}, {2*6144}, v{vdB}
v_add_u32 v{vdC+3}, {3*6144}, v{vdB+1}
v_lshrrev_b32 v{t0}, 1, v{vN}
v_xor_b32 v{t0}, v{t0}, v{vH}
v_and_b32 v{t0}, 7, v{t0}
v_lshlrev_b32 v{t0}, 4, v{t0}
v_lshl_add_u32 v{t0}, v{vN}, 7, v{t0}""")
    for k in range(4):
        e(f"""v_xor_b32 v{t1}, {32*k}, v{t0}
v_add_u32 v{vX+k}, {XB}, v{t1}
v_add_u32 v{vB+k}, s{sWQ}, v{t1}
v_add_u32 v{vB+4+k}, 0x10000, v{vB+k}""")
    e(f"""s_lshl_b32 s{sT1}, s{sW}, 5
v_xor_b32 v{vG}, s{sT1}, v{vX}
s_add_u32 s{sT0}, s{sT0}, {PR}
v_lshl_add_u32 v{vP}, v{vH}, 4, s{sT0}
v_lshl_add_u32 v{vP2}, v{vH}, 5, s{sT0}
s_sub_u32 s{sT0}, s{sJ}, s{sROT}
s_cselect_b32 s{sT1}, 7, 0
s_add_u32 s{sT0}, s{sT0}, s{sT1}
s_lshl_b32 s{sT0}, s{sT0}, 1
s_add_u32 s{sT0}, s{sT0}, s{sCNT}
s_lshl_b32 s{sT0}, s{sT0}, 12
s_lshl_b32 s{sT1}, s{sT3}, 6
v_xor_b32 v{vXD}, s{sT1}, v{vX}
v_add_u32 v{vXD}, s{sT0}, v{vXD}
v_xor_b32 v{vXD+1}, 32, v{vXD}
v_bfe_u32 v{t0}, v{vL}, 2, 2
v_lshl_add_u32 v{t0}, v{vH}, 3, v{t0}
v_lshlrev_b32 v{t0}, 7, v{t0}
v_bfe_u32 v{t1}, v{vL}, 3, 1
v_lshl_add_u32 v{t0}, v{t1}, 6, v{t0}
v_and_b32 v{t1}, 1, v{vL}
v_lshl_add_u32 v{t0}, v{t1}, 5, v{t0}
v_and_b32 v{t1}, 16, v{vL}
v_add_u32 v{t0}, v{t0}, v{t1}
v_and_b32 v{t1}, 2, v{vL}
v_lshl_add_u32 v{t0}, v{t1}, 2, v{t0}
v_add_u32 v{vW1}, s{sWQ}, v{t0}
v_xor_b32 v{vW1+1}, 64, v{vW1}
v_add_u32 v{vW1+2}, 0x10000, v{vW1}
v_add_u32 v{vW1+3}, 0x10000, v{vW1+1}
s_mov_b32 s{sCNT}, 0""")
    if P["prof"]: e("s_mov_b32 s44, 0\ns_mov_b32 s45, 0")
    M.append(lgkm0())
    e(f"s_add_u32 s{sTAG}, s{sTAG}, {EPC}")
    M += stamp()

    mf, post = [], collections.defaultdict(list)
    def rd(k, ins): post[max(-1, k)].extend(ins if isinstance(ins, list) else [ins])
    def mfma(dst, a, b, c, exp=None):
        mf.append(I(f"v_mfma_f32_32x32x16_bf16 {dst}, {a}, {b}, {c}", exp=exp)); return len(mf) - 1
    def xa(s, ks, rt): return A(((s * 4 + ks) * 2 + rt) * 4, 4)
    tneed, tlast = {}, {}
    nb = 0
    for s in range(7):
        k0 = len(mf)
        tneed[("x", s)] = tneed[("g", s)] = k0 - d
        rd(k0 - d, [need(("g", s)), I("s_barrier")])
        wn, of = (0, slot(s) * SL) if slot(s) < 4 else (4, slot(s) * SL - 65536)
        for ks in range(4):
            b = V(Bfr + 4 * (nb % 4), 4); nb += 1
            k = len(mf)
            rd(k - d, I(f"ds_read_b128 {b}, v{vB+wn+ks} offset:{of}", ver=("B", s, ks)))
            for rt in range(2):
                rd(k + rt - d, I(f"ds_read_b128 {xa(s,ks,rt)}, v{vX+ks} offset:{s*8192+rt*4096}", ver=("x", s, ks, rt)))
                acc = V(accS + 16 * rt, 16)
                mfma(acc, xa(s, ks, rt), b, acc if s or ks else "0", [(b, ("B", s, ks)), (xa(s, ks, rt), ("x", s, ks, rt))])
        tlast[s] = len(mf) - 1
        k = len(mf)
        if s == 0: rd(k - d, need("par"))
        rd(k - d, I(f"ds_read_b128 {V(gwf,4)}, v{vP} offset:{32*s}", ver=("gw", s)))
        for rt in range(2):
            g = V(Gx + 4 * rt, 4)
            rd(k + rt - d, I(f"ds_read_b128 {g}, v{vG} offset:{s*8192+rt*4096}", ver=("gx", s, rt)))
            acc = A(aG + 16 * rt, 16)
            mfma(acc, V(gwf, 4), g, acc if s else "0", [(V(gwf, 4), ("gw", s)), (g, ("gx", s, rt))])
    for kk in range(2):
        k = len(mf)
        rd(k - d, I(f"ds_read_b128 {V(xD+4*kk,4)}, v{vXD+kk}", ver=("xd", kk), tok=("xd", kk)))
        mfma(V(accD, 16), V(xD + 4 * kk, 4), V(dia + 4 * kk, 4), V(accD, 16) if kk else "0",
             [(V(xD + 4 * kk, 4), ("xd", kk)), (V(dia + 4 * kk, 4), "dia")])
    S1 = len(mf)
    nw = 0
    for y in range(14):
        g = 7 + y
        tneed[("g", g)] = len(mf) - d - 1
        rd(len(mf) - d - 1, need(("g", g)))
        wn, of = (0, slot(g) * SL) if slot(g) < 4 else (2, slot(g) * SL - 65536)
        for k2 in range(2):
            s, ks = y // 2, 2 * (y % 2) + k2
            for ft in range(2):
                wr = Wfr + 4 * (nw % 4); nw += 1
                k = len(mf)
                for ee in range(2):
                    rd(k - d - 1 + ee, I(f"ds_read_b64_tr_b16 {V(wr+2*ee,2)}, v{vW1+wn+ft} offset:{of+(16*k2+4*ee)*128}", ver=("W", y, k2, ft)))
                for rt in (1, 0):
                    acc = V(accF + 32 * ft + 16 * rt, 16)
                    c = acc if (y or k2) else V(accF + 32 * ft, 16)
                    ex = [(V(wr, 4), ("W", y, k2, ft)), (xa(s, ks, rt), ("x", s, ks, rt))]
                    if not (y or k2): ex.append((c, "bias"))
                    mfma(acc, V(wr, 4), xa(s, ks, rt), c, ex)
        tlast[g] = len(mf) - 1
    NM1 = len(mf)
    ts, prev, n = [], -d - 10, 0
    for s in range(7):
        t = tneed[("g", s)]
        ts += [prev + (t - prev) * (i + 1) / 6 for i in range(6)]; prev = t
    for g in range(7, 21):
        t = tneed[("g", g)]
        ts += [prev + (t - prev) * (i + 1) / 4 for i in range(4)]; prev = t
    nd = LA
    last = -1
    while nd - LA < len(ts):
        p = max(int(ts[nd - LA]) + 1, last, 0)
        tok = D[nd][1]
        if tok[0] == "g" and tok[1] >= 6: p = max(p, tlast[tok[1] - 6])
        if p >= NM1: break
        post[p].extend(D[nd][0]); last = p; nd += 1

    F = []
    def f(t, **k): F.extend(L(t, **k))
    z0, z1, z2, z3, z4, z5, z6 = range(scr, scr + 7)
    f(f"""s_getreg_b32 s{sXT}, hwreg(HW_REG_XCC_ID, 0, 4)
s_lshl2_add_u32 s{sA}, s{sJ}, {PFL}
s_add_u32 s{sXT}, s{sXT}, s{sTAG}
v_mov_b32 v{z0}, s{sXT}
buffer_store_dword v{z0}, off, {S(dPO,4)}, s{sA} sc1""", at=P["hel"])
    f(f"""v_lshlrev_b32 v{raw+2}, 16, v{raw+2}
v_mul_f32 v{raw+2}, {fb(LOG2E)}, v{raw+2}
v_exp_f32 v{raw+2}, v{raw+2}
v_lshlrev_b32 v{raw}, 16, v{raw}
v_lshlrev_b32 v{raw+1}, 16, v{raw+1}
v_cvt_pk_bf16_f32 v{raw+2}, v{raw+2}, v{raw+2}
v_lshlrev_b32 v{z0}, 28, v{vL}
v_and_b32 v{z0}, 0x80000000, v{z0}
v_lshlrev_b32 v{raw+2}, 16, v{raw+2}
v_xor_b32 v{raw+1}, v{z0}, v{raw+1}
v_xor_b32 v{raw+1}, 0x80000000, v{raw+1}
v_xor_b32 v{z0}, 2.0, v{z0}
v_mul_f32 v{z1}, v{raw+2}, v{raw}
v_mul_f32 v{z2}, v{raw+2}, v{raw+1}
v_mul_f32 v{z1}, {fb(LOG2E)}, v{z1}
v_mul_f32 v{z2}, 0.15915494, v{z2}
v_exp_f32 v{z1}, v{z1}
v_rndne_f32 v{z3}, v{z2}
v_sub_f32 v{z2}, v{z2}, v{z3}
v_cos_f32 v{z3}, v{z2}
v_sin_f32 v{z4}, v{z2}
v_mul_f32 v{z5}, v{raw}, v{raw}
v_fmac_f32 v{z5}, v{raw+1}, v{raw+1}
v_rcp_f32 v{z5}, v{z5}
v_mul_f32 v{cL}, v{z3}, v{z1}
v_mul_f32 v{cL+1}, v{z4}, v{z1}
v_mul_f32 v{z5}, v{z5}, v{z0}
v_add_f32 v{z1}, -1.0, v{cL}
v_mul_f32 v{z2}, v{z1}, v{raw}
v_fmac_f32 v{z2}, v{cL+1}, v{raw+1}
v_mul_f32 v{cS}, v{z2}, v{z5}
v_mul_f32 v{z2}, v{cL+1}, v{raw}
v_fma_f32 v{z2}, -v{z1}, v{raw+1}, v{z2}
v_mul_f32 v{cS+1}, v{z2}, v{z5}""", at=8)
    def sq(dst, src):
        f(f"""v_mul_f32 v{z6}, v{src+1}, v{src+1}
v_add_f32 v{z5}, v{src}, v{src}
v_fma_f32 v{dst}, v{src}, v{src}, -v{z6}
v_mul_f32 v{dst+1}, v{z5}, v{src+1}""")
    sq(z0, cL); sq(z0, z0); sq(z0, z0); sq(cL16, z0); sq(cL32, cL16); sq(cL64, cL32)
    sq(z0, cL64); sq(z0, z0); sq(cL512, z0); sq(cL1K, cL512)
    f(f"""v_and_b32 v{z0}, 1, v{vL}
v_lshlrev_b32 v{z0}, 4, v{z0}
v_lshlrev_b32 v{z0}, v{z0}, v{raw+3}
v_bfe_u32 v{z1}, v{vL}, 1, 2
v_bfe_u32 v{z2}, v{vL}, 4, 1
v_lshl_add_u32 v{z1}, v{z2}, 2, v{z1}
v_bfe_u32 v{z2}, v{vL}, 3, 1
v_xor_b32 v{z2}, v{z2}, v{vH}
v_lshl_add_u32 v{z1}, v{z2}, 3, v{z1}""")
    for i in range(4):
        f(f"ds_read_b128 {V(rawb+4*i,4)}, v{vP2} offset:{256+64*(i>>1)+16*(i&1)}")
    for i in range(8):
        f(f"v_cmp_eq_u32 vcc, {i}, v{z1}")
        f(f"v_lshlrev_b32 v{accF+32*(i>>2)+4*(i&3)}, 16, v{rawb+2*i}", ver="bias")
        f(f"v_and_b32 v{accF+32*(i>>2)+4*(i&3)+1}, 0xffff0000, v{rawb+2*i}", ver="bias")
        f(f"v_cndmask_b32 v{dia+i}, 0, v{z0}", ver="dia")
        f(f"v_lshlrev_b32 v{accF+32*(i>>2)+4*(i&3)+2}, 16, v{rawb+2*i+1}", ver="bias")
        f(f"v_and_b32 v{accF+32*(i>>2)+4*(i&3)+3}, 0xffff0000, v{rawb+2*i+1}", ver="bias")
    NFA = len(F)

    DPP = "row_ror:8 row_mask:0xf bank_mask:0xf"
    def cm1(dst, m, zz, add): return f"v_fma_f32 v{dst}, v{m}, v{zz}, {add}"
    def cm2(dst, m, zz, neg=""): return f"v_fmac_f32_dpp v{dst}, v{zz}, {neg}v{m+1} {DPP}"
    ea, eb = [vT, vT + 1], [vT + 2, vT + 3]
    pa, pb = accS, accS + 16
    for q in range(1, 16):
        da, db = ea[q & 1], eb[q & 1]
        f("\n".join([cm1(da, cL, pa, f"v{accS+q}"), cm1(db, cL, pb, f"v{accS+16+q}"), cm2(da, cL, pa), cm2(db, cL, pb)]),
          at=S1 - 1)
        pa, pb = da, db
    e0, e32, elo, ehi = pa, vT, vT + 4, vT + 5
    f(f"""v_lshlrev_b32 v{vT+6}, 4, v{vN}
s_lshl_b32 s{sT0}, s{sW}, 2
{cm1(elo, cL16, e0, f'v{pb}')}
{cm2(elo, cL16, e0)}
s_add_u32 s{sT0}, s{sT0}, {GP}
v_mov_b32 v{ehi}, v{elo}
v_add_u32 v{vT+2}, s{sT0}, v{vT+6}
s_sub_u32 s{sT1}, 31, s{sR}
v_permlane32_swap_b32 v{elo}, v{ehi}
s_lshl_b32 s{sT1}, s{sT1}, 8
v_mov_b32 v{vE1}, s{sTAG}
{cm1(vE0, cL32, elo, f'v{ehi}')}
{cm2(vE0, cL32, elo)}
v_lshl_add_u32 v{vT}, v{vN}, 3, s{sT1}
buffer_store_dwordx2 {V(vE0,2)}, v{vT}, {S(dE,4)}, 0 offen sc1
ds_write_b32 v{vT+2}, a{aG}
ds_write_b32 v{vT+2}, a{aG+16} offset:512""")
    F[-1].tok = "gpw"
    vEg = vT
    f(f"""v_lshl_add_u32 v{vEg}, v{vH}, 12, v{vT}
v_add_u32 v{vEg}, 256, v{vEg}
v_add_u32 v{vT+6}, {GP}, v{vT+6}""")
    F.append(needlg("gpw")); f("s_barrier")
    g0 = rawb
    f(f"""ds_read_b128 {V(g0,4)}, v{vT+6}
ds_read_b128 {V(g0+4,4)}, v{vT+6} offset:512""")
    def scale(lo, hi):
        for q in range(lo, hi):
            t = vT + 2 + (q & 1)
            f(f"v_mul_f32_dpp v{t}, v{accS+q}, v{cS+1} {DPP}\nv_fma_f32 v{accS+q}, v{accS+q}, v{cS}, v{t}")
    scale(0, 8)
    f(f"""v_add_f32 v{g0}, v{g0}, v{g0+1}
v_add_f32 v{g0+4}, v{g0+4}, v{g0+5}
v_add_f32 v{g0+2}, v{g0+2}, v{g0+3}
v_add_f32 v{g0+6}, v{g0+6}, v{g0+7}
v_add_f32 v{g0}, v{g0}, v{g0+2}
v_add_f32 v{g0+4}, v{g0+4}, v{g0+6}
v_mul_f32 v{g0}, {fb(-LOG2E)}, v{g0}
v_mul_f32 v{g0+4}, {fb(-LOG2E)}, v{g0+4}
v_exp_f32 v{g0}, v{g0}
v_exp_f32 v{g0+4}, v{g0+4}
v_bfe_u32 v{g0+1}, v{vN}, 2, 1
v_add_f32 v{g0}, 1.0, v{g0}
v_add_f32 v{g0+4}, 1.0, v{g0+4}
v_rcp_f32 v{g0}, v{g0}
v_rcp_f32 v{g0+4}, v{g0+4}
v_lshrrev_b32 v{g0+2}, 3, v{vN}
v_lshl_add_u32 v{g0+1}, v{g0+1}, 3, v{g0+2}
v_and_b32 v{g0+2}, 3, v{vN}
v_lshl_add_u32 v{g0+1}, v{g0+1}, 2, v{g0+2}
v_lshlrev_b32 v{g0+1}, 2, v{g0+1}
v_add_u32 v{g0+1}, {GT}, v{g0+1}
v_sub_f32 v{omg}, 1.0, v{g0}
v_sub_f32 v{omg+2}, 1.0, v{g0+4}
ds_write_b32 v{g0+1}, v{g0}
ds_write_b32 v{g0+1}, v{g0+4} offset:64
v_lshlrev_b32 v{g0+2}, 7, v{vH}
v_add_u32 v{g0+2}, {GT}, v{g0+2}
s_lshr_b32 s{sT0}, s{sW}, 1
s_lshl_b32 s{sT1}, s{sT0}, 6
v_add_u32 v{g0+3}, s{sT1}, v{g0+2}
v_mov_b32 v{omg+1}, v{omg}
v_mov_b32 v{omg+3}, v{omg+2}""")
    for i in range(4): f(f"ds_read_b128 {V(Eg+4*i,4)}, v{g0+3} offset:{16*i}")
    scale(8, 12)
    for i in range(8): f(f"ds_read_b128 {V(gR+4*i,4)}, v{g0+2} offset:{16*i}")
    for q in range(16): f(f"v_mul_f32 v{accD+q}, v{accD+q}, v{Eg+q}")
    gl = [f"buffer_load_dwordx2 {V(Eg+2*i,2)}, v{vEg}, {S(dE,4)}, 0 offen offset:{256*i} sc1" for i in range(16)]
    hld = f"""v_min_u32 v{vPo}, 6, v{vL}
v_lshlrev_b32 v{vPo}, 2, v{vPo}
buffer_load_dword v{vPo}, v{vPo}, {S(dPO,4)}, 0 offen offset:{PFL} sc1"""
    f(hld, at=P["egat"])
    for i in range(16):
        f(gl[i], at=P["egat"])
        scale(12 + i, 13 + i)
    scale(28, 32)
    vCnt = vE1
    f(f"""v_lshlrev_b32 v{vT+2}, 4, v{vH}
v_sub_u32 v{vT+2}, s{sR}, v{vT+2}
v_med3_i32 v{vT+2}, v{vT+2}, 0, 16
v_mul_lo_u32 v{vCnt}, v{vT+2}, s{sTAG}
v_cmp_eq_u32 vcc, 1, v{vH}
v_lshrrev_b32 v{vT+2}, 1, v{vN}
v_and_b32 v{vT+2}, 7, v{vT+2}
v_cndmask_b32 v{cL32}, 1.0, v{cL32}
v_cndmask_b32 v{cL32+1}, 0, v{cL32+1}
v_cndmask_b32 v{elo}, 0, v{elo}
v_lshlrev_b32 v{vT+2}, 4, v{vT+2}
v_lshl_add_u32 v{vT+2}, v{vN}, 7, v{vT+2}
v_lshl_add_u32 v{vT+2}, v{vH}, 13, v{vT+2}
s_lshl_b32 s{sT1}, s{sT3}, 12
v_add_u32 v{vC[0]}, s{sT1}, v{vT+2}""")
    for k in range(1, 8): f(f"v_xor_b32 v{vC[k]}, {16*k}, v{vC[0]}")
    for k in range(8): f(f"v_add_u32 v{vC[8+k]}, 0x10000, v{vC[k]}")
    chk = [f"v_add3_u32 v{vE0}, v{Eg+1}, v{Eg+3}, v{Eg+5}"]
    for i in range(3, 15, 2): chk.append(f"v_add3_u32 v{vE0}, v{vE0}, v{Eg+2*i+1}, v{Eg+2*i+3}")
    chk += [f"v_add_u32 v{vE0}, v{vE0}, v{Eg+31}", f"v_cmp_ne_u32 vcc, v{vE0}, v{vCnt}"]
    f("\n".join(chk), at=P["echk"])
    f("s_cbranch_vccnz L_eretry\nL_eback:")
    OUT = L("L_eretry:\n" + ("s_add_u32 s44, s44, 1\n" if P["prof"] else "") + "\n".join(gl) + f"""
s_add_u32 s{sCNT}, s{sCNT}, 1
s_waitcnt vmcnt(0)
s_cmp_gt_u32 s{sCNT}, 0x8000
s_cbranch_scc1 L_eback
""" + "\n".join(chk) + "\ns_cbranch_vccnz L_eretry\ns_branch L_eback")
    for i in range(6, -1, -1):
        a0, a1, b0, b1 = Eg + 2 * i, Eg + 2 * i + 2, Eg + 16 + 2 * i, Eg + 16 + 2 * i + 2
        f(f"v_fmac_f32 v{a0}, v{cL64}, v{a1}\nv_fmac_f32 v{b0}, v{cL64}, v{b1}\n{cm2(a0, cL64, a1)}\n{cm2(b0, cL64, b1)}")
    k0, k1, c0, c1, hw = Eg, Eg + 1, Eg + 2, Eg + 3, Eg + 8
    f(f"""v_fmac_f32 v{k0}, v{cL512}, v{Eg+16}
v_and_b32 v{hw}, 3, v{vN}
{cm2(k0, cL512, Eg+16)}
v_mov_b32 v{k1}, v{k0}
v_lshlrev_b32 v{hw}, 4, v{hw}
v_lshl_add_u32 v{hw}, v{vN}, 7, v{hw}
v_permlane32_swap_b32 v{k0}, v{k1}
v_lshl_add_u32 v{hw}, v{vH}, 6, v{hw}
v_fmac_f32 v{k0}, v{cL1K}, v{k1}
{cm2(k0, cL1K, k1)}
s_add_u32 s{sT1}, s{sWQ}, {HB}
{cm1(c0, cL32, k0, f'v{elo}')}
{cm2(c0, cL32, k0)}
v_add_u32 v{hw}, s{sT1}, v{hw}
{cm1(c1, cL16, c0, f'v{e0}')}
{cm2(c1, cL16, c0)}
v_mul_f32_dpp v{k0}, v{c0}, v{cS+1} {DPP}
v_xor_b32 v{hw+1}, 16, v{hw}
v_mul_f32_dpp v{k1}, v{c1}, v{cS+1} {DPP}
v_fmac_f32 v{k0}, v{c0}, v{cS}
v_fmac_f32 v{k1}, v{c1}, v{cS}""")
    pa, pb = k0, k1
    for q in range(16):
        da, db = accS + q, accS + 16 + q
        f(f"v_fmac_f32 v{da}, v{cL}, v{pa}\nv_fmac_f32 v{db}, v{cL}, v{pb}\n{cm2(da, cL, pa, '-')}\n{cm2(db, cL, pb, '-')}")
        pa, pb = da, db
    f(f"v_xor_b32 v{hw+2}, 32, v{hw}\nv_xor_b32 v{hw+3}, 48, v{hw}")
    for i in range(4):
        for q in range(8 * i, 8 * i + 8): f(f"v_mul_f32 v{gR+q}, v{gR+q}, v{accS+q}")
        for q in range(4): f(f"v_cvt_pk_bf16_f32 v{Eg+16+4*i+q}, v{gR+8*i+2*q}, v{gR+8*i+2*q+1}")
        f(f"ds_write_b128 v{hw+i}, {V(Eg+16+4*i,4)}")
    if P["prof"]:
        post[S1 - 1][0:0] = stamp()
        for k in P.get("st1", []): post[k][0:0] = stamp(True)
    st, left = spine(mf, post, F, P["bud"])
    info = dict(left=len(left), nd=nd)
    M += st
    M += dump("s1")
    M += stamp()
    M += left
    M += dump("scan")
    M += stamp()

    K1, K3, K4, mt, mh, mo = 80, 82, 84, 88, 96, 104
    e(f"""v_mov_b32 v{K1}, {fb(LOG2E)}
v_mov_b32 v{K1+1}, {fb(LOG2E)}
v_mov_b32 v{K3}, {fb(0.7071067811865476)}
v_mov_b32 v{K3+1}, {fb(0.7071067811865476)}
v_mov_b32 v{K4}, 0.5
v_mov_b32 v{K4+1}, 0.5
v_lshlrev_b32 v{vLin}, 4, v{vL}
s_add_u32 s{sT1}, s{sWQ}, {AB}
v_add_u32 v{vAw}, s{sT1}, v{vLin}
s_lshl_b32 s{sT1}, s{sT0}, 14
s_add_u32 s{sT1}, s{sT1}, {AB}
v_add_u32 v{vAr}, s{sT1}, v{vLin}
v_bfe_u32 v{t0}, v{vL}, 2, 2
v_lshl_add_u32 v{t1}, v{vH}, 3, v{t0}
v_lshlrev_b32 v{t1}, 7, v{t1}
v_and_b32 v{t2}, 1, v{vL}
v_lshl_add_u32 v{t1}, v{t2}, 6, v{t1}
v_and_b32 v{t2}, 2, v{vL}
v_lshl_add_u32 v{t1}, v{t2}, 2, v{t1}
v_lshlrev_b32 v{t2}, 4, v{t0}
v_and_b32 v{t3}, 16, v{vL}
v_xor_b32 v{t2}, v{t2}, v{t3}
s_lshl_b32 s{sT1}, s{sT0}, 5
v_xor_b32 v{t2}, s{sT1}, v{t2}
v_add_u32 v{t1}, v{t1}, v{t2}
v_add_u32 v{vHr}, {HB}, v{t1}
v_lshl_add_u32 v{t0}, v{vH}, 4, v{t0}
v_lshlrev_b32 v{t0}, 7, v{t0}
v_bfe_u32 v{t1}, v{vL}, 3, 1
v_xor_b32 v{t1}, s{sT3}, v{t1}
v_lshl_add_u32 v{t0}, v{t1}, 6, v{t0}
v_lshl_add_u32 v{t0}, v{t3}, 1, v{t0}
v_and_b32 v{t1}, 3, v{vL}
v_lshl_add_u32 v{vW2}, v{t1}, 3, v{t0}
v_add_u32 v{vW2+1}, 0x10000, v{vW2}
v_add_u32 v{vW2+2}, 0x20000, v{vW2}""")
    mf = []
    d2, bd, sel = P["d2"], P["bd"], P["sel"]
    def fragreads(q, kx):
        fr = F2 + 4 * ((8 * q + kx) % RING)
        base = slot(21 + q) * SL
        wn, of = base >> 16, base & 0xffff
        if q % 3 == 0:
            return fr, [I(f"ds_read_b128 {A(fr,4)}, v{vC[8*wn+kx]} offset:{of}", ver=("F", q, kx))]
        return fr, [I(f"ds_read_b64_tr_b16 {A(fr+2*ee,2)}, v{vW2+wn} offset:{of+(32*(kx>>1)+8*(kx&1)+4*ee)*128}",
                      ver=("F", q, kx)) for ee in range(2)]
    early, pos, spos, Rq, Bq, Aq = [], {}, {}, [], [], []
    def selm(u):
        spos[u] = len(mf)
        acc = V(accD, 16) if u >= 3 else V(acc2 + 16 * ((u + 3) & 1), 16)
        if u < 3: assert 24 * (u + 3) < sel[u] < 24 * (u + 4)
        for i in range(2): mfma(acc, V(Sel + 4 * i, 4), V(inb[u] + 4 * i, 4), acc)
    for q in range(21):
        u = q // 3
        acc = V(accD, 16) if u == 6 else V(acc2 + 16 * (u & 1), 16)
        for kx in range(8):
            km = 8 * q + kx
            for s_ in range(6):
                if sel[s_] == km: selm(s_)
            k = pos[km] = len(mf)
            if kx == 0 and q >= 2:
                Bq.append(At(([needlg("act")] if q == 2 else []) + [need(("g", 21 + q)), I("s_barrier")], k - bd, k - bd, name=("b", q)))
            fr, r_ = fragreads(q, kx)
            if k - d2 < 0: early.extend(r_)
            else: Rq += [At(x, pos.get(km - RING, -2) + 1, k - d2, after=[("b", q)] if q >= 2 else []) for x in r_]
            if q % 3 == 0: a_, av = A(aH + 4 * kx, 4), ("h", kx)
            else:
                ka = 8 * (q % 3 - 1) + kx
                a_, av = A(4 * ka, 4), ("act", ka)
            mfma(acc, a_, A(fr, 4), acc if (u == 6 or q % 3 or kx) else "0", [(A(fr, 4), ("F", q, kx)), (a_, av)])
    NM2 = len(mf)
    for ka in range(16):
        Aq.append(At(I(f"ds_read_b128 {A(4*ka,4)}, v{vAr} offset:{1024*ka}", ver=("act", ka), tok="act" if ka == 15 else None),
                     -1, min(8 + ka - d2, (ka * (15 - bd)) // 16 - 1)))
    hreads = [I(f"ds_read_b64_tr_b16 {A(aH+4*kx+2*ee,2)}, v{vHr} offset:{(16*kx+4*ee)*128}", ver=("h", kx))
              for kx in range(8) for ee in range(2)] + early
    xd = []
    while D[nd][1][1] < 27: xd.append(D[nd][0]); nd += 1
    uses = [(0, 1), (0, 0), (1, 1), (1, 0)]
    for b in range(8):
        ft, rt = uses[b >> 1]; kk = b & 1
        h = accF + 32 * ft + 16 * rt + 8 * kk
        o = mo + 4 * (b & 1)
        B = []
        for p in range(4): B += L(f"v_pk_fma_f32 {V(mt+2*p,2)}, {V(h+2*p,2)}, {V(K1,2)}, {V(K4,2)} neg_lo:[0,0,1] neg_hi:[0,0,1]")
        for p in range(8): B += L(f"v_exp_f32 v{mt+p}, v{mt+p}")
        for p in range(4): B += L(f"v_pk_add_f32 {V(mt+2*p,2)}, {V(mt+2*p,2)}, {V(K3,2)}")
        for p in range(4): B += L(f"v_pk_fma_f32 {V(mt+2*p,2)}, {V(mt+2*p,2)}, {V(mt+2*p,2)}, {V(K4,2)}")
        for p in range(8): B += L(f"v_rcp_f32 v{mt+p}, v{mt+p}")
        for p in range(4): B += L(f"v_pk_mul_f32 {V(mh+2*p,2)}, {V(h+2*p,2)}, {V(omg+2*rt,2)}")
        for p in range(4): B += L(f"v_pk_fma_f32 {V(mh+2*p,2)}, {V(mh+2*p,2)}, {V(mt+2*p,2)}, {V(mh+2*p,2)} neg_lo:[1,0,0] neg_hi:[1,0,0]")
        for p in range(4): B += L(f"v_cvt_pk_bf16_f32 v{o+p}, v{mh+2*p}, v{mh+2*p+1}")
        B += L(f"ds_write_b128 v{vAw}, {V(o,4)} offset:{rt*16384+(2*ft+kk)*1024}")
        extra = []
        if b < 4:
            n_ = (len(xd) + 3 - b) // (4 - b)
            extra = xd[:n_]; xd = xd[n_:]
        else:
            n_ = (len(hreads) + 6 - b) // (7 - b) if b < 7 else 0
            extra = [[x] for x in hreads[:n_]]; hreads = hreads[n_:]
        if b == 4: M += [lgkm0(), need(("g", 21)), I("s_barrier")]
        step = max(1, len(B) // (len(extra) + 1))
        for i, x in enumerate(B):
            M.append(x)
            if extra and i % step == step - 1: M += extra.pop(0)
        assert not extra
    M += [lgkm0(), need(("g", 22)), I("s_barrier")]
    M += dump("x")
    M += stamp()

    def gp(km): return pos[km] if km in pos else None
    Dq, last = [], -1
    while nd < len(D):
        q = D[nd][1][1] - 21
        qb = max(2, q - 7)
        lo = 0 if q == 6 else pos[8 * qb] - bd
        p = max(lo + 1, last + (1 if q < 10 else 2))
        Dq.append(At(D[nd][0], p - 1, p, after=[] if q == 6 else [("b", qb)])); last = p; nd += 1
    Vq = [At(x, 8) for x in L(f"""v_mov_b32 v{vTag}, s{sTAG}
v_lshlrev_b32 v{vL4}, 2, v{vL}
v_lshrrev_b32 v{vMo}, 3, v{vL}
v_mul_u32_u24 v{vMo}, {1792-128}, v{vMo}
v_add_u32 v{vMo}, v{vMo}, v{vLin}
v_add_u32 v{vMo+1}, {8*1792}, v{vMo}
s_add_u32 s{sTG1}, s{sTAG}, 1""")]
    V2 = [At(x, 8) for x in L(f"""v_and_b32 v{t0}, 1, v{vL}
v_lshlrev_b32 v{t0}, 4, v{t0}
v_mov_b32 v{t1}, 0x3f80
v_lshlrev_b32 v{t0}, v{t0}, v{t1}
v_lshrrev_b32 v{t1}, 3, v{vN}
v_bfe_u32 v{t2}, v{vL}, 1, 1
v_lshl_add_u32 v{t1}, v{t1}, 1, v{t2}
v_bfe_u32 v{t2}, v{vL}, 2, 1
v_xor_b32 v{t2}, v{t2}, v{vH}
v_lshl_add_u32 v{t1}, v{t2}, 3, v{t1}
v_mul_u32_u24 v{t2}, {32*1792}, v{vH}
v_lshl_add_u32 v{vOut}, v{vN}, 2, v{t2}
v_lshl_add_u32 v{vOut}, s{sJ}, 8, v{vOut}""")]
    for i in range(0, 8, 2):
        V2.append(At(L(f"""v_cmp_eq_u32 vcc, {i}, v{t1}
v_cmp_eq_u32 s[42:43], {i+1}, v{t1}
s_movk_i32 s{sOO+i}, {3584*i}
v_cndmask_b32 v{Sel+i}, 0, v{t0}
v_cndmask_b32 v{Sel+i+1}, 0, v{t0}, s[42:43]"""), 8))
        V2.append(At(L(f"s_movk_i32 s{sOO+i+1}, {3584*(i+1)}"), 8))
    for i, a_ in enumerate(reversed(V2)): a_.dl = min(list(spos.values()) + [NM2]) - 4 - 3 * i
    def chks(dst, r, hop): return [f"v_add3_u32 v{dst}, v{r}, v{r+1}, s{sTG1 if hop else sTAG}"] + [f"v_add3_u32 v{dst}, v{dst}, v{r+2*i}, v{r+2*i+1}" for i in (1, 2, 3)]
    def msg(op, r, tile, c, sd, sw, fl):
        pre_ = f"s_mul_i32 s{sw}, s{tile}, {4*PIN//128}"
        if c < NO:
            pre_ += f"\ns_lshl_b32 s{sd}, s{tile}, 1" if c == 0 else f"\ns_lshl1_add_u32 s{sd}, s{tile}, {32*1792}"
            dat = [f"buffer_{op}_dwordx4 {V(r+4*i,4)}, v{vMo+i}, {S(dO,4)}, s{sd} offen {fl}" for i in range(2)]
            return pre_, dat + [f"buffer_{op}_dword v{r+8}, v{vL4}, {S(dPO,4)}, s{sw} offen offset:{PCK+256*c} {fl}"]
        if PCK > 2048:
            pre_ += f"\ns_add_u32 s{sd}, s{sw}, {2048*(c-NO)}\ns_add_u32 s{sw}, s{sw}, {PCK-2048}"
        else: sd = sw
        dat = [f"buffer_{op}_dwordx4 {V(r+4*i,4)}, v{vLin}, {S(dPO,4)}, s{sd} offen offset:{1024*i} {fl}" for i in range(2)]
        return pre_, dat + [f"buffer_{op}_dword v{r+8}, v{vL4}, {S(dPO,4)}, s{sw} offen offset:{2048+256*c} {fl}"]
    Xq = []
    pre = P.get("pre", "")
    for u in range(6):
        a_ = acc2 + 16 * (u & 1); k0 = pos[24 * u + 23]
        g0_, g1_, g2_ = (k0 + x for x in P["sto"])
        pre_, mm = msg("store", stg, sU + u, u % 3, sT0, sA, "@X")
        for p in range(8):
            Vq.append(At(L(f"v_cvt_pk_bf16_f32 v{stg+p}, v{a_+2*p}, v{a_+2*p+1}"), k0 + 2, (g0_ if p < 4 else g1_) - 1, name=("cv", u, p)))
            if p == 1: Vq.append(At(L(pre_), k0))
        for i, x in enumerate(chks(stg + 8, stg, u // 3)): Vq.append(At(L(x), k0, g2_ - 1, name=("ck", u, i)))
        if "pst" in pre: continue
        for i, g_ in enumerate((g0_, g1_)):
            Xq.append((g_, At(L(mm[i]), g_, g_, after=[("cv", u, 4 * i + 3)], solo=True)))
        Xq.append((g2_, At(L(mm[2]), g2_ - 1, g2_, after=[("ck", u, 3)])))
    OUT2 = []
    def retry(lab, bit, ld, c):
        OUT2.extend(L(f"""L_r{lab}:
{f"s_or_b32 s45, s45, {1 << bit}" if P["prof"] else ""}
{ld}
s_add_u32 s{sCNT}, s{sCNT}, 1
s_waitcnt vmcnt(0)
s_cmp_gt_u32 s{sCNT}, 0x8000
s_cbranch_scc1 L_b{lab}
{c}
s_cbranch_vccnz L_r{lab}
s_branch L_b{lab}"""))
        return L(c + ("" if "nochk" in pre else f"\ns_cbranch_vccnz L_r{lab}") + f"\nL_b{lab}:")
    Xq.append((18, At(L(f"v_cmp_ne_u32 vcc, s{sXT}, v{vPo}\ns_cbranch_vccnz L_mode\nL_near:"), 18, 20)))
    MODE = L(f"""L_mode:
{hld}
s_add_u32 s{sCNT}, s{sCNT}, 1
s_waitcnt vmcnt(0)
s_cmp_gt_u32 s{sCNT}, 0x8000
s_cbranch_scc1 L_nearF
v_subrev_u32 v{t3}, s{sTAG}, v{vPo}
v_cmp_lt_u32 vcc, 15, v{t3}
s_cbranch_vccnz L_mode
v_cmp_ne_u32 vcc, s{sXT}, v{vPo}
s_cbranch_vccnz L_nearF
s_branch L_near""")
    def pl(u, sd=sROT, sw=sB):
        pre_, mm = msg("load", inb[u], sU + min(u + 3, 6), u % 3, sd, sw, "sc1")
        return [pre_ + "\n" + mm[0], mm[1], mm[2]]
    def pchk(u):
        return retry(f"p{u}", u, "\n".join(pl(u, sT1, 42)), "\n".join(chks(t3, inb[u], u // 3)) + f"\nv_cmp_ne_u32 vcc, v{t3}, v{inb[u]+8}")
    tail = []
    for u in range(6):
        k = P["pld"][u]
        if k < 168 and "pld" not in pre:
            for i, x in enumerate(pl(u)): Xq.append((pos[k] + i / 4, At(L(x), pos[k], min(NM2 - 1, pos[k] + 1 + i))))
        if u in spos:
            c = pchk(u)
            Xq.append((spos[u] - 2, At(c[:4], spos[u] - 2, spos[u] - 2)))
            Xq.append((spos[u] - 1, At(c[4:], spos[u] - 1, spos[u] - 1)))
    Xq.sort(key=lambda t: t[0])
    Sq = [At(stamp(True), pos[k], pos[k]) for k in P.get("st2", [])]
    st, left = sched(mf, [Sq, Bq, [x[1] for x in Xq], Dq, Aq, Rq, Vq, V2], P.get("bud2", 32), P["co"], d2 - 1)
    assert not left
    M += st
    M += stamp()
    late = [u for u in range(6) if P["pld"][u] >= 168]
    for u in range(6):
        for u2 in late:
            if P["pld"][u2] - 168 == u or (u2 == u and P["pld"][u2] - 168 > u):
                if "pld" not in pre: e("\n".join(pl(u2)))
        if u in spos: continue
        M += pchk(u)
        for i in range(2): e(f"v_mfma_f32_32x32x16_bf16 {V(accD,16)}, {V(Sel+4*i,4)}, {V(inb[u]+4*i,4)}, {V(accD,16)}")
    M += stamp()
    for q in range(16):
        e(f"buffer_store_dword v{accD+q}, v{vOut}, {S(dO,4)}, s{sOO+q//2} offen offset:{1792*(q&1)} {P['ost']}")
    if P.get("amp"):
        a_, b_ = P["amp"]
        M += [vm0()] + stamp() + L("s_waitcnt lgkmcnt(0)")
        e(f"""s_cmp_lg_u32 s2, 141
s_cbranch_scc1 L_noamp
s_sub_u32 s44, s{sST+2*b_}, s{46 if a_ < 0 else sST+2*a_}
s_min_u32 s44, s44, 10000
s_lshl_b32 s44, s44, 4
L_amp:
s_memrealtime s[42:43]
s_waitcnt lgkmcnt(0)
s_sub_u32 s45, s42, s{sST+14}
s_cmp_lt_u32 s45, s44
s_cbranch_scc1 L_amp
L_noamp:""")
    elif P["prof"]:
        M += [vm0()] + stamp() + L("s_waitcnt lgkmcnt(0)")
        e(f"""s_memrealtime s[42:43]
s_mul_i32 s{sT0}, s{sR}, 7
s_add_u32 s{sT0}, s{sT0}, s{sJ}
s_lshl_b32 s{sT0}, s{sT0}, 2
s_add_u32 s{sT0}, s{sT0}, s{sW}
s_lshl_b32 s{sT0}, s{sT0}, 6
s_add_u32 s{sT0}, s{sT0}, {WS_DBG}
v_mov_b32 v0, s{sT0}
s_waitcnt lgkmcnt(0)""")
        for i in range(nst[0]):
            e(f"v_mov_b32 v4, s{sST+2*i}\nglobal_store_dword v0, v4, {S(pWS,2)} offset:{4*i}")
        e(f"v_mov_b32 v4, s44\nglobal_store_dword v0, v4, {S(pWS,2)} offset:40")
        e(f"v_mov_b32 v4, s45\nglobal_store_dword v0, v4, {S(pWS,2)} offset:44")
        e(f"v_mov_b32 v4, s46\nglobal_store_dword v0, v4, {S(pWS,2)} offset:52")
        e(f"v_mov_b32 v4, s47\nglobal_store_dword v0, v4, {S(pWS,2)} offset:48")
        e(f"v_mov_b32 v4, s{sCNT}\nglobal_store_dword v0, v4, {S(pWS,2)} offset:56")
        e(f"v_mov_b32 v4, s42\nglobal_store_dword v0, v4, {S(pWS,2)} offset:60")
    e(f"""s_lshl_b32 s{sT0}, s{sJ}, 2
s_add_u32 s{sT0}, s{sT0}, s{sW}
s_lshl_b32 s{sT0}, s{sT0}, 5
s_add_u32 s{sT0}, s{sT0}, s{sR}
s_cmp_lg_u32 s{sT0}, 31
s_cbranch_scc1 L_exit
v_mov_b32 v0, 0
global_store_dword v0, v{vTag}, {S(pWS,2)} sc1
L_exit:
s_endpgm""")
    if "eld" in pre: M = [x for x in M if not (x.kind == "vld" and x.op.endswith("x2")) and "L_eretry" not in x.text]
    if "esto" in pre: M = [x for x in M if not (x.kind == "vst" and x.op.endswith("x2")) and "L_eretry" not in x.text]
    body, nops = finalize(M, P.get("verbose"))
    drop = P.get("drop", "")
    if "dma" in drop: body = [x for x in body if x.kind != "dma"]
    if "est" in drop: body = [x for x in body if not (x.kind in ("vst", "vld") and x.op.endswith("x2")) and "L_eretry" not in x.text]
    if "bar" in drop: body = [x for x in body if x.op != "s_barrier"]
    if "dsr" in drop: body = [x for x in body if x.kind != "dsr"]
    if "dsw" in drop: body = [x for x in body if x.kind != "dsw"]
    if "wait" in drop: body = [x for x in body if not (x.op == "s_waitcnt" and "lgkmcnt(0)" not in x.text)]
    if "mfma" in drop: body = [x for x in body if x.kind != "mfma"]
    info["nops"] = nops; info["n"] = len(body); info["model"] = model(body)
    PF = L("L_pf:")
    if 1:
        nj = {0: 7, 1: 4, 2: 3, 3: 2}[z]
        PF += L(f"""s_lshr_b32 s50, s2, 3
s_lshl_b32 s50, s50, 8
v_add_u32 v1, s50, v0
s_and_b32 s51, s2, {(1 << z) - 1}
s_mul_i32 s51, s51, 28
s_add_u32 s3, s51, 27
s_lshr_b32 s51, s51, {2 + z}
s_lshr_b32 s3, s3, {2 + z}
s_add_u32 s3, s3, 1
s_and_b32 s4, s2, 7
s_lshr_b32 s4, s4, {z}
v_lshrrev_b32 v2, 6, v1
s_mov_b32 s55, 0x20000
s_mov_b32 s59, 0x20000
s_mov_b32 s63, 0x20000
s_mov_b32 s67, 0x20000
v_readfirstlane_b32 s5, v2
v_lshlrev_b32 v3, 7, v1
v_lshrrev_b32 v4, 2, v1
v_mul_u32_u24 v4, 3584, v4
v_and_b32 v5, 3, v1
v_lshl_add_u32 v4, v5, 7, v4
v_subrev_u32 v5, 448, v1
v_min_u32 v5, v5, v1
v_mul_u32_u24 v5, 896, v5
s_waitcnt lgkmcnt(0)
s_mul_i32 s6, s4, {(4 << z) * 57344}
s_add_u32 s52, s{pX}, s6
s_addc_u32 s53, s{pX+1}, 0
s_mov_b32 s54, {(4 << z) * 57344}
s_lshl_b32 s6, s51, 9
s_add_u32 s56, s{pW1}, s6
s_addc_u32 s57, s{pW1+1}, 0
s_sub_u32 s58, {WSZ}, s6
s_cmp_ge_u32 s5, 7
s_cselect_b32 s60, s{pCIM}, s{pCRE}
s_cselect_b32 s61, s{pCIM+1}, s{pCRE+1}
s_lshl_b32 s6, s51, 7
s_add_u32 s60, s60, s6
s_addc_u32 s61, s61, 0
s_sub_u32 s62, {MSZ}, s6
s_mul_i32 s6, s51, 229376
s_add_u32 s64, s{pW2}, s6
s_addc_u32 s65, s{pW2+1}, 0
s_sub_u32 s66, s3, s51
s_mul_i32 s66, s66, 229376""")
    if 1:
        PF += L(f"""s_and_b32 s50, s2, 7
s_lshl_b32 s50, s50, 2
s_lshr_b32 s51, s2, 3
s_add_u32 s50, s50, s51
s_mul_i32 s51, s50, {28*PIN}
s_add_u32 s51, s51, {WS_P}
s_add_u32 s68, s{pWS}, s51
s_addc_u32 s69, s{pWS+1}, 0
s_mov_b32 s70, {28*PIN}
s_mov_b32 s71, 0x20000
s_mul_i32 s51, s50, {64*1792}
s_add_u32 s72, s{pOUT}, s51
s_addc_u32 s73, s{pOUT+1}, 0
s_mov_b32 s74, {64*1792}
s_mov_b32 s75, 0x20000
v_lshlrev_b32 v7, 7, v0
s_lshl_b32 s50, s2, 15
v_add_u32 v1, s50, v7
s_mov_b32 s79, 0x20000""")
        k = 8
        for c in P["pfo"]:
            if c == ".": PF += L("s_waitcnt vmcnt(0)")
            if c in "x2":
                for i in range(((4 << z) * 448 + 1023) // 1024 if c == "x" else (nj * 1792 + 1023) // 1024):
                    PF += L(f"v_add_u32 v{k}, {i << 17}, v3\nbuffer_load_dword v{k}, v{k}, {'s[52:55]' if c == 'x' else 's[64:67]'}, 0 offen"); k += 1
            if c == "1":
                for i in range(2):
                    PF += L(f"v_add_u32 v6, {i * 256 * 3584}, v4")
                    for jj in range(nj): PF += L(f"buffer_load_dword v{k}, v6, s[56:59], 0 offen offset:{512*jj}"); k += 1
            if c == "c":
                for jj in range(nj): PF += L(f"buffer_load_dword v{k}, v5, s[60:63], 0 offen offset:{128*jj}"); k += 1
            if c in "ABC":
                for ptr, sz in dict(A=((pW1, WSZ),), B=((pCRE, MSZ), (pCIM, MSZ)), C=((pW2, WSZ),))[c]:
                    PF += L(f"s_mov_b32 s76, s{ptr}\ns_mov_b32 s77, s{ptr+1}\ns_mov_b32 s78, {sz}")
                    PF += L(f"buffer_load_dword v{k}, v1, s[76:79], 0 offen"); k += 1
                    if sz > 1 << 20:
                        PF += L(f"v_add_u32 v{k}, 0x100000, v1\nbuffer_load_dword v{k}, v{k}, s[76:79], 0 offen"); k += 1
            if c in "fF":
                for i in range(max(4 if NO else 0, (28 * PIN + 32767) >> 15)):
                    PF += L(f"v_add_u32 v6, {i << 15}, v7")
                    if NO and i < 4: PF += L(f"buffer_load_dword v{k}, v6, s[72:75], 0 offen"); k += 1
                    if i < (28 * PIN + 32767) >> 15: PF += L(f"buffer_load_dword v{k}, v6, s[68:71], 0 offen"); k += 1
                    if c == "F": PF += L("s_waitcnt vmcnt(0)")
    PF += L("s_endpgm")
    txt = [f"; @launch grid=(256,1,1) block=(256,1,1) lds=163840",
           '.amdgcn_target "amdgcn-amd-amdhsa--gfx950"', ".text", f".globl {NAME}_kernel", ".p2align 8",
           f".type {NAME}_kernel,@function", f"{NAME}_kernel:"]
    near = [x.text for x in body + OUT2]
    far = [re.sub(r"\b(L_\w+)", r"\1F", t).replace("@X", "sc1") for t in near[near.index("L_near:"):]]
    txt += [t.replace("@X", P["sfl"]).rstrip() for t in near] + [x.text for x in OUT + MODE + PF] + far
    txt.append(f""".section .rodata,"a"
.p2align 6
.amdhsa_kernel {NAME}_kernel
  .amdhsa_next_free_vgpr 512
  .amdhsa_next_free_sgpr 102
  .amdhsa_accum_offset 256
  .amdhsa_group_segment_fixed_size 0
  .amdhsa_kernarg_size 136
  .amdhsa_user_sgpr_count 2
  .amdhsa_user_sgpr_kernarg_segment_ptr 1
  .amdhsa_system_sgpr_workgroup_id_x 1
.end_amdhsa_kernel""")
    return "\n".join(txt) + "\n", info

if __name__ == "__main__":
    kw = {}
    for a in sys.argv[2:]:
        k, v = a.split("=", 1); kw[k] = eval(v)
    t, info = gen(**kw)
    open(sys.argv[1], "w").write(t)
    print(info)
```

```python
import sys, collections, re
from asmlib import *

NAME = "gated_mix__ssm_conv_s5__dense_activation_mish__prompt"
LOG2E = 1.4426950408889634
EPC = 0x9E3779B9
XSZ, MSZ, WSZ, OSZ = 2048 * 896, 448 * 896, 448 * 3584, 2048 * 1792
WS_E, WS_P, WS_DBG = 4096, 1 << 20, 18 << 20
SL = 16384
XB = 6 * SL; HB = 6 * SL; AB = 7 * SL
GP = 152 * 1024; GT = 153 * 1024; PR = 154 * 1024
sW, sKB, sR, sJ, sROT, sTAG, sWQ = 3, 4, 11, 12, 13, 14, 15
pX, pLRE, pLIM, pBRE, pBIM, pCRE, pCIM, pDT, pDS, pW1, pB1, pW2, pGW, pOUT, pWS = 16, 18, 20, 22, 24, 26, 28, 30, 32, 36, 38, 40, 42, 44, 48
sT0, sT1 = 50, 51
dX, dBR, dBI, dW1, dC, dW2, dE, dPO, dO = 52, 56, 60, 64, 68, 72, 76, 84, 88
sA, sB, sTG1, sXT = 80, 81, 82, 83
vPo = 42
sU, sCNT, sSO, sT3 = 92, 99, 100, 101
sOO = 34
sST = 16
vL, vN, vH = 1, 2, 3
vdX, vdB, vdW1, vdC, vdW2 = 4, 6, 10, 14, 18
vX, vB, vG, vW1, vP, vP2, vXD = 22, 26, 34, 35, 39, 40, 41
cL, cL16, cL32, cL64, cL512, cL1K, cS = 43, 45, 47, 49, 51, 53, 55
vT = 57
accD, dia, xD, Gx, gwf, raw = 64, 80, 88, 96, 104, 108
Bfr, rawb, accS, Wfr, accF = 112, 128, 144, 176, 192
scr = 208
aG, aH = 224, 224
omg = 4
vE0, vE1 = 8, 9
vC = [22 + i for i in range(8)] + [30, 31, 32, 33, 34, 39, 40, 41]
Eg, gR = 112, 80
F2, RING = 64, 10
vW2 = 168
vHr, vAw, vAr, vLin, vOut = 171, 172, 173, 174, 175
stg, acc2, Sel = 176, 192, 248
vTag, vL4, vMo = 186, 187, 190
inb = [80 + 10 * i for i in range(6)]

DEF = dict(z=0, d=4, la=12, egat=118, echk=150, pld=(66, 90, 114, 130, 150, 168), sel=(92, 116, 140, 156, 168, 168),
           hel=4, ipf=0, sto=(5, 7, 9), nout=2, sfl="", d2=4, bd=5, co=2, ost="", prof=0, dump=None,
           pfo="ABC.f", bud=24)

def gen(**kw):
    P = dict(DEF); P.update(kw)
    z, d, LA = P["z"], P["d"], P["la"]
    NO = P["nout"]
    PCK = (3 - NO) * 2048
    PFL = PCK + 768
    PIN = PFL + 128
    M = []
    def e(t, **k):
        for x in t.split("\n"):
            if x.strip(): M.append(I(x, **k))
    def L(t, **k): return [I(x, **k) for x in t.split("\n") if x.strip()]
    nst = [0]
    def stamp(custom=False):
        if not P["prof"]: return []
        if (P.get("st1") or P.get("st2")) and not custom: return []
        nst[0] += 1
        return [I(f"{'s_memrealtime' if P.get('amp') else 's_memtime'} {S(sST + 2 * (nst[0] - 1), 2)}")]
    def dump(tag):
        if not P["dump"] or P["dump"][0] != tag: return []
        o = [vm0(), lgkm0(), I("s_nop 7"), I("s_nop 7")]
        o += L(f"""s_mul_i32 s{sT0}, s{sR}, 7
s_add_u32 s{sT0}, s{sT0}, s{sJ}
s_lshl_b32 s{sT0}, s{sT0}, 2
s_add_u32 s{sT0}, s{sT0}, s{sW}
s_lshl_b32 s{sT0}, s{sT0}, 15
s_add_u32 s{sT0}, s{sT0}, {WS_DBG}
v_lshlrev_b32 v0, 2, v{vL}
v_add_u32 v0, s{sT0}, v0""")
        for i, r in enumerate(P["dump"][1]):
            o += L(f"global_store_dword v0, {r}, {S(pWS, 2)}\nv_add_u32 v0, 256, v0")
        o += L("s_endpgm")
        return o

    if P["prof"]: e("s_memrealtime s[98:99]\ns_memtime s[96:97]")
    e(f"""s_cmp_ge_u32 s2, 256
s_cbranch_scc1 L_exit
s_load_dwordx16 s[16:31], s[0:1], 0
s_load_dwordx16 s[32:47], s[0:1], 64
s_load_dwordx2 s[48:49], s[0:1], 128""")
    if P["ipf"]:
        e(f"""s_getpc_b64 s[50:51]
L_pc0:
v_lshlrev_b32 v{vT}, 7, v0
v_min_u32 v{vT}, L_pe-L_pc0, v{vT}
global_load_dword v191, v{vT}, s[50:51]""")
    e(f"""s_cmp_lt_u32 s2, 32
s_cbranch_scc1 L_pf
v_lshrrev_b32 v{vT}, 6, v0
v_and_b32 v{vL}, 63, v0
v_readfirstlane_b32 s{sW}, v{vT}
s_and_b32 s{sT0}, s2, 7
s_lshr_b32 s{sT1}, s2, 3
s_and_b32 s{sR}, s{sT0}, {(1 << z) - 1}
s_mul_i32 s{sR}, s{sR}, 28
s_add_u32 s{sT1}, s{sT1}, s{sR}
s_sub_u32 s{sT1}, s{sT1}, 4
s_lshr_b32 s{sJ}, s{sT1}, {2 + z}
s_and_b32 s{sT1}, s{sT1}, {(4 << z) - 1}
s_lshr_b32 s{sT0}, s{sT0}, {z}
s_lshl_b32 s{sT0}, s{sT0}, {2 + z}
s_add_u32 s{sR}, s{sT0}, s{sT1}
s_add_u32 s{sROT}, s{sR}, s{sJ}
s_mul_i32 s{sT0}, s{sROT}, 37
s_lshr_b32 s{sT0}, s{sT0}, 8
s_mul_i32 s{sT0}, s{sT0}, 7
s_sub_u32 s{sROT}, s{sROT}, s{sT0}
s_lshl_b32 s{sKB}, s{sROT}, 7
s_lshl_b32 s{sWQ}, s{sW}, 12""")
    for s in range(1, 7):
        e(f"""s_add_u32 s{sKB+s}, s{sKB+s-1}, 128
s_cmp_ge_u32 s{sKB+s}, 896
s_cselect_b32 s{sKB+s}, 0, s{sKB+s}""")
    e(f"""s_lshl_b32 s{sT0}, s{sR}, 3
s_add_u32 s{sT0}, s{sT0}, s{sW}
s_mul_i32 s{dX}, s{sT0}, 7168
s_sub_u32 s{dX+2}, {XSZ}, s{dX}
s_lshl_b32 s{sT1}, s{sJ}, 2
s_add_u32 s{sT1}, s{sT1}, s{sW}
s_mul_i32 s{dBR}, s{sT1}, 14336
s_sub_u32 s{dBR+2}, {MSZ}, s{dBR}
s_add_u32 s{dBI+2}, s{dBR+2}, 1024""")
    for dd in (dX, dBR, dBI, dW1, dC, dW2, dE, dPO, dO):
        e(f"s_mov_b32 s{dd+3}, 0x20000")
    t0, t1, t2, t3, t4 = vT, vT + 1, vT + 2, vT + 3, vT + 4
    e(f"""v_and_b32 v{vN}, 31, v{vL}
v_lshrrev_b32 v{vH}, 5, v{vL}
v_lshrrev_b32 v{t0}, 3, v{vL}
v_lshrrev_b32 v{t1}, 4, v{vL}
v_and_b32 v{t3}, 1, v{t1}
v_lshlrev_b32 v{t3}, 2, v{t3}
v_xor_b32 v{t3}, v{t3}, v{vL}
v_and_b32 v{t3}, 7, v{t3}
v_lshlrev_b32 v{t3}, 4, v{t3}
v_xor_b32 v{t1}, v{t1}, v{vL}
v_and_b32 v{t1}, 7, v{t1}
v_lshlrev_b32 v{t1}, 4, v{t1}
v_xor_b32 v{t2}, 64, v{t1}
v_and_b32 v{t4}, 3, v{t0}
v_lshl_add_u32 v{t4}, v{vH}, 5, v{t4}
v_mul_u32_u24 v{t4}, 896, v{t4}
v_add_u32 v{vdX}, v{t4}, v{t1}
v_add_u32 v{vdX+1}, v{t4}, v{t2}
v_add_u32 v{vdX+1}, {3584-1024}, v{vdX+1}
v_mul_u32_u24 v{t4}, 896, v{t0}
v_add_u32 v{vdB}, v{t4}, v{t1}
v_add_u32 v{vdB+1}, v{t4}, v{t2}
v_add_u32 v{vdB+2}, {7168-2048}, v{vdB}
v_add_u32 v{vdB+3}, {7168-2048}, v{vdB+1}
v_add_u32 v{vdW2}, v{t4}, v{t3}
v_mul_u32_u24 v{t4}, 3584, v{t0}
v_add_u32 v{vdW1}, v{t4}, v{t3}""")
    e(f"""v_add_u32 v{t0}, s{sROT}, v{t0}
v_subrev_u32 v{t1}, 7, v{t0}
v_min_u32 v{t0}, v{t0}, v{t1}
v_and_b32 v{t1}, 7, v{vL}
v_lshlrev_b32 v{t4}, 2, v{t1}
v_lshl_add_u32 v{t0}, v{t0}, 7, v{t4}
s_lshl_b32 s{sT0}, s{sW}, 5
v_add_u32 v{t0}, s{sT0}, v{t0}
v_lshrrev_b32 v{t2}, 4, v{vN}
v_lshl_add_u32 v{t2}, v{t2}, 3, v{t1}
s_lshl_b32 s{sT0}, s{sT1}, 4
v_add_lshl_u32 v{t2}, v{t2}, s{sT0}, 1
s_lshl_b32 s{sT0}, s{sT1}, 5
v_add_lshl_u32 v{t1}, v{vN}, s{sT0}, 2
s_and_b32 s{sT3}, s{sW}, 1
s_lshl_b32 s{sT0}, s{sJ}, 1
s_add_u32 s{sT0}, s{sT0}, s{sT3}
s_lshl_b32 s{sT0}, s{sT0}, 5
v_add_lshl_u32 v{t3}, v{vN}, s{sT0}, 1
s_lshr_b32 s{sSO}, s{sWQ}, 1""")
    M.append(lgkm0())
    if P["prof"]: e("s_mov_b32 s46, s98\ns_mov_b32 s47, s96")
    e(f"""s_add_u32 s{dX}, s{dX}, s{pX}
s_addc_u32 s{dX+1}, s{pX+1}, 0
s_load_dword s{sTAG}, {S(pWS, 2)}, 0""")

    D = []
    def dgrp(tok, pre, lines):
        for i, t in enumerate(lines):
            D.append([(L(pre) if i == 0 else []) + [I(t, tok=tok if i == len(lines) - 1 else None)], tok])
    def slot(g):
        if g < 27: return g % 6
        if g < 30: return g - 21
        return slot(g - 9)
    for s in range(7):
        dgrp(("x", s), f"s_add_u32 m0, s{sSO}, {XB + s * 8192}",
             [f"buffer_load_dwordx4 v{vdX+i}, {S(dX,4)}, s{sKB+s} offen offset:{1024*i} lds" for i in range(2)])
        dgrp(("g", s), f"s_add_u32 m0, s{sWQ}, {slot(s) * SL}",
             [f"buffer_load_dwordx4 v{vdB+i}, {S(dBI if i & 1 else dBR,4)}, s{sKB+s} offen offset:{1024*i} lds" for i in range(4)])
    for y in range(14):
        so = f"s_mul_i32 s{sSO}, s{sKB+y//2}, 1792" if y % 2 == 0 else f"s_add_u32 s{sSO}, s{sSO}, 114688"
        dgrp(("g", 7 + y), f"s_add_u32 m0, s{sWQ}, {slot(7 + y) * SL}\n{so}",
             [f"buffer_load_dwordx4 v{vdW1+i}, {S(dW1,4)}, s{sSO} offen offset:{1024*i} lds" for i in range(4)])
    for q in range(21):
        u, k = q // 3, q % 3
        so = (f"s_mul_i32 s{sSO}, s{sU+u}, 448", f"s_mov_b32 s{sSO}, s{sU+u}", f"s_add_u32 s{sSO}, s{sSO}, 114688")[k]
        vd, dd = (vdC, dC) if k == 0 else (vdW2, dW2)
        dgrp(("g", 21 + q), f"s_add_u32 m0, s{sWQ}, {slot(21 + q) * SL}\n{so}",
             [f"buffer_load_dwordx4 v{vd+i}, {S(dd,4)}, s{sSO} offen offset:{1024*i} lds" for i in range(4)])
    NS01 = 42 + 56

    def put(n):
        for x in D[n][0]: M.append(x)
    put(0); put(1)
    e(f"""s_add_u32 s{dBI}, s{dBR}, s{pBIM}
s_addc_u32 s{dBI+1}, s{pBIM+1}, 0
s_add_u32 s{dBR}, s{dBR}, s{pBRE}
s_addc_u32 s{dBR+1}, s{pBRE+1}, 0
s_sub_u32 s{dBI}, s{dBI}, 1024
s_subb_u32 s{dBI+1}, s{dBI+1}, 0""")
    for n in range(2, 6): put(n)
    e(f"""s_lshr_b32 s{sT0}, s{sWQ}, 3
s_add_u32 m0, s{sT0}, {PR}
global_load_ushort v{raw}, v{t2}, {S(pLRE,2)}
global_load_lds_dword v{t0}, {S(pGW,2)}
s_add_u32 m0, s{sT0}, {PR + 256}
global_load_ushort v{raw+1}, v{t2}, {S(pLIM,2)}""")
    e(f"global_load_lds_dword v{t1}, {S(pB1,2)}", tok="par")
    e(f"""global_load_ushort v{raw+2}, v{t2}, {S(pDT,2)}
global_load_ushort v{raw+3}, v{t3}, {S(pDS,2)}""")
    for n in range(6, LA): put(n)

    e(f"""s_lshl_b32 s{dW1}, s{sT1}, 7
s_sub_u32 s{dW1+2}, {WSZ}, s{dW1}
s_add_u32 s{dW1}, s{dW1}, s{pW1}
s_addc_u32 s{dW1+1}, s{pW1+1}, 0
s_mul_i32 s{dC}, s{sT3}, 28672
s_lshl_b32 s{dC+1}, s{sJ}, 7
s_add_u32 s{dC}, s{dC}, s{dC+1}
s_sub_u32 s{dC+2}, {MSZ}, s{dC}
s_cmp_ge_u32 s{sW}, 2
s_cselect_b32 s{pCRE}, s{pCIM}, s{pCRE}
s_cselect_b32 s{pCRE+1}, s{pCIM+1}, s{pCRE+1}
s_add_u32 s{dC}, s{dC}, s{pCRE}
s_addc_u32 s{dC+1}, s{pCRE+1}, 0
s_lshl_b32 s{dW2}, s{sJ}, 3
s_add_u32 s{dW2}, s{dW2}, s{sW}
s_mul_i32 s{dW2}, s{dW2}, 28672
s_sub_u32 s{dW2+2}, {WSZ}, s{dW2}
s_add_u32 s{dW2}, s{dW2}, s{pW2}
s_addc_u32 s{dW2+1}, s{pW2+1}, 0
s_lshl_b32 s{dE}, s{sT1}, 13
s_add_u32 s{dE}, s{dE}, {WS_E}
s_add_u32 s{dE}, s{dE}, s{pWS}
s_addc_u32 s{dE+1}, s{pWS+1}, 0
s_mov_b32 s{dE+2}, 8192
s_mul_i32 s{dPO}, s{sR}, 28
s_add_u32 s{dPO}, s{dPO}, s{sW}
s_mul_i32 s{dPO}, s{dPO}, {PIN}
s_add_u32 s{dPO}, s{dPO}, {WS_P}
s_add_u32 s{dPO}, s{dPO}, s{pWS}
s_addc_u32 s{dPO+1}, s{pWS+1}, 0
s_mov_b32 s{dPO+2}, {25*PIN}
s_lshr_b32 s{sCNT}, s{sW}, 1
s_lshl_b32 s{dO}, s{sR}, 2
s_add_u32 s{dO}, s{dO}, s{sCNT}
s_mul_i32 s{dO}, s{dO}, {16*1792}
s_lshl_b32 s{dO+1}, s{sT3}, 7
s_add_u32 s{dO}, s{dO}, s{dO+1}
s_sub_u32 s{dO+2}, {OSZ}, s{dO}
s_add_u32 s{dO}, s{dO}, s{pOUT}
s_addc_u32 s{dO+1}, s{pOUT+1}, 0
s_mul_i32 s{sT1}, s{sR}, 43
s_lshr_b32 s{sT1}, s{sT1}, 8
s_mul_i32 s{sT1}, s{sT1}, 6
s_sub_u32 s{sT1}, s{sR}, s{sT1}""")
    for s in range(6):
        e(f"""s_add_u32 s{sU+s}, s{sT1}, s{sJ}
s_add_u32 s{sU+s}, s{sU+s}, 1
s_cmp_ge_u32 s{sU+s}, 7
s_cselect_b32 s{sU+6}, 7, 0
s_sub_u32 s{sU+s}, s{sU+s}, s{sU+6}
s_lshl_b32 s{sU+s}, s{sU+s}, 7""")
        if s < 5:
            e(f"""s_add_u32 s{sT1}, s{sT1}, 1
s_cmp_ge_u32 s{sT1}, 6
s_cselect_b32 s{sT1}, 0, s{sT1}""")
    e(f"s_lshl_b32 s{sU+6}, s{sJ}, 7")
    for i in range(1, 4):
        e(f"v_add_u32 v{vdW1+i}, {i*(28672-1024)}, v{vdW1}\nv_add_u32 v{vdW2+i}, {i*6144}, v{vdW2}")
    e(f"""v_mov_b32 v{vdC}, v{vdB}
v_add_u32 v{vdC+1}, 6144, v{vdB+1}
v_add_u32 v{vdC+2}, {2*6144}, v{vdB}
v_add_u32 v{vdC+3}, {3*6144}, v{vdB+1}
v_lshrrev_b32 v{t0}, 1, v{vN}
v_xor_b32 v{t0}, v{t0}, v{vH}
v_and_b32 v{t0}, 7, v{t0}
v_lshlrev_b32 v{t0}, 4, v{t0}
v_lshl_add_u32 v{t0}, v{vN}, 7, v{t0}""")
    for k in range(4):
        e(f"""v_xor_b32 v{t1}, {32*k}, v{t0}
v_add_u32 v{vX+k}, {XB}, v{t1}
v_add_u32 v{vB+k}, s{sWQ}, v{t1}
v_add_u32 v{vB+4+k}, 0x10000, v{vB+k}""")
    e(f"""s_lshl_b32 s{sT1}, s{sW}, 5
v_xor_b32 v{vG}, s{sT1}, v{vX}
s_add_u32 s{sT0}, s{sT0}, {PR}
v_lshl_add_u32 v{vP}, v{vH}, 4, s{sT0}
v_lshl_add_u32 v{vP2}, v{vH}, 5, s{sT0}
s_sub_u32 s{sT0}, s{sJ}, s{sROT}
s_cselect_b32 s{sT1}, 7, 0
s_add_u32 s{sT0}, s{sT0}, s{sT1}
s_lshl_b32 s{sT0}, s{sT0}, 1
s_add_u32 s{sT0}, s{sT0}, s{sCNT}
s_lshl_b32 s{sT0}, s{sT0}, 12
s_lshl_b32 s{sT1}, s{sT3}, 6
v_xor_b32 v{vXD}, s{sT1}, v{vX}
v_add_u32 v{vXD}, s{sT0}, v{vXD}
v_xor_b32 v{vXD+1}, 32, v{vXD}
v_bfe_u32 v{t0}, v{vL}, 2, 2
v_lshl_add_u32 v{t0}, v{vH}, 3, v{t0}
v_lshlrev_b32 v{t0}, 7, v{t0}
v_bfe_u32 v{t1}, v{vL}, 3, 1
v_lshl_add_u32 v{t0}, v{t1}, 6, v{t0}
v_and_b32 v{t1}, 1, v{vL}
v_lshl_add_u32 v{t0}, v{t1}, 5, v{t0}
v_and_b32 v{t1}, 16, v{vL}
v_add_u32 v{t0}, v{t0}, v{t1}
v_and_b32 v{t1}, 2, v{vL}
v_lshl_add_u32 v{t0}, v{t1}, 2, v{t0}
v_add_u32 v{vW1}, s{sWQ}, v{t0}
v_xor_b32 v{vW1+1}, 64, v{vW1}
v_add_u32 v{vW1+2}, 0x10000, v{vW1}
v_add_u32 v{vW1+3}, 0x10000, v{vW1+1}
s_mov_b32 s{sCNT}, 0""")
    if P["prof"]: e("s_mov_b32 s44, 0\ns_mov_b32 s45, 0")
    M.append(lgkm0())
    e(f"s_add_u32 s{sTAG}, s{sTAG}, {EPC}")
    M += stamp()

    mf, post = [], collections.defaultdict(list)
    def rd(k, ins): post[max(-1, k)].extend(ins if isinstance(ins, list) else [ins])
    def mfma(dst, a, b, c, exp=None):
        mf.append(I(f"v_mfma_f32_32x32x16_bf16 {dst}, {a}, {b}, {c}", exp=exp)); return len(mf) - 1
    def xa(s, ks, rt): return A(((s * 4 + ks) * 2 + rt) * 4, 4)
    tneed, tlast = {}, {}
    nb = 0
    for s in range(7):
        k0 = len(mf)
        tneed[("x", s)] = tneed[("g", s)] = k0 - d
        rd(k0 - d, [need(("g", s)), I("s_barrier")])
        wn, of = (0, slot(s) * SL) if slot(s) < 4 else (4, slot(s) * SL - 65536)
        for ks in range(4):
            b = V(Bfr + 4 * (nb % 4), 4); nb += 1
            k = len(mf)
            rd(k - d, I(f"ds_read_b128 {b}, v{vB+wn+ks} offset:{of}", ver=("B", s, ks)))
            for rt in range(2):
                rd(k + rt - d, I(f"ds_read_b128 {xa(s,ks,rt)}, v{vX+ks} offset:{s*8192+rt*4096}", ver=("x", s, ks, rt)))
                acc = V(accS + 16 * rt, 16)
                mfma(acc, xa(s, ks, rt), b, acc if s or ks else "0", [(b, ("B", s, ks)), (xa(s, ks, rt), ("x", s, ks, rt))])
        tlast[s] = len(mf) - 1
        k = len(mf)
        if s == 0: rd(k - d, need("par"))
        rd(k - d, I(f"ds_read_b128 {V(gwf,4)}, v{vP} offset:{32*s}", ver=("gw", s)))
        for rt in range(2):
            g = V(Gx + 4 * rt, 4)
            rd(k + rt - d, I(f"ds_read_b128 {g}, v{vG} offset:{s*8192+rt*4096}", ver=("gx", s, rt)))
            acc = A(aG + 16 * rt, 16)
            mfma(acc, V(gwf, 4), g, acc if s else "0", [(V(gwf, 4), ("gw", s)), (g, ("gx", s, rt))])
    for kk in range(2):
        k = len(mf)
        rd(k - d, I(f"ds_read_b128 {V(xD+4*kk,4)}, v{vXD+kk}", ver=("xd", kk), tok=("xd", kk)))
        mfma(V(accD, 16), V(xD + 4 * kk, 4), V(dia + 4 * kk, 4), V(accD, 16) if kk else "0",
             [(V(xD + 4 * kk, 4), ("xd", kk)), (V(dia + 4 * kk, 4), "dia")])
    S1 = len(mf)
    nw = 0
    for y in range(14):
        g = 7 + y
        tneed[("g", g)] = len(mf) - d - 1
        rd(len(mf) - d - 1, need(("g", g)))
        wn, of = (0, slot(g) * SL) if slot(g) < 4 else (2, slot(g) * SL - 65536)
        for k2 in range(2):
            s, ks = y // 2, 2 * (y % 2) + k2
            for ft in range(2):
                wr = Wfr + 4 * (nw % 4); nw += 1
                k = len(mf)
                for ee in range(2):
                    rd(k - d - 1 + ee, I(f"ds_read_b64_tr_b16 {V(wr+2*ee,2)}, v{vW1+wn+ft} offset:{of+(16*k2+4*ee)*128}", ver=("W", y, k2, ft)))
                for rt in (1, 0):
                    acc = V(accF + 32 * ft + 16 * rt, 16)
                    c = acc if (y or k2) else V(accF + 32 * ft, 16)
                    ex = [(V(wr, 4), ("W", y, k2, ft)), (xa(s, ks, rt), ("x", s, ks, rt))]
                    if not (y or k2): ex.append((c, "bias"))
                    mfma(acc, V(wr, 4), xa(s, ks, rt), c, ex)
        tlast[g] = len(mf) - 1
    NM1 = len(mf)
    ts, prev, n = [], -d - 10, 0
    for s in range(7):
        t = tneed[("g", s)]
        ts += [prev + (t - prev) * (i + 1) / 6 for i in range(6)]; prev = t
    for g in range(7, 21):
        t = tneed[("g", g)]
        ts += [prev + (t - prev) * (i + 1) / 4 for i in range(4)]; prev = t
    nd = LA
    last = -1
    while nd - LA < len(ts):
        p = max(int(ts[nd - LA]) + 1, last, 0)
        tok = D[nd][1]
        if tok[0] == "g" and tok[1] >= 6: p = max(p, tlast[tok[1] - 6])
        if p >= NM1: break
        post[p].extend(D[nd][0]); last = p; nd += 1

    F = []
    def f(t, **k): F.extend(L(t, **k))
    z0, z1, z2, z3, z4, z5, z6 = range(scr, scr + 7)
    f(f"""s_getreg_b32 s{sXT}, hwreg(HW_REG_XCC_ID, 0, 4)
s_lshl2_add_u32 s{sA}, s{sJ}, {PFL}
s_add_u32 s{sXT}, s{sXT}, s{sTAG}
v_mov_b32 v{z0}, s{sXT}
buffer_store_dword v{z0}, off, {S(dPO,4)}, s{sA} sc1""", at=P["hel"])
    f(f"""v_lshlrev_b32 v{raw+2}, 16, v{raw+2}
v_mul_f32 v{raw+2}, {fb(LOG2E)}, v{raw+2}
v_exp_f32 v{raw+2}, v{raw+2}
v_lshlrev_b32 v{raw}, 16, v{raw}
v_lshlrev_b32 v{raw+1}, 16, v{raw+1}
v_cvt_pk_bf16_f32 v{raw+2}, v{raw+2}, v{raw+2}
v_lshlrev_b32 v{z0}, 28, v{vL}
v_and_b32 v{z0}, 0x80000000, v{z0}
v_lshlrev_b32 v{raw+2}, 16, v{raw+2}
v_xor_b32 v{raw+1}, v{z0}, v{raw+1}
v_xor_b32 v{raw+1}, 0x80000000, v{raw+1}
v_xor_b32 v{z0}, 2.0, v{z0}
v_mul_f32 v{z1}, v{raw+2}, v{raw}
v_mul_f32 v{z2}, v{raw+2}, v{raw+1}
v_mul_f32 v{z1}, {fb(LOG2E)}, v{z1}
v_mul_f32 v{z2}, 0.15915494, v{z2}
v_exp_f32 v{z1}, v{z1}
v_rndne_f32 v{z3}, v{z2}
v_sub_f32 v{z2}, v{z2}, v{z3}
v_cos_f32 v{z3}, v{z2}
v_sin_f32 v{z4}, v{z2}
v_mul_f32 v{z5}, v{raw}, v{raw}
v_fmac_f32 v{z5}, v{raw+1}, v{raw+1}
v_rcp_f32 v{z5}, v{z5}
v_mul_f32 v{cL}, v{z3}, v{z1}
v_mul_f32 v{cL+1}, v{z4}, v{z1}
v_mul_f32 v{z5}, v{z5}, v{z0}
v_add_f32 v{z1}, -1.0, v{cL}
v_mul_f32 v{z2}, v{z1}, v{raw}
v_fmac_f32 v{z2}, v{cL+1}, v{raw+1}
v_mul_f32 v{cS}, v{z2}, v{z5}
v_mul_f32 v{z2}, v{cL+1}, v{raw}
v_fma_f32 v{z2}, -v{z1}, v{raw+1}, v{z2}
v_mul_f32 v{cS+1}, v{z2}, v{z5}""", at=8)
    def sq(dst, src):
        f(f"""v_mul_f32 v{z6}, v{src+1}, v{src+1}
v_add_f32 v{z5}, v{src}, v{src}
v_fma_f32 v{dst}, v{src}, v{src}, -v{z6}
v_mul_f32 v{dst+1}, v{z5}, v{src+1}""")
    sq(z0, cL); sq(z0, z0); sq(z0, z0); sq(cL16, z0); sq(cL32, cL16); sq(cL64, cL32)
    sq(z0, cL64); sq(z0, z0); sq(cL512, z0); sq(cL1K, cL512)
    f(f"""v_and_b32 v{z0}, 1, v{vL}
v_lshlrev_b32 v{z0}, 4, v{z0}
v_lshlrev_b32 v{z0}, v{z0}, v{raw+3}
v_bfe_u32 v{z1}, v{vL}, 1, 2
v_bfe_u32 v{z2}, v{vL}, 4, 1
v_lshl_add_u32 v{z1}, v{z2}, 2, v{z1}
v_bfe_u32 v{z2}, v{vL}, 3, 1
v_xor_b32 v{z2}, v{z2}, v{vH}
v_lshl_add_u32 v{z1}, v{z2}, 3, v{z1}""")
    for i in range(4):
        f(f"ds_read_b128 {V(rawb+4*i,4)}, v{vP2} offset:{256+64*(i>>1)+16*(i&1)}")
    for i in range(8):
        f(f"v_cmp_eq_u32 vcc, {i}, v{z1}")
        f(f"v_lshlrev_b32 v{accF+32*(i>>2)+4*(i&3)}, 16, v{rawb+2*i}", ver="bias")
        f(f"v_and_b32 v{accF+32*(i>>2)+4*(i&3)+1}, 0xffff0000, v{rawb+2*i}", ver="bias")
        f(f"v_cndmask_b32 v{dia+i}, 0, v{z0}", ver="dia")
        f(f"v_lshlrev_b32 v{accF+32*(i>>2)+4*(i&3)+2}, 16, v{rawb+2*i+1}", ver="bias")
        f(f"v_and_b32 v{accF+32*(i>>2)+4*(i&3)+3}, 0xffff0000, v{rawb+2*i+1}", ver="bias")
    NFA = len(F)

    DPP = "row_ror:8 row_mask:0xf bank_mask:0xf"
    def cm1(dst, m, zz, add): return f"v_fma_f32 v{dst}, v{m}, v{zz}, {add}"
    def cm2(dst, m, zz, neg=""): return f"v_fmac_f32_dpp v{dst}, v{zz}, {neg}v{m+1} {DPP}"
    ea, eb = [vT, vT + 1], [vT + 2, vT + 3]
    pa, pb = accS, accS + 16
    for q in range(1, 16):
        da, db = ea[q & 1], eb[q & 1]
        f("\n".join([cm1(da, cL, pa, f"v{accS+q}"), cm1(db, cL, pb, f"v{accS+16+q}"), cm2(da, cL, pa), cm2(db, cL, pb)]),
          at=S1 - 1)
        pa, pb = da, db
    e0, e32, elo, ehi = pa, vT, vT + 4, vT + 5
    f(f"""v_lshlrev_b32 v{vT+6}, 4, v{vN}
s_lshl_b32 s{sT0}, s{sW}, 2
{cm1(elo, cL16, e0, f'v{pb}')}
{cm2(elo, cL16, e0)}
s_add_u32 s{sT0}, s{sT0}, {GP}
v_mov_b32 v{ehi}, v{elo}
v_add_u32 v{vT+2}, s{sT0}, v{vT+6}
s_sub_u32 s{sT1}, 31, s{sR}
v_permlane32_swap_b32 v{elo}, v{ehi}
s_lshl_b32 s{sT1}, s{sT1}, 8
v_mov_b32 v{vE1}, s{sTAG}
{cm1(vE0, cL32, elo, f'v{ehi}')}
{cm2(vE0, cL32, elo)}
v_lshl_add_u32 v{vT}, v{vN}, 3, s{sT1}
buffer_store_dwordx2 {V(vE0,2)}, v{vT}, {S(dE,4)}, 0 offen sc1
ds_write_b32 v{vT+2}, a{aG}
ds_write_b32 v{vT+2}, a{aG+16} offset:512""")
    F[-1].tok = "gpw"
    vEg = vT
    f(f"""v_lshl_add_u32 v{vEg}, v{vH}, 12, v{vT}
v_add_u32 v{vEg}, 256, v{vEg}
v_add_u32 v{vT+6}, {GP}, v{vT+6}""")
    F.append(needlg("gpw")); f("s_barrier")
    g0 = rawb
    f(f"""ds_read_b128 {V(g0,4)}, v{vT+6}
ds_read_b128 {V(g0+4,4)}, v{vT+6} offset:512""")
    def scale(lo, hi):
        for q in range(lo, hi):
            t = vT + 2 + (q & 1)
            f(f"v_mul_f32_dpp v{t}, v{accS+q}, v{cS+1} {DPP}\nv_fma_f32 v{accS+q}, v{accS+q}, v{cS}, v{t}")
    scale(0, 8)
    f(f"""v_add_f32 v{g0}, v{g0}, v{g0+1}
v_add_f32 v{g0+4}, v{g0+4}, v{g0+5}
v_add_f32 v{g0+2}, v{g0+2}, v{g0+3}
v_add_f32 v{g0+6}, v{g0+6}, v{g0+7}
v_add_f32 v{g0}, v{g0}, v{g0+2}
v_add_f32 v{g0+4}, v{g0+4}, v{g0+6}
v_mul_f32 v{g0}, {fb(-LOG2E)}, v{g0}
v_mul_f32 v{g0+4}, {fb(-LOG2E)}, v{g0+4}
v_exp_f32 v{g0}, v{g0}
v_exp_f32 v{g0+4}, v{g0+4}
v_bfe_u32 v{g0+1}, v{vN}, 2, 1
v_add_f32 v{g0}, 1.0, v{g0}
v_add_f32 v{g0+4}, 1.0, v{g0+4}
v_rcp_f32 v{g0}, v{g0}
v_rcp_f32 v{g0+4}, v{g0+4}
v_lshrrev_b32 v{g0+2}, 3, v{vN}
v_lshl_add_u32 v{g0+1}, v{g0+1}, 3, v{g0+2}
v_and_b32 v{g0+2}, 3, v{vN}
v_lshl_add_u32 v{g0+1}, v{g0+1}, 2, v{g0+2}
v_lshlrev_b32 v{g0+1}, 2, v{g0+1}
v_add_u32 v{g0+1}, {GT}, v{g0+1}
v_sub_f32 v{omg}, 1.0, v{g0}
v_sub_f32 v{omg+2}, 1.0, v{g0+4}
ds_write_b32 v{g0+1}, v{g0}
ds_write_b32 v{g0+1}, v{g0+4} offset:64
v_lshlrev_b32 v{g0+2}, 7, v{vH}
v_add_u32 v{g0+2}, {GT}, v{g0+2}
s_lshr_b32 s{sT0}, s{sW}, 1
s_lshl_b32 s{sT1}, s{sT0}, 6
v_add_u32 v{g0+3}, s{sT1}, v{g0+2}
v_mov_b32 v{omg+1}, v{omg}
v_mov_b32 v{omg+3}, v{omg+2}""")
    for i in range(4): f(f"ds_read_b128 {V(Eg+4*i,4)}, v{g0+3} offset:{16*i}")
    scale(8, 12)
    for i in range(8): f(f"ds_read_b128 {V(gR+4*i,4)}, v{g0+2} offset:{16*i}")
    for q in range(16): f(f"v_mul_f32 v{accD+q}, v{accD+q}, v{Eg+q}")
    gl = [f"buffer_load_dwordx2 {V(Eg+2*i,2)}, v{vEg}, {S(dE,4)}, 0 offen offset:{256*i} sc1" for i in range(16)]
    hld = f"""v_min_u32 v{vPo}, 6, v{vL}
v_lshlrev_b32 v{vPo}, 2, v{vPo}
buffer_load_dword v{vPo}, v{vPo}, {S(dPO,4)}, 0 offen offset:{PFL} sc1"""
    f(hld, at=P["egat"])
    for i in range(16):
        f(gl[i], at=P["egat"])
        scale(12 + i, 13 + i)
    scale(28, 32)
    vCnt = vE1
    f(f"""v_lshlrev_b32 v{vT+2}, 4, v{vH}
v_sub_u32 v{vT+2}, s{sR}, v{vT+2}
v_med3_i32 v{vT+2}, v{vT+2}, 0, 16
v_mul_lo_u32 v{vCnt}, v{vT+2}, s{sTAG}
v_cmp_eq_u32 vcc, 1, v{vH}
v_lshrrev_b32 v{vT+2}, 1, v{vN}
v_and_b32 v{vT+2}, 7, v{vT+2}
v_cndmask_b32 v{cL32}, 1.0, v{cL32}
v_cndmask_b32 v{cL32+1}, 0, v{cL32+1}
v_cndmask_b32 v{elo}, 0, v{elo}
v_lshlrev_b32 v{vT+2}, 4, v{vT+2}
v_lshl_add_u32 v{vT+2}, v{vN}, 7, v{vT+2}
v_lshl_add_u32 v{vT+2}, v{vH}, 13, v{vT+2}
s_lshl_b32 s{sT1}, s{sT3}, 12
v_add_u32 v{vC[0]}, s{sT1}, v{vT+2}""")
    for k in range(1, 8): f(f"v_xor_b32 v{vC[k]}, {16*k}, v{vC[0]}")
    for k in range(8): f(f"v_add_u32 v{vC[8+k]}, 0x10000, v{vC[k]}")
    chk = [f"v_add3_u32 v{vE0}, v{Eg+1}, v{Eg+3}, v{Eg+5}"]
    for i in range(3, 15, 2): chk.append(f"v_add3_u32 v{vE0}, v{vE0}, v{Eg+2*i+1}, v{Eg+2*i+3}")
    chk += [f"v_add_u32 v{vE0}, v{vE0}, v{Eg+31}", f"v_cmp_ne_u32 vcc, v{vE0}, v{vCnt}"]
    f("\n".join(chk), at=P["echk"])
    f("s_cbranch_vccnz L_eretry\nL_eback:")
    OUT = L("L_eretry:\n" + ("s_add_u32 s44, s44, 1\n" if P["prof"] else "") + "\n".join(gl) + f"""
s_add_u32 s{sCNT}, s{sCNT}, 1
s_waitcnt vmcnt(0)
s_cmp_gt_u32 s{sCNT}, 0x8000
s_cbranch_scc1 L_eback
""" + "\n".join(chk) + "\ns_cbranch_vccnz L_eretry\ns_branch L_eback")
    for i in range(6, -1, -1):
        a0, a1, b0, b1 = Eg + 2 * i, Eg + 2 * i + 2, Eg + 16 + 2 * i, Eg + 16 + 2 * i + 2
        f(f"v_fmac_f32 v{a0}, v{cL64}, v{a1}\nv_fmac_f32 v{b0}, v{cL64}, v{b1}\n{cm2(a0, cL64, a1)}\n{cm2(b0, cL64, b1)}")
    k0, k1, c0, c1, hw = Eg, Eg + 1, Eg + 2, Eg + 3, Eg + 8
    f(f"""v_fmac_f32 v{k0}, v{cL512}, v{Eg+16}
v_and_b32 v{hw}, 3, v{vN}
{cm2(k0, cL512, Eg+16)}
v_mov_b32 v{k1}, v{k0}
v_lshlrev_b32 v{hw}, 4, v{hw}
v_lshl_add_u32 v{hw}, v{vN}, 7, v{hw}
v_permlane32_swap_b32 v{k0}, v{k1}
v_lshl_add_u32 v{hw}, v{vH}, 6, v{hw}
v_fmac_f32 v{k0}, v{cL1K}, v{k1}
{cm2(k0, cL1K, k1)}
s_add_u32 s{sT1}, s{sWQ}, {HB}
{cm1(c0, cL32, k0, f'v{elo}')}
{cm2(c0, cL32, k0)}
v_add_u32 v{hw}, s{sT1}, v{hw}
{cm1(c1, cL16, c0, f'v{e0}')}
{cm2(c1, cL16, c0)}
v_mul_f32_dpp v{k0}, v{c0}, v{cS+1} {DPP}
v_xor_b32 v{hw+1}, 16, v{hw}
v_mul_f32_dpp v{k1}, v{c1}, v{cS+1} {DPP}
v_fmac_f32 v{k0}, v{c0}, v{cS}
v_fmac_f32 v{k1}, v{c1}, v{cS}""")
    pa, pb = k0, k1
    for q in range(16):
        da, db = accS + q, accS + 16 + q
        f(f"v_fmac_f32 v{da}, v{cL}, v{pa}\nv_fmac_f32 v{db}, v{cL}, v{pb}\n{cm2(da, cL, pa, '-')}\n{cm2(db, cL, pb, '-')}")
        pa, pb = da, db
    f(f"v_xor_b32 v{hw+2}, 32, v{hw}\nv_xor_b32 v{hw+3}, 48, v{hw}")
    for i in range(4):
        for q in range(8 * i, 8 * i + 8): f(f"v_mul_f32 v{gR+q}, v{gR+q}, v{accS+q}")
        for q in range(4): f(f"v_cvt_pk_bf16_f32 v{Eg+16+4*i+q}, v{gR+8*i+2*q}, v{gR+8*i+2*q+1}")
        f(f"ds_write_b128 v{hw+i}, {V(Eg+16+4*i,4)}")
    if P["prof"]:
        post[S1 - 1][0:0] = stamp()
        for k in P.get("st1", []): post[k][0:0] = stamp(True)
    st, left = spine(mf, post, F, P["bud"])
    info = dict(left=len(left), nd=nd)
    M += st
    M += dump("s1")
    M += stamp()
    M += left
    M += dump("scan")
    M += stamp()

    K1, K3, K4, mt, mh, mo = 80, 82, 84, 88, 96, 104
    e(f"""v_mov_b32 v{K1}, {fb(LOG2E)}
v_mov_b32 v{K1+1}, {fb(LOG2E)}
v_mov_b32 v{K3}, {fb(0.7071067811865476)}
v_mov_b32 v{K3+1}, {fb(0.7071067811865476)}
v_mov_b32 v{K4}, 0.5
v_mov_b32 v{K4+1}, 0.5
v_lshlrev_b32 v{vLin}, 4, v{vL}
s_add_u32 s{sT1}, s{sWQ}, {AB}
v_add_u32 v{vAw}, s{sT1}, v{vLin}
s_lshl_b32 s{sT1}, s{sT0}, 14
s_add_u32 s{sT1}, s{sT1}, {AB}
v_add_u32 v{vAr}, s{sT1}, v{vLin}
v_bfe_u32 v{t0}, v{vL}, 2, 2
v_lshl_add_u32 v{t1}, v{vH}, 3, v{t0}
v_lshlrev_b32 v{t1}, 7, v{t1}
v_and_b32 v{t2}, 1, v{vL}
v_lshl_add_u32 v{t1}, v{t2}, 6, v{t1}
v_and_b32 v{t2}, 2, v{vL}
v_lshl_add_u32 v{t1}, v{t2}, 2, v{t1}
v_lshlrev_b32 v{t2}, 4, v{t0}
v_and_b32 v{t3}, 16, v{vL}
v_xor_b32 v{t2}, v{t2}, v{t3}
s_lshl_b32 s{sT1}, s{sT0}, 5
v_xor_b32 v{t2}, s{sT1}, v{t2}
v_add_u32 v{t1}, v{t1}, v{t2}
v_add_u32 v{vHr}, {HB}, v{t1}
v_lshl_add_u32 v{t0}, v{vH}, 4, v{t0}
v_lshlrev_b32 v{t0}, 7, v{t0}
v_bfe_u32 v{t1}, v{vL}, 3, 1
v_xor_b32 v{t1}, s{sT3}, v{t1}
v_lshl_add_u32 v{t0}, v{t1}, 6, v{t0}
v_lshl_add_u32 v{t0}, v{t3}, 1, v{t0}
v_and_b32 v{t1}, 3, v{vL}
v_lshl_add_u32 v{vW2}, v{t1}, 3, v{t0}
v_add_u32 v{vW2+1}, 0x10000, v{vW2}
v_add_u32 v{vW2+2}, 0x20000, v{vW2}""")
    mf = []
    d2, bd, sel = P["d2"], P["bd"], P["sel"]
    def fragreads(q, kx):
        fr = F2 + 4 * ((8 * q + kx) % RING)
        base = slot(21 + q) * SL
        wn, of = base >> 16, base & 0xffff
        if q % 3 == 0:
            return fr, [I(f"ds_read_b128 {A(fr,4)}, v{vC[8*wn+kx]} offset:{of}", ver=("F", q, kx))]
        return fr, [I(f"ds_read_b64_tr_b16 {A(fr+2*ee,2)}, v{vW2+wn} offset:{of+(32*(kx>>1)+8*(kx&1)+4*ee)*128}",
                      ver=("F", q, kx)) for ee in range(2)]
    early, pos, spos, Rq, Bq, Aq = [], {}, {}, [], [], []
    def selm(u):
        spos[u] = len(mf)
        acc = V(accD, 16) if u >= 3 else V(acc2 + 16 * ((u + 3) & 1), 16)
        if u < 3: assert 24 * (u + 3) < sel[u] < 24 * (u + 4)
        for i in range(2): mfma(acc, V(Sel + 4 * i, 4), V(inb[u] + 4 * i, 4), acc)
    for q in range(21):
        u = q // 3
        acc = V(accD, 16) if u == 6 else V(acc2 + 16 * (u & 1), 16)
        for kx in range(8):
            km = 8 * q + kx
            for s_ in range(6):
                if sel[s_] == km: selm(s_)
            k = pos[km] = len(mf)
            if kx == 0 and q >= 2:
                Bq.append(At(([needlg("act")] if q == 2 else []) + [need(("g", 21 + q)), I("s_barrier")], k - bd, k - bd, name=("b", q)))
            fr, r_ = fragreads(q, kx)
            if k - d2 < 0: early.extend(r_)
            else: Rq += [At(x, pos.get(km - RING, -2) + 1, k - d2, after=[("b", q)] if q >= 2 else []) for x in r_]
            if q % 3 == 0: a_, av = A(aH + 4 * kx, 4), ("h", kx)
            else:
                ka = 8 * (q % 3 - 1) + kx
                a_, av = A(4 * ka, 4), ("act", ka)
            mfma(acc, a_, A(fr, 4), acc if (u == 6 or q % 3 or kx) else "0", [(A(fr, 4), ("F", q, kx)), (a_, av)])
    NM2 = len(mf)
    for ka in range(16):
        Aq.append(At(I(f"ds_read_b128 {A(4*ka,4)}, v{vAr} offset:{1024*ka}", ver=("act", ka), tok="act" if ka == 15 else None),
                     -1, min(8 + ka - d2, (ka * (15 - bd)) // 16 - 1)))
    hreads = [I(f"ds_read_b64_tr_b16 {A(aH+4*kx+2*ee,2)}, v{vHr} offset:{(16*kx+4*ee)*128}", ver=("h", kx))
              for kx in range(8) for ee in range(2)] + early
    xd = []
    while D[nd][1][1] < 27: xd.append(D[nd][0]); nd += 1
    uses = [(0, 1), (0, 0), (1, 1), (1, 0)]
    for b in range(8):
        ft, rt = uses[b >> 1]; kk = b & 1
        h = accF + 32 * ft + 16 * rt + 8 * kk
        o = mo + 4 * (b & 1)
        B = []
        for p in range(4): B += L(f"v_pk_fma_f32 {V(mt+2*p,2)}, {V(h+2*p,2)}, {V(K1,2)}, {V(K4,2)} neg_lo:[0,0,1] neg_hi:[0,0,1]")
        for p in range(8): B += L(f"v_exp_f32 v{mt+p}, v{mt+p}")
        for p in range(4): B += L(f"v_pk_add_f32 {V(mt+2*p,2)}, {V(mt+2*p,2)}, {V(K3,2)}")
        for p in range(4): B += L(f"v_pk_fma_f32 {V(mt+2*p,2)}, {V(mt+2*p,2)}, {V(mt+2*p,2)}, {V(K4,2)}")
        for p in range(8): B += L(f"v_rcp_f32 v{mt+p}, v{mt+p}")
        for p in range(4): B += L(f"v_pk_mul_f32 {V(mh+2*p,2)}, {V(h+2*p,2)}, {V(omg+2*rt,2)}")
        for p in range(4): B += L(f"v_pk_fma_f32 {V(mh+2*p,2)}, {V(mh+2*p,2)}, {V(mt+2*p,2)}, {V(mh+2*p,2)} neg_lo:[1,0,0] neg_hi:[1,0,0]")
        for p in range(4): B += L(f"v_cvt_pk_bf16_f32 v{o+p}, v{mh+2*p}, v{mh+2*p+1}")
        B += L(f"ds_write_b128 v{vAw}, {V(o,4)} offset:{rt*16384+(2*ft+kk)*1024}")
        extra = []
        if b < 4:
            n_ = (len(xd) + 3 - b) // (4 - b)
            extra = xd[:n_]; xd = xd[n_:]
        else:
            n_ = (len(hreads) + 6 - b) // (7 - b) if b < 7 else 0
            extra = [[x] for x in hreads[:n_]]; hreads = hreads[n_:]
        if b == 4: M += [lgkm0(), need(("g", 21)), I("s_barrier")]
        step = max(1, len(B) // (len(extra) + 1))
        for i, x in enumerate(B):
            M.append(x)
            if extra and i % step == step - 1: M += extra.pop(0)
        assert not extra
    M += [lgkm0(), need(("g", 22)), I("s_barrier")]
    M += dump("x")
    M += stamp()

    def gp(km): return pos[km] if km in pos else None
    Dq, last = [], -1
    while nd < len(D):
        q = D[nd][1][1] - 21
        qb = max(2, q - 7)
        lo = 0 if q == 6 else pos[8 * qb] - bd
        p = max(lo + 1, last + (1 if q < 10 else 2))
        Dq.append(At(D[nd][0], p - 1, p, after=[] if q == 6 else [("b", qb)])); last = p; nd += 1
    Vq = [At(x, 8) for x in L(f"""v_mov_b32 v{vTag}, s{sTAG}
v_lshlrev_b32 v{vL4}, 2, v{vL}
v_lshrrev_b32 v{vMo}, 3, v{vL}
v_mul_u32_u24 v{vMo}, {1792-128}, v{vMo}
v_add_u32 v{vMo}, v{vMo}, v{vLin}
v_add_u32 v{vMo+1}, {8*1792}, v{vMo}
s_add_u32 s{sTG1}, s{sTAG}, 1""")]
    V2 = [At(x, 8) for x in L(f"""v_and_b32 v{t0}, 1, v{vL}
v_lshlrev_b32 v{t0}, 4, v{t0}
v_mov_b32 v{t1}, 0x3f80
v_lshlrev_b32 v{t0}, v{t0}, v{t1}
v_lshrrev_b32 v{t1}, 3, v{vN}
v_bfe_u32 v{t2}, v{vL}, 1, 1
v_lshl_add_u32 v{t1}, v{t1}, 1, v{t2}
v_bfe_u32 v{t2}, v{vL}, 2, 1
v_xor_b32 v{t2}, v{t2}, v{vH}
v_lshl_add_u32 v{t1}, v{t2}, 3, v{t1}
v_mul_u32_u24 v{t2}, {32*1792}, v{vH}
v_lshl_add_u32 v{vOut}, v{vN}, 2, v{t2}
v_lshl_add_u32 v{vOut}, s{sJ}, 8, v{vOut}""")]
    for i in range(0, 8, 2):
        V2.append(At(L(f"""v_cmp_eq_u32 vcc, {i}, v{t1}
v_cmp_eq_u32 s[42:43], {i+1}, v{t1}
s_movk_i32 s{sOO+i}, {3584*i}
v_cndmask_b32 v{Sel+i}, 0, v{t0}
v_cndmask_b32 v{Sel+i+1}, 0, v{t0}, s[42:43]"""), 8))
        V2.append(At(L(f"s_movk_i32 s{sOO+i+1}, {3584*(i+1)}"), 8))
    for i, a_ in enumerate(reversed(V2)): a_.dl = min(list(spos.values()) + [NM2]) - 4 - 3 * i
    def chks(dst, r, hop): return [f"v_add3_u32 v{dst}, v{r}, v{r+1}, s{sTG1 if hop else sTAG}"] + [f"v_add3_u32 v{dst}, v{dst}, v{r+2*i}, v{r+2*i+1}" for i in (1, 2, 3)]
    def msg(op, r, tile, c, sd, sw, fl):
        pre_ = f"s_mul_i32 s{sw}, s{tile}, {4*PIN//128}"
        if c < NO:
            pre_ += f"\ns_lshl_b32 s{sd}, s{tile}, 1" if c == 0 else f"\ns_lshl1_add_u32 s{sd}, s{tile}, {32*1792}"
            dat = [f"buffer_{op}_dwordx4 {V(r+4*i,4)}, v{vMo+i}, {S(dO,4)}, s{sd} offen {fl}" for i in range(2)]
            return pre_, dat + [f"buffer_{op}_dword v{r+8}, v{vL4}, {S(dPO,4)}, s{sw} offen offset:{PCK+256*c} {fl}"]
        if PCK > 2048:
            pre_ += f"\ns_add_u32 s{sd}, s{sw}, {2048*(c-NO)}\ns_add_u32 s{sw}, s{sw}, {PCK-2048}"
        else: sd = sw
        dat = [f"buffer_{op}_dwordx4 {V(r+4*i,4)}, v{vLin}, {S(dPO,4)}, s{sd} offen offset:{1024*i} {fl}" for i in range(2)]
        return pre_, dat + [f"buffer_{op}_dword v{r+8}, v{vL4}, {S(dPO,4)}, s{sw} offen offset:{2048+256*c} {fl}"]
    Xq = []
    pre = P.get("pre", "")
    for u in range(6):
        a_ = acc2 + 16 * (u & 1); k0 = pos[24 * u + 23]
        g0_, g1_, g2_ = (k0 + x for x in P["sto"])
        pre_, mm = msg("store", stg, sU + u, u % 3, sT0, sA, "@X")
        for p in range(8):
            Vq.append(At(L(f"v_cvt_pk_bf16_f32 v{stg+p}, v{a_+2*p}, v{a_+2*p+1}"), k0 + 2, (g0_ if p < 4 else g1_) - 1, name=("cv", u, p)))
            if p == 1: Vq.append(At(L(pre_), k0))
        for i, x in enumerate(chks(stg + 8, stg, u // 3)): Vq.append(At(L(x), k0, g2_ - 1, name=("ck", u, i)))
        if "pst" in pre: continue
        for i, g_ in enumerate((g0_, g1_)):
            Xq.append((g_, At(L(mm[i]), g_, g_, after=[("cv", u, 4 * i + 3)], solo=True)))
        Xq.append((g2_, At(L(mm[2]), g2_ - 1, g2_, after=[("ck", u, 3)])))
    OUT2 = []
    def retry(lab, bit, ld, c):
        OUT2.extend(L(f"""L_r{lab}:
{f"s_or_b32 s45, s45, {1 << bit}" if P["prof"] else ""}
{ld}
s_add_u32 s{sCNT}, s{sCNT}, 1
s_waitcnt vmcnt(0)
s_cmp_gt_u32 s{sCNT}, 0x8000
s_cbranch_scc1 L_b{lab}
{c}
s_cbranch_vccnz L_r{lab}
s_branch L_b{lab}"""))
        return L(c + ("" if "nochk" in pre else f"\ns_cbranch_vccnz L_r{lab}") + f"\nL_b{lab}:")
    Xq.append((18, At(L(f"v_cmp_ne_u32 vcc, s{sXT}, v{vPo}\ns_cbranch_vccnz L_mode\nL_near:"), 18, 20)))
    MODE = L(f"""L_mode:
{hld}
s_add_u32 s{sCNT}, s{sCNT}, 1
s_waitcnt vmcnt(0)
s_cmp_gt_u32 s{sCNT}, 0x8000
s_cbranch_scc1 L_nearF
v_subrev_u32 v{t3}, s{sTAG}, v{vPo}
v_cmp_lt_u32 vcc, 15, v{t3}
s_cbranch_vccnz L_mode
v_cmp_ne_u32 vcc, s{sXT}, v{vPo}
s_cbranch_vccnz L_nearF
s_branch L_near""")
    def pl(u, sd=sROT, sw=sB):
        pre_, mm = msg("load", inb[u], sU + min(u + 3, 6), u % 3, sd, sw, "sc1")
        return [pre_ + "\n" + mm[0], mm[1], mm[2]]
    def pchk(u):
        return retry(f"p{u}", u, "\n".join(pl(u, sT1, 42)), "\n".join(chks(t3, inb[u], u // 3)) + f"\nv_cmp_ne_u32 vcc, v{t3}, v{inb[u]+8}")
    tail = []
    for u in range(6):
        k = P["pld"][u]
        if k < 168 and "pld" not in pre:
            for i, x in enumerate(pl(u)): Xq.append((pos[k] + i / 4, At(L(x), pos[k], min(NM2 - 1, pos[k] + 1 + i))))
        if u in spos:
            c = pchk(u)
            Xq.append((spos[u] - 2, At(c[:4], spos[u] - 2, spos[u] - 2)))
            Xq.append((spos[u] - 1, At(c[4:], spos[u] - 1, spos[u] - 1)))
    Xq.sort(key=lambda t: t[0])
    Sq = [At(stamp(True), pos[k], pos[k]) for k in P.get("st2", [])]
    st, left = sched(mf, [Sq, Bq, [x[1] for x in Xq], Dq, Aq, Rq, Vq, V2], P.get("bud2", 32), P["co"], d2 - 1)
    assert not left
    M += st
    M += stamp()
    late = [u for u in range(6) if P["pld"][u] >= 168]
    for u in range(6):
        for u2 in late:
            if P["pld"][u2] - 168 == u or (u2 == u and P["pld"][u2] - 168 > u):
                if "pld" not in pre: e("\n".join(pl(u2)))
        if u in spos: continue
        M += pchk(u)
        for i in range(2): e(f"v_mfma_f32_32x32x16_bf16 {V(accD,16)}, {V(Sel+4*i,4)}, {V(inb[u]+4*i,4)}, {V(accD,16)}")
    M += stamp()
    for q in range(16):
        e(f"buffer_store_dword v{accD+q}, v{vOut}, {S(dO,4)}, s{sOO+q//2} offen offset:{1792*(q&1)} {P['ost']}")
    if P.get("amp"):
        a_, b_ = P["amp"]
        M += [vm0()] + stamp(True) + L("s_waitcnt lgkmcnt(0)")
        e(f"""s_cmp_lg_u32 s2, {P.get("ampw", 141)}
s_cbranch_scc1 L_noamp
s_sub_u32 s44, s{sST+2*b_}, s{46 if a_ < 0 else sST+2*a_}
s_min_u32 s44, s44, 10000
s_lshl_b32 s44, s44, 4
L_amp:
s_memrealtime s[42:43]
s_waitcnt lgkmcnt(0)
s_sub_u32 s45, s42, s{sST+2*nst[0]-2}
s_cmp_lt_u32 s45, s44
s_cbranch_scc1 L_amp
L_noamp:""")
    elif P["prof"]:
        M += [vm0()] + stamp() + L("s_waitcnt lgkmcnt(0)")
        e(f"""s_memrealtime s[42:43]
s_mul_i32 s{sT0}, s{sR}, 7
s_add_u32 s{sT0}, s{sT0}, s{sJ}
s_lshl_b32 s{sT0}, s{sT0}, 2
s_add_u32 s{sT0}, s{sT0}, s{sW}
s_lshl_b32 s{sT0}, s{sT0}, 6
s_add_u32 s{sT0}, s{sT0}, {WS_DBG}
v_mov_b32 v0, s{sT0}
s_waitcnt lgkmcnt(0)""")
        for i in range(nst[0]):
            e(f"v_mov_b32 v4, s{sST+2*i}\nglobal_store_dword v0, v4, {S(pWS,2)} offset:{4*i}")
        e(f"v_mov_b32 v4, s44\nglobal_store_dword v0, v4, {S(pWS,2)} offset:40")
        e(f"v_mov_b32 v4, s45\nglobal_store_dword v0, v4, {S(pWS,2)} offset:44")
        e(f"v_mov_b32 v4, s46\nglobal_store_dword v0, v4, {S(pWS,2)} offset:52")
        e(f"v_mov_b32 v4, s47\nglobal_store_dword v0, v4, {S(pWS,2)} offset:48")
        e(f"v_mov_b32 v4, s{sCNT}\nglobal_store_dword v0, v4, {S(pWS,2)} offset:56")
        e(f"v_mov_b32 v4, s42\nglobal_store_dword v0, v4, {S(pWS,2)} offset:60")
    e(f"""s_lshl_b32 s{sT0}, s{sJ}, 2
s_add_u32 s{sT0}, s{sT0}, s{sW}
s_lshl_b32 s{sT0}, s{sT0}, 5
s_add_u32 s{sT0}, s{sT0}, s{sR}
s_cmp_lg_u32 s{sT0}, 31
s_cbranch_scc1 L_exit
v_mov_b32 v0, 0
global_store_dword v0, v{vTag}, {S(pWS,2)} sc1
L_exit:
s_endpgm""")
    if "eld" in pre: M = [x for x in M if not (x.kind == "vld" and x.op.endswith("x2")) and "L_eretry" not in x.text]
    if "esto" in pre: M = [x for x in M if not (x.kind == "vst" and x.op.endswith("x2")) and "L_eretry" not in x.text]
    body, nops = finalize(M, P.get("verbose"))
    drop = P.get("drop", "")
    if "dma" in drop: body = [x for x in body if x.kind != "dma"]
    if "est" in drop: body = [x for x in body if not (x.kind in ("vst", "vld") and x.op.endswith("x2")) and "L_eretry" not in x.text]
    if "bar" in drop: body = [x for x in body if x.op != "s_barrier"]
    if "dsr" in drop: body = [x for x in body if x.kind != "dsr"]
    if "dsw" in drop: body = [x for x in body if x.kind != "dsw"]
    if "wait" in drop: body = [x for x in body if not (x.op == "s_waitcnt" and "lgkmcnt(0)" not in x.text)]
    if "mfma" in drop: body = [x for x in body if x.kind != "mfma"]
    info["nops"] = nops; info["n"] = len(body); info["model"] = model(body)
    PF = L("L_pf:")
    if 1:
        nj = {0: 7, 1: 4, 2: 3, 3: 2}[z]
        PF += L(f"""s_lshr_b32 s50, s2, 3
s_lshl_b32 s50, s50, 8
v_add_u32 v1, s50, v0
s_and_b32 s51, s2, {(1 << z) - 1}
s_mul_i32 s51, s51, 28
s_add_u32 s3, s51, 27
s_lshr_b32 s51, s51, {2 + z}
s_lshr_b32 s3, s3, {2 + z}
s_add_u32 s3, s3, 1
s_and_b32 s4, s2, 7
s_lshr_b32 s4, s4, {z}
v_lshrrev_b32 v2, 6, v1
s_mov_b32 s55, 0x20000
s_mov_b32 s59, 0x20000
s_mov_b32 s63, 0x20000
s_mov_b32 s67, 0x20000
v_readfirstlane_b32 s5, v2
v_lshlrev_b32 v3, 7, v1
v_lshrrev_b32 v4, 2, v1
v_mul_u32_u24 v4, 3584, v4
v_and_b32 v5, 3, v1
v_lshl_add_u32 v4, v5, 7, v4
v_subrev_u32 v5, 448, v1
v_min_u32 v5, v5, v1
v_mul_u32_u24 v5, 896, v5
s_waitcnt lgkmcnt(0)
s_mul_i32 s6, s4, {(4 << z) * 57344}
s_add_u32 s52, s{pX}, s6
s_addc_u32 s53, s{pX+1}, 0
s_mov_b32 s54, {(4 << z) * 57344}
s_lshl_b32 s6, s51, 9
s_add_u32 s56, s{pW1}, s6
s_addc_u32 s57, s{pW1+1}, 0
s_sub_u32 s58, {WSZ}, s6
s_cmp_ge_u32 s5, 7
s_cselect_b32 s60, s{pCIM}, s{pCRE}
s_cselect_b32 s61, s{pCIM+1}, s{pCRE+1}
s_lshl_b32 s6, s51, 7
s_add_u32 s60, s60, s6
s_addc_u32 s61, s61, 0
s_sub_u32 s62, {MSZ}, s6
s_mul_i32 s6, s51, 229376
s_add_u32 s64, s{pW2}, s6
s_addc_u32 s65, s{pW2+1}, 0
s_sub_u32 s66, s3, s51
s_mul_i32 s66, s66, 229376""")
    if 1:
        PF += L(f"""s_and_b32 s50, s2, 7
s_lshl_b32 s50, s50, 2
s_lshr_b32 s51, s2, 3
s_add_u32 s50, s50, s51
s_mul_i32 s51, s50, {28*PIN}
s_add_u32 s51, s51, {WS_P}
s_add_u32 s68, s{pWS}, s51
s_addc_u32 s69, s{pWS+1}, 0
s_mov_b32 s70, {28*PIN}
s_mov_b32 s71, 0x20000
s_mul_i32 s51, s50, {64*1792}
s_add_u32 s72, s{pOUT}, s51
s_addc_u32 s73, s{pOUT+1}, 0
s_mov_b32 s74, {64*1792}
s_mov_b32 s75, 0x20000
v_lshlrev_b32 v7, 7, v0
s_lshl_b32 s50, s2, 15
v_add_u32 v1, s50, v7
s_mov_b32 s79, 0x20000""")
        k = 8
        for c in P["pfo"]:
            if c == ".": PF += L("s_waitcnt vmcnt(0)")
            if c in "x2":
                for i in range(((4 << z) * 448 + 1023) // 1024 if c == "x" else (nj * 1792 + 1023) // 1024):
                    PF += L(f"v_add_u32 v{k}, {i << 17}, v3\nbuffer_load_dword v{k}, v{k}, {'s[52:55]' if c == 'x' else 's[64:67]'}, 0 offen"); k += 1
            if c == "1":
                for i in range(2):
                    PF += L(f"v_add_u32 v6, {i * 256 * 3584}, v4")
                    for jj in range(nj): PF += L(f"buffer_load_dword v{k}, v6, s[56:59], 0 offen offset:{512*jj}"); k += 1
            if c == "c":
                for jj in range(nj): PF += L(f"buffer_load_dword v{k}, v5, s[60:63], 0 offen offset:{128*jj}"); k += 1
            if c in "ABC":
                for ptr, sz in dict(A=((pW1, WSZ),), B=((pCRE, MSZ), (pCIM, MSZ)), C=((pW2, WSZ),))[c]:
                    PF += L(f"s_mov_b32 s76, s{ptr}\ns_mov_b32 s77, s{ptr+1}\ns_mov_b32 s78, {sz}")
                    PF += L(f"buffer_load_dword v{k}, v1, s[76:79], 0 offen"); k += 1
                    if sz > 1 << 20:
                        PF += L(f"v_add_u32 v{k}, 0x100000, v1\nbuffer_load_dword v{k}, v{k}, s[76:79], 0 offen"); k += 1
            if c == "i":
                PF += L(f"""s_getpc_b64 s[80:81]
L_pc:
s_sub_u32 s80, s80, L_pc-{NAME}_kernel
s_subb_u32 s81, s81, 0
s_mov_b32 s82, L_pf-{NAME}_kernel
s_mov_b32 s83, 0x20000
v_lshrrev_b32 v6, 1, v3
buffer_load_dword v{k}, v6, s[80:83], 0 offen"""); k += 1
            if c in "fF":
                for i in range(max(4 if NO else 0, (28 * PIN + 32767) >> 15)):
                    PF += L(f"v_add_u32 v6, {i << 15}, v7")
                    if NO and i < 4: PF += L(f"buffer_load_dword v{k}, v6, s[72:75], 0 offen"); k += 1
                    if i < (28 * PIN + 32767) >> 15: PF += L(f"buffer_load_dword v{k}, v6, s[68:71], 0 offen"); k += 1
                    if c == "F": PF += L("s_waitcnt vmcnt(0)")
    PF += L("L_pe:\ns_endpgm")
    txt = [f"; @launch grid=(256,1,1) block=(256,1,1) lds=163840",
           '.amdgcn_target "amdgcn-amd-amdhsa--gfx950"', ".text", f".globl {NAME}_kernel", ".p2align 8",
           f".type {NAME}_kernel,@function", f"{NAME}_kernel:"]
    near = [x.text for x in body + OUT2]
    far = [re.sub(r"\b(L_\w+)", r"\1F", t).replace("@X", "sc1") for t in near[near.index("L_near:"):]]
    txt += [t.replace("@X", P["sfl"]).rstrip() for t in near] + [x.text for x in OUT + MODE + PF] + far
    txt.append(f""".section .rodata,"a"
.p2align 6
.amdhsa_kernel {NAME}_kernel
  .amdhsa_next_free_vgpr 512
  .amdhsa_next_free_sgpr 102
  .amdhsa_accum_offset 256
  .amdhsa_group_segment_fixed_size 0
  .amdhsa_kernarg_size 136
  .amdhsa_user_sgpr_count 2
  .amdhsa_user_sgpr_kernarg_segment_ptr 1
  .amdhsa_system_sgpr_workgroup_id_x 1
.end_amdhsa_kernel""")
    return "\n".join(txt) + "\n", info

if __name__ == "__main__":
    kw = {}
    for a in sys.argv[2:]:
        k, v = a.split("=", 1); kw[k] = eval(v)
    t, info = gen(**kw)
    open(sys.argv[1], "w").write(t)
    print(info)
```

```python
import sys, collections, re
from asmlib import *

NAME = "gated_mix__ssm_conv_s5__dense_activation_mish__prompt"
LOG2E = 1.4426950408889634
EPC = 0x9E3779B9
XSZ, MSZ, WSZ, OSZ = 2048 * 896, 448 * 896, 448 * 3584, 2048 * 1792
WS_E, WS_P, WS_DBG = 4096, 1 << 20, 18 << 20
SL = 16384
XB = 6 * SL; HB = 6 * SL; AB = 7 * SL
GP = 152 * 1024; GT = 153 * 1024; PR = 154 * 1024
sW, sKB, sR, sJ, sROT, sTAG, sWQ = 3, 4, 11, 12, 13, 14, 15
pX, pLRE, pLIM, pBRE, pBIM, pCRE, pCIM, pDT, pDS, pW1, pB1, pW2, pGW, pOUT, pWS = 16, 18, 20, 22, 24, 26, 28, 30, 32, 36, 38, 40, 42, 44, 48
sT0, sT1 = 50, 51
dX, dBR, dBI, dW1, dC, dW2, dE, dPO, dO = 52, 56, 60, 64, 68, 72, 76, 84, 88
sA, sB, sTG1, sXT = 80, 81, 82, 83
vPo = 42
sU, sCNT, sSO, sT3 = 92, 99, 100, 101
sOO = 34
sST = 16
vL, vN, vH = 1, 2, 3
vdX, vdB, vdW1, vdC, vdW2 = 4, 6, 10, 14, 18
vX, vB, vG, vW1, vP, vP2, vXD = 22, 26, 34, 35, 39, 40, 41
cL, cL16, cL32, cL64, cL512, cL1K, cS = 43, 45, 47, 49, 51, 53, 55
vT = 57
accD, dia, xD, Gx, gwf, raw = 64, 80, 88, 96, 104, 108
Bfr, rawb, accS, Wfr, accF = 112, 128, 144, 176, 192
scr = 208
aG, aH = 224, 224
omg = 4
vE0, vE1 = 8, 9
vC = [22 + i for i in range(8)] + [30, 31, 32, 33, 34, 39, 40, 41]
Eg, gR = 112, 80
F2, RING = 64, 10
vW2 = 168
vHr, vAw, vAr, vLin, vOut = 171, 172, 173, 174, 175
stg, acc2, Sel = 176, 192, 248
vTag, vL4, vMo = 186, 187, 190
inb = [80 + 10 * i for i in range(6)]

DEF = dict(z=0, d=4, la=12, egat=118, echk=150, pld=(66, 90, 114, 130, 150, 168), sel=(92, 116, 140, 156, 168, 168),
           hel=4, ipf=1, sto=(5, 7, 9), nout=2, sfl="", d2=4, bd=5, co=2, ost="", prof=0, dump=None,
           pfo="ABC.f", bud=24)

def gen(**kw):
    P = dict(DEF); P.update(kw)
    z, d, LA = P["z"], P["d"], P["la"]
    NO = P["nout"]
    PCK = (3 - NO) * 2048
    PFL = PCK + 768
    PIN = PFL + 128
    M = []
    def e(t, **k):
        for x in t.split("\n"):
            if x.strip(): M.append(I(x, **k))
    def L(t, **k): return [I(x, **k) for x in t.split("\n") if x.strip()]
    nst = [0]
    def stamp(custom=False, rt=False):
        if not P["prof"]: return []
        if (P.get("st1") or P.get("st2")) and not custom: return []
        nst[0] += 1
        return [I(f"{'s_memrealtime' if rt or (P.get('amp') and not P.get('ampc')) else 's_memtime'} {S(sST + 2 * (nst[0] - 1), 2)}")]
    def dump(tag):
        if not P["dump"] or P["dump"][0] != tag: return []
        o = [vm0(), lgkm0(), I("s_nop 7"), I("s_nop 7")]
        o += L(f"""s_mul_i32 s{sT0}, s{sR}, 7
s_add_u32 s{sT0}, s{sT0}, s{sJ}
s_lshl_b32 s{sT0}, s{sT0}, 2
s_add_u32 s{sT0}, s{sT0}, s{sW}
s_lshl_b32 s{sT0}, s{sT0}, 15
s_add_u32 s{sT0}, s{sT0}, {WS_DBG}
v_lshlrev_b32 v0, 2, v{vL}
v_add_u32 v0, s{sT0}, v0""")
        for i, r in enumerate(P["dump"][1]):
            o += L(f"global_store_dword v0, {r}, {S(pWS, 2)}\nv_add_u32 v0, 256, v0")
        o += L("s_endpgm")
        return o

    if P["prof"]: e("s_memrealtime s[98:99]\ns_memtime s[96:97]")
    e(f"""s_cmp_ge_u32 s2, 256
s_cbranch_scc1 L_exit
s_load_dwordx16 s[16:31], s[0:1], 0
s_load_dwordx16 s[32:47], s[0:1], 64
s_load_dwordx2 s[48:49], s[0:1], 128""")
    if P["ipf"]:
        e(f"""s_getpc_b64 s[50:51]
L_pc0:
v_lshlrev_b32 v{vT}, 7, v0
v_min_u32 v{vT}, L_pe-L_pc0, v{vT}
global_load_dword v191, v{vT}, s[50:51]""")
    e(f"""s_cmp_lt_u32 s2, 32
s_cbranch_scc1 L_pf
v_lshrrev_b32 v{vT}, 6, v0
v_and_b32 v{vL}, 63, v0
v_readfirstlane_b32 s{sW}, v{vT}
s_and_b32 s{sT0}, s2, 7
s_lshr_b32 s{sT1}, s2, 3
s_and_b32 s{sR}, s{sT0}, {(1 << z) - 1}
s_mul_i32 s{sR}, s{sR}, 28
s_add_u32 s{sT1}, s{sT1}, s{sR}
s_sub_u32 s{sT1}, s{sT1}, 4
s_lshr_b32 s{sJ}, s{sT1}, {2 + z}
s_and_b32 s{sT1}, s{sT1}, {(4 << z) - 1}
s_lshr_b32 s{sT0}, s{sT0}, {z}
s_lshl_b32 s{sT0}, s{sT0}, {2 + z}
s_add_u32 s{sR}, s{sT0}, s{sT1}
s_add_u32 s{sROT}, s{sR}, s{sJ}
s_mul_i32 s{sT0}, s{sROT}, 37
s_lshr_b32 s{sT0}, s{sT0}, 8
s_mul_i32 s{sT0}, s{sT0}, 7
s_sub_u32 s{sROT}, s{sROT}, s{sT0}
s_lshl_b32 s{sKB}, s{sROT}, 7
s_lshl_b32 s{sWQ}, s{sW}, 12""")
    for s in range(1, 7):
        e(f"""s_add_u32 s{sKB+s}, s{sKB+s-1}, 128
s_cmp_ge_u32 s{sKB+s}, 896
s_cselect_b32 s{sKB+s}, 0, s{sKB+s}""")
    e(f"""s_lshl_b32 s{sT0}, s{sR}, 3
s_add_u32 s{sT0}, s{sT0}, s{sW}
s_mul_i32 s{dX}, s{sT0}, 7168
s_sub_u32 s{dX+2}, {XSZ}, s{dX}
s_lshl_b32 s{sT1}, s{sJ}, 2
s_add_u32 s{sT1}, s{sT1}, s{sW}
s_mul_i32 s{dBR}, s{sT1}, 14336
s_sub_u32 s{dBR+2}, {MSZ}, s{dBR}
s_add_u32 s{dBI+2}, s{dBR+2}, 1024""")
    for dd in (dX, dBR, dBI, dW1, dC, dW2, dE, dPO, dO):
        e(f"s_mov_b32 s{dd+3}, 0x20000")
    t0, t1, t2, t3, t4 = vT, vT + 1, vT + 2, vT + 3, vT + 4
    e(f"""v_and_b32 v{vN}, 31, v{vL}
v_lshrrev_b32 v{vH}, 5, v{vL}
v_lshrrev_b32 v{t0}, 3, v{vL}
v_lshrrev_b32 v{t1}, 4, v{vL}
v_and_b32 v{t3}, 1, v{t1}
v_lshlrev_b32 v{t3}, 2, v{t3}
v_xor_b32 v{t3}, v{t3}, v{vL}
v_and_b32 v{t3}, 7, v{t3}
v_lshlrev_b32 v{t3}, 4, v{t3}
v_xor_b32 v{t1}, v{t1}, v{vL}
v_and_b32 v{t1}, 7, v{t1}
v_lshlrev_b32 v{t1}, 4, v{t1}
v_xor_b32 v{t2}, 64, v{t1}
v_and_b32 v{t4}, 3, v{t0}
v_lshl_add_u32 v{t4}, v{vH}, 5, v{t4}
v_mul_u32_u24 v{t4}, 896, v{t4}
v_add_u32 v{vdX}, v{t4}, v{t1}
v_add_u32 v{vdX+1}, v{t4}, v{t2}
v_add_u32 v{vdX+1}, {3584-1024}, v{vdX+1}
v_mul_u32_u24 v{t4}, 896, v{t0}
v_add_u32 v{vdB}, v{t4}, v{t1}
v_add_u32 v{vdB+1}, v{t4}, v{t2}
v_add_u32 v{vdB+2}, {7168-2048}, v{vdB}
v_add_u32 v{vdB+3}, {7168-2048}, v{vdB+1}
v_add_u32 v{vdW2}, v{t4}, v{t3}
v_mul_u32_u24 v{t4}, 3584, v{t0}
v_add_u32 v{vdW1}, v{t4}, v{t3}""")
    e(f"""v_add_u32 v{t0}, s{sROT}, v{t0}
v_subrev_u32 v{t1}, 7, v{t0}
v_min_u32 v{t0}, v{t0}, v{t1}
v_and_b32 v{t1}, 7, v{vL}
v_lshlrev_b32 v{t4}, 2, v{t1}
v_lshl_add_u32 v{t0}, v{t0}, 7, v{t4}
s_lshl_b32 s{sT0}, s{sW}, 5
v_add_u32 v{t0}, s{sT0}, v{t0}
v_lshrrev_b32 v{t2}, 4, v{vN}
v_lshl_add_u32 v{t2}, v{t2}, 3, v{t1}
s_lshl_b32 s{sT0}, s{sT1}, 4
v_add_lshl_u32 v{t2}, v{t2}, s{sT0}, 1
s_lshl_b32 s{sT0}, s{sT1}, 5
v_add_lshl_u32 v{t1}, v{vN}, s{sT0}, 2
s_and_b32 s{sT3}, s{sW}, 1
s_lshl_b32 s{sT0}, s{sJ}, 1
s_add_u32 s{sT0}, s{sT0}, s{sT3}
s_lshl_b32 s{sT0}, s{sT0}, 5
v_add_lshl_u32 v{t3}, v{vN}, s{sT0}, 1
s_lshr_b32 s{sSO}, s{sWQ}, 1""")
    M.append(lgkm0())
    if P["prof"]: e("s_mov_b32 s46, s98\ns_mov_b32 s47, s96")
    e(f"""s_add_u32 s{dX}, s{dX}, s{pX}
s_addc_u32 s{dX+1}, s{pX+1}, 0
s_load_dword s{sTAG}, {S(pWS, 2)}, 0""")

    D = []
    def dgrp(tok, pre, lines):
        for i, t in enumerate(lines):
            D.append([(L(pre) if i == 0 else []) + [I(t, tok=tok if i == len(lines) - 1 else None)], tok])
    def slot(g):
        if g < 27: return g % 6
        if g < 30: return g - 21
        return slot(g - 9)
    for s in range(7):
        dgrp(("x", s), f"s_add_u32 m0, s{sSO}, {XB + s * 8192}",
             [f"buffer_load_dwordx4 v{vdX+i}, {S(dX,4)}, s{sKB+s} offen offset:{1024*i} lds" for i in range(2)])
        dgrp(("g", s), f"s_add_u32 m0, s{sWQ}, {slot(s) * SL}",
             [f"buffer_load_dwordx4 v{vdB+i}, {S(dBI if i & 1 else dBR,4)}, s{sKB+s} offen offset:{1024*i} lds" for i in range(4)])
    for y in range(14):
        so = f"s_mul_i32 s{sSO}, s{sKB+y//2}, 1792" if y % 2 == 0 else f"s_add_u32 s{sSO}, s{sSO}, 114688"
        dgrp(("g", 7 + y), f"s_add_u32 m0, s{sWQ}, {slot(7 + y) * SL}\n{so}",
             [f"buffer_load_dwordx4 v{vdW1+i}, {S(dW1,4)}, s{sSO} offen offset:{1024*i} lds" for i in range(4)])
    for q in range(21):
        u, k = q // 3, q % 3
        so = (f"s_mul_i32 s{sSO}, s{sU+u}, 448", f"s_mov_b32 s{sSO}, s{sU+u}", f"s_add_u32 s{sSO}, s{sSO}, 114688")[k]
        vd, dd = (vdC, dC) if k == 0 else (vdW2, dW2)
        dgrp(("g", 21 + q), f"s_add_u32 m0, s{sWQ}, {slot(21 + q) * SL}\n{so}",
             [f"buffer_load_dwordx4 v{vd+i}, {S(dd,4)}, s{sSO} offen offset:{1024*i} lds" for i in range(4)])
    NS01 = 42 + 56

    def put(n):
        for x in D[n][0]: M.append(x)
    put(0); put(1)
    e(f"""s_add_u32 s{dBI}, s{dBR}, s{pBIM}
s_addc_u32 s{dBI+1}, s{pBIM+1}, 0
s_add_u32 s{dBR}, s{dBR}, s{pBRE}
s_addc_u32 s{dBR+1}, s{pBRE+1}, 0
s_sub_u32 s{dBI}, s{dBI}, 1024
s_subb_u32 s{dBI+1}, s{dBI+1}, 0""")
    for n in range(2, 6): put(n)
    e(f"""s_lshr_b32 s{sT0}, s{sWQ}, 3
s_add_u32 m0, s{sT0}, {PR}
global_load_ushort v{raw}, v{t2}, {S(pLRE,2)}
global_load_lds_dword v{t0}, {S(pGW,2)}
s_add_u32 m0, s{sT0}, {PR + 256}
global_load_ushort v{raw+1}, v{t2}, {S(pLIM,2)}""")
    e(f"global_load_lds_dword v{t1}, {S(pB1,2)}", tok="par")
    e(f"""global_load_ushort v{raw+2}, v{t2}, {S(pDT,2)}
global_load_ushort v{raw+3}, v{t3}, {S(pDS,2)}""")
    for n in range(6, LA): put(n)

    e(f"""s_lshl_b32 s{dW1}, s{sT1}, 7
s_sub_u32 s{dW1+2}, {WSZ}, s{dW1}
s_add_u32 s{dW1}, s{dW1}, s{pW1}
s_addc_u32 s{dW1+1}, s{pW1+1}, 0
s_mul_i32 s{dC}, s{sT3}, 28672
s_lshl_b32 s{dC+1}, s{sJ}, 7
s_add_u32 s{dC}, s{dC}, s{dC+1}
s_sub_u32 s{dC+2}, {MSZ}, s{dC}
s_cmp_ge_u32 s{sW}, 2
s_cselect_b32 s{pCRE}, s{pCIM}, s{pCRE}
s_cselect_b32 s{pCRE+1}, s{pCIM+1}, s{pCRE+1}
s_add_u32 s{dC}, s{dC}, s{pCRE}
s_addc_u32 s{dC+1}, s{pCRE+1}, 0
s_lshl_b32 s{dW2}, s{sJ}, 3
s_add_u32 s{dW2}, s{dW2}, s{sW}
s_mul_i32 s{dW2}, s{dW2}, 28672
s_sub_u32 s{dW2+2}, {WSZ}, s{dW2}
s_add_u32 s{dW2}, s{dW2}, s{pW2}
s_addc_u32 s{dW2+1}, s{pW2+1}, 0
s_lshl_b32 s{dE}, s{sT1}, 13
s_add_u32 s{dE}, s{dE}, {WS_E}
s_add_u32 s{dE}, s{dE}, s{pWS}
s_addc_u32 s{dE+1}, s{pWS+1}, 0
s_mov_b32 s{dE+2}, 8192
s_mul_i32 s{dPO}, s{sR}, 28
s_add_u32 s{dPO}, s{dPO}, s{sW}
s_mul_i32 s{dPO}, s{dPO}, {PIN}
s_add_u32 s{dPO}, s{dPO}, {WS_P}
s_add_u32 s{dPO}, s{dPO}, s{pWS}
s_addc_u32 s{dPO+1}, s{pWS+1}, 0
s_mov_b32 s{dPO+2}, {25*PIN}
s_lshr_b32 s{sCNT}, s{sW}, 1
s_lshl_b32 s{dO}, s{sR}, 2
s_add_u32 s{dO}, s{dO}, s{sCNT}
s_mul_i32 s{dO}, s{dO}, {16*1792}
s_lshl_b32 s{dO+1}, s{sT3}, 7
s_add_u32 s{dO}, s{dO}, s{dO+1}
s_sub_u32 s{dO+2}, {OSZ}, s{dO}
s_add_u32 s{dO}, s{dO}, s{pOUT}
s_addc_u32 s{dO+1}, s{pOUT+1}, 0
s_mul_i32 s{sT1}, s{sR}, 43
s_lshr_b32 s{sT1}, s{sT1}, 8
s_mul_i32 s{sT1}, s{sT1}, 6
s_sub_u32 s{sT1}, s{sR}, s{sT1}""")
    for s in range(6):
        e(f"""s_add_u32 s{sU+s}, s{sT1}, s{sJ}
s_add_u32 s{sU+s}, s{sU+s}, 1
s_cmp_ge_u32 s{sU+s}, 7
s_cselect_b32 s{sU+6}, 7, 0
s_sub_u32 s{sU+s}, s{sU+s}, s{sU+6}
s_lshl_b32 s{sU+s}, s{sU+s}, 7""")
        if s < 5:
            e(f"""s_add_u32 s{sT1}, s{sT1}, 1
s_cmp_ge_u32 s{sT1}, 6
s_cselect_b32 s{sT1}, 0, s{sT1}""")
    e(f"s_lshl_b32 s{sU+6}, s{sJ}, 7")
    for i in range(1, 4):
        e(f"v_add_u32 v{vdW1+i}, {i*(28672-1024)}, v{vdW1}\nv_add_u32 v{vdW2+i}, {i*6144}, v{vdW2}")
    e(f"""v_mov_b32 v{vdC}, v{vdB}
v_add_u32 v{vdC+1}, 6144, v{vdB+1}
v_add_u32 v{vdC+2}, {2*6144}, v{vdB}
v_add_u32 v{vdC+3}, {3*6144}, v{vdB+1}
v_lshrrev_b32 v{t0}, 1, v{vN}
v_xor_b32 v{t0}, v{t0}, v{vH}
v_and_b32 v{t0}, 7, v{t0}
v_lshlrev_b32 v{t0}, 4, v{t0}
v_lshl_add_u32 v{t0}, v{vN}, 7, v{t0}""")
    for k in range(4):
        e(f"""v_xor_b32 v{t1}, {32*k}, v{t0}
v_add_u32 v{vX+k}, {XB}, v{t1}
v_add_u32 v{vB+k}, s{sWQ}, v{t1}
v_add_u32 v{vB+4+k}, 0x10000, v{vB+k}""")
    e(f"""s_lshl_b32 s{sT1}, s{sW}, 5
v_xor_b32 v{vG}, s{sT1}, v{vX}
s_add_u32 s{sT0}, s{sT0}, {PR}
v_lshl_add_u32 v{vP}, v{vH}, 4, s{sT0}
v_lshl_add_u32 v{vP2}, v{vH}, 5, s{sT0}
s_sub_u32 s{sT0}, s{sJ}, s{sROT}
s_cselect_b32 s{sT1}, 7, 0
s_add_u32 s{sT0}, s{sT0}, s{sT1}
s_lshl_b32 s{sT0}, s{sT0}, 1
s_add_u32 s{sT0}, s{sT0}, s{sCNT}
s_lshl_b32 s{sT0}, s{sT0}, 12
s_lshl_b32 s{sT1}, s{sT3}, 6
v_xor_b32 v{vXD}, s{sT1}, v{vX}
v_add_u32 v{vXD}, s{sT0}, v{vXD}
v_xor_b32 v{vXD+1}, 32, v{vXD}
v_bfe_u32 v{t0}, v{vL}, 2, 2
v_lshl_add_u32 v{t0}, v{vH}, 3, v{t0}
v_lshlrev_b32 v{t0}, 7, v{t0}
v_bfe_u32 v{t1}, v{vL}, 3, 1
v_lshl_add_u32 v{t0}, v{t1}, 6, v{t0}
v_and_b32 v{t1}, 1, v{vL}
v_lshl_add_u32 v{t0}, v{t1}, 5, v{t0}
v_and_b32 v{t1}, 16, v{vL}
v_add_u32 v{t0}, v{t0}, v{t1}
v_and_b32 v{t1}, 2, v{vL}
v_lshl_add_u32 v{t0}, v{t1}, 2, v{t0}
v_add_u32 v{vW1}, s{sWQ}, v{t0}
v_xor_b32 v{vW1+1}, 64, v{vW1}
v_add_u32 v{vW1+2}, 0x10000, v{vW1}
v_add_u32 v{vW1+3}, 0x10000, v{vW1+1}
s_mov_b32 s{sCNT}, 0""")
    if P["prof"]: e("s_mov_b32 s44, 0\ns_mov_b32 s45, 0")
    M.append(lgkm0())
    e(f"s_add_u32 s{sTAG}, s{sTAG}, {EPC}")
    M += stamp()

    mf, post = [], collections.defaultdict(list)
    def rd(k, ins): post[max(-1, k)].extend(ins if isinstance(ins, list) else [ins])
    def mfma(dst, a, b, c, exp=None):
        mf.append(I(f"v_mfma_f32_32x32x16_bf16 {dst}, {a}, {b}, {c}", exp=exp)); return len(mf) - 1
    def xa(s, ks, rt): return A(((s * 4 + ks) * 2 + rt) * 4, 4)
    tneed, tlast = {}, {}
    nb = 0
    for s in range(7):
        k0 = len(mf)
        tneed[("x", s)] = tneed[("g", s)] = k0 - d
        rd(k0 - d, [need(("g", s)), I("s_barrier")])
        wn, of = (0, slot(s) * SL) if slot(s) < 4 else (4, slot(s) * SL - 65536)
        for ks in range(4):
            b = V(Bfr + 4 * (nb % 4), 4); nb += 1
            k = len(mf)
            rd(k - d, I(f"ds_read_b128 {b}, v{vB+wn+ks} offset:{of}", ver=("B", s, ks)))
            for rt in range(2):
                rd(k + rt - d, I(f"ds_read_b128 {xa(s,ks,rt)}, v{vX+ks} offset:{s*8192+rt*4096}", ver=("x", s, ks, rt)))
                acc = V(accS + 16 * rt, 16)
                mfma(acc, xa(s, ks, rt), b, acc if s or ks else "0", [(b, ("B", s, ks)), (xa(s, ks, rt), ("x", s, ks, rt))])
        tlast[s] = len(mf) - 1
        k = len(mf)
        if s == 0: rd(k - d, need("par"))
        rd(k - d, I(f"ds_read_b128 {V(gwf,4)}, v{vP} offset:{32*s}", ver=("gw", s)))
        for rt in range(2):
            g = V(Gx + 4 * rt, 4)
            rd(k + rt - d, I(f"ds_read_b128 {g}, v{vG} offset:{s*8192+rt*4096}", ver=("gx", s, rt)))
            acc = A(aG + 16 * rt, 16)
            mfma(acc, V(gwf, 4), g, acc if s else "0", [(V(gwf, 4), ("gw", s)), (g, ("gx", s, rt))])
    for kk in range(2):
        k = len(mf)
        rd(k - d, I(f"ds_read_b128 {V(xD+4*kk,4)}, v{vXD+kk}", ver=("xd", kk), tok=("xd", kk)))
        mfma(V(accD, 16), V(xD + 4 * kk, 4), V(dia + 4 * kk, 4), V(accD, 16) if kk else "0",
             [(V(xD + 4 * kk, 4), ("xd", kk)), (V(dia + 4 * kk, 4), "dia")])
    S1 = len(mf)
    nw = 0
    for y in range(14):
        g = 7 + y
        tneed[("g", g)] = len(mf) - d - 1
        rd(len(mf) - d - 1, need(("g", g)))
        wn, of = (0, slot(g) * SL) if slot(g) < 4 else (2, slot(g) * SL - 65536)
        for k2 in range(2):
            s, ks = y // 2, 2 * (y % 2) + k2
            for ft in range(2):
                wr = Wfr + 4 * (nw % 4); nw += 1
                k = len(mf)
                for ee in range(2):
                    rd(k - d - 1 + ee, I(f"ds_read_b64_tr_b16 {V(wr+2*ee,2)}, v{vW1+wn+ft} offset:{of+(16*k2+4*ee)*128}", ver=("W", y, k2, ft)))
                for rt in (1, 0):
                    acc = V(accF + 32 * ft + 16 * rt, 16)
                    c = acc if (y or k2) else V(accF + 32 * ft, 16)
                    ex = [(V(wr, 4), ("W", y, k2, ft)), (xa(s, ks, rt), ("x", s, ks, rt))]
                    if not (y or k2): ex.append((c, "bias"))
                    mfma(acc, V(wr, 4), xa(s, ks, rt), c, ex)
        tlast[g] = len(mf) - 1
    NM1 = len(mf)
    ts, prev, n = [], -d - 10, 0
    for s in range(7):
        t = tneed[("g", s)]
        ts += [prev + (t - prev) * (i + 1) / 6 for i in range(6)]; prev = t
    for g in range(7, 21):
        t = tneed[("g", g)]
        ts += [prev + (t - prev) * (i + 1) / 4 for i in range(4)]; prev = t
    nd = LA
    last = -1
    while nd - LA < len(ts):
        p = max(int(ts[nd - LA]) + 1, last, 0)
        tok = D[nd][1]
        if tok[0] == "g" and tok[1] >= 6: p = max(p, tlast[tok[1] - 6])
        if p >= NM1: break
        post[p].extend(D[nd][0]); last = p; nd += 1

    F = []
    def f(t, **k): F.extend(L(t, **k))
    z0, z1, z2, z3, z4, z5, z6 = range(scr, scr + 7)
    f(f"""s_getreg_b32 s{sXT}, hwreg(HW_REG_XCC_ID, 0, 4)
s_lshl2_add_u32 s{sA}, s{sJ}, {PFL}
s_add_u32 s{sXT}, s{sXT}, s{sTAG}
v_mov_b32 v{z0}, s{sXT}
buffer_store_dword v{z0}, off, {S(dPO,4)}, s{sA} sc1""", at=P["hel"])
    f(f"""v_lshlrev_b32 v{raw+2}, 16, v{raw+2}
v_mul_f32 v{raw+2}, {fb(LOG2E)}, v{raw+2}
v_exp_f32 v{raw+2}, v{raw+2}
v_lshlrev_b32 v{raw}, 16, v{raw}
v_lshlrev_b32 v{raw+1}, 16, v{raw+1}
v_cvt_pk_bf16_f32 v{raw+2}, v{raw+2}, v{raw+2}
v_lshlrev_b32 v{z0}, 28, v{vL}
v_and_b32 v{z0}, 0x80000000, v{z0}
v_lshlrev_b32 v{raw+2}, 16, v{raw+2}
v_xor_b32 v{raw+1}, v{z0}, v{raw+1}
v_xor_b32 v{raw+1}, 0x80000000, v{raw+1}
v_xor_b32 v{z0}, 2.0, v{z0}
v_mul_f32 v{z1}, v{raw+2}, v{raw}
v_mul_f32 v{z2}, v{raw+2}, v{raw+1}
v_mul_f32 v{z1}, {fb(LOG2E)}, v{z1}
v_mul_f32 v{z2}, 0.15915494, v{z2}
v_exp_f32 v{z1}, v{z1}
v_rndne_f32 v{z3}, v{z2}
v_sub_f32 v{z2}, v{z2}, v{z3}
v_cos_f32 v{z3}, v{z2}
v_sin_f32 v{z4}, v{z2}
v_mul_f32 v{z5}, v{raw}, v{raw}
v_fmac_f32 v{z5}, v{raw+1}, v{raw+1}
v_rcp_f32 v{z5}, v{z5}
v_mul_f32 v{cL}, v{z3}, v{z1}
v_mul_f32 v{cL+1}, v{z4}, v{z1}
v_mul_f32 v{z5}, v{z5}, v{z0}
v_add_f32 v{z1}, -1.0, v{cL}
v_mul_f32 v{z2}, v{z1}, v{raw}
v_fmac_f32 v{z2}, v{cL+1}, v{raw+1}
v_mul_f32 v{cS}, v{z2}, v{z5}
v_mul_f32 v{z2}, v{cL+1}, v{raw}
v_fma_f32 v{z2}, -v{z1}, v{raw+1}, v{z2}
v_mul_f32 v{cS+1}, v{z2}, v{z5}""", at=8)
    def sq(dst, src):
        f(f"""v_mul_f32 v{z6}, v{src+1}, v{src+1}
v_add_f32 v{z5}, v{src}, v{src}
v_fma_f32 v{dst}, v{src}, v{src}, -v{z6}
v_mul_f32 v{dst+1}, v{z5}, v{src+1}""")
    sq(z0, cL); sq(z0, z0); sq(z0, z0); sq(cL16, z0); sq(cL32, cL16); sq(cL64, cL32)
    sq(z0, cL64); sq(z0, z0); sq(cL512, z0); sq(cL1K, cL512)
    f(f"""v_and_b32 v{z0}, 1, v{vL}
v_lshlrev_b32 v{z0}, 4, v{z0}
v_lshlrev_b32 v{z0}, v{z0}, v{raw+3}
v_bfe_u32 v{z1}, v{vL}, 1, 2
v_bfe_u32 v{z2}, v{vL}, 4, 1
v_lshl_add_u32 v{z1}, v{z2}, 2, v{z1}
v_bfe_u32 v{z2}, v{vL}, 3, 1
v_xor_b32 v{z2}, v{z2}, v{vH}
v_lshl_add_u32 v{z1}, v{z2}, 3, v{z1}""")
    for i in range(4):
        f(f"ds_read_b128 {V(rawb+4*i,4)}, v{vP2} offset:{256+64*(i>>1)+16*(i&1)}")
    for i in range(8):
        f(f"v_cmp_eq_u32 vcc, {i}, v{z1}")
        f(f"v_lshlrev_b32 v{accF+32*(i>>2)+4*(i&3)}, 16, v{rawb+2*i}", ver="bias")
        f(f"v_and_b32 v{accF+32*(i>>2)+4*(i&3)+1}, 0xffff0000, v{rawb+2*i}", ver="bias")
        f(f"v_cndmask_b32 v{dia+i}, 0, v{z0}", ver="dia")
        f(f"v_lshlrev_b32 v{accF+32*(i>>2)+4*(i&3)+2}, 16, v{rawb+2*i+1}", ver="bias")
        f(f"v_and_b32 v{accF+32*(i>>2)+4*(i&3)+3}, 0xffff0000, v{rawb+2*i+1}", ver="bias")
    NFA = len(F)

    DPP = "row_ror:8 row_mask:0xf bank_mask:0xf"
    def cm1(dst, m, zz, add): return f"v_fma_f32 v{dst}, v{m}, v{zz}, {add}"
    def cm2(dst, m, zz, neg=""): return f"v_fmac_f32_dpp v{dst}, v{zz}, {neg}v{m+1} {DPP}"
    ea, eb = [vT, vT + 1], [vT + 2, vT + 3]
    pa, pb = accS, accS + 16
    for q in range(1, 16):
        da, db = ea[q & 1], eb[q & 1]
        f("\n".join([cm1(da, cL, pa, f"v{accS+q}"), cm1(db, cL, pb, f"v{accS+16+q}"), cm2(da, cL, pa), cm2(db, cL, pb)]),
          at=S1 - 1)
        pa, pb = da, db
    e0, e32, elo, ehi = pa, vT, vT + 4, vT + 5
    f(f"""v_lshlrev_b32 v{vT+6}, 4, v{vN}
s_lshl_b32 s{sT0}, s{sW}, 2
{cm1(elo, cL16, e0, f'v{pb}')}
{cm2(elo, cL16, e0)}
s_add_u32 s{sT0}, s{sT0}, {GP}
v_mov_b32 v{ehi}, v{elo}
v_add_u32 v{vT+2}, s{sT0}, v{vT+6}
s_sub_u32 s{sT1}, 31, s{sR}
v_permlane32_swap_b32 v{elo}, v{ehi}
s_lshl_b32 s{sT1}, s{sT1}, 8
v_mov_b32 v{vE1}, s{sTAG}
{cm1(vE0, cL32, elo, f'v{ehi}')}
{cm2(vE0, cL32, elo)}
v_lshl_add_u32 v{vT}, v{vN}, 3, s{sT1}
buffer_store_dwordx2 {V(vE0,2)}, v{vT}, {S(dE,4)}, 0 offen sc1
ds_write_b32 v{vT+2}, a{aG}
ds_write_b32 v{vT+2}, a{aG+16} offset:512""")
    F[-1].tok = "gpw"
    vEg = vT
    f(f"""v_lshl_add_u32 v{vEg}, v{vH}, 12, v{vT}
v_add_u32 v{vEg}, 256, v{vEg}
v_add_u32 v{vT+6}, {GP}, v{vT+6}""")
    F.append(needlg("gpw")); f("s_barrier")
    g0 = rawb
    f(f"""ds_read_b128 {V(g0,4)}, v{vT+6}
ds_read_b128 {V(g0+4,4)}, v{vT+6} offset:512""")
    def scale(lo, hi):
        for q in range(lo, hi):
            t = vT + 2 + (q & 1)
            f(f"v_mul_f32_dpp v{t}, v{accS+q}, v{cS+1} {DPP}\nv_fma_f32 v{accS+q}, v{accS+q}, v{cS}, v{t}")
    scale(0, 8)
    f(f"""v_add_f32 v{g0}, v{g0}, v{g0+1}
v_add_f32 v{g0+4}, v{g0+4}, v{g0+5}
v_add_f32 v{g0+2}, v{g0+2}, v{g0+3}
v_add_f32 v{g0+6}, v{g0+6}, v{g0+7}
v_add_f32 v{g0}, v{g0}, v{g0+2}
v_add_f32 v{g0+4}, v{g0+4}, v{g0+6}
v_mul_f32 v{g0}, {fb(-LOG2E)}, v{g0}
v_mul_f32 v{g0+4}, {fb(-LOG2E)}, v{g0+4}
v_exp_f32 v{g0}, v{g0}
v_exp_f32 v{g0+4}, v{g0+4}
v_bfe_u32 v{g0+1}, v{vN}, 2, 1
v_add_f32 v{g0}, 1.0, v{g0}
v_add_f32 v{g0+4}, 1.0, v{g0+4}
v_rcp_f32 v{g0}, v{g0}
v_rcp_f32 v{g0+4}, v{g0+4}
v_lshrrev_b32 v{g0+2}, 3, v{vN}
v_lshl_add_u32 v{g0+1}, v{g0+1}, 3, v{g0+2}
v_and_b32 v{g0+2}, 3, v{vN}
v_lshl_add_u32 v{g0+1}, v{g0+1}, 2, v{g0+2}
v_lshlrev_b32 v{g0+1}, 2, v{g0+1}
v_add_u32 v{g0+1}, {GT}, v{g0+1}
v_sub_f32 v{omg}, 1.0, v{g0}
v_sub_f32 v{omg+2}, 1.0, v{g0+4}
ds_write_b32 v{g0+1}, v{g0}
ds_write_b32 v{g0+1}, v{g0+4} offset:64
v_lshlrev_b32 v{g0+2}, 7, v{vH}
v_add_u32 v{g0+2}, {GT}, v{g0+2}
s_lshr_b32 s{sT0}, s{sW}, 1
s_lshl_b32 s{sT1}, s{sT0}, 6
v_add_u32 v{g0+3}, s{sT1}, v{g0+2}
v_mov_b32 v{omg+1}, v{omg}
v_mov_b32 v{omg+3}, v{omg+2}""")
    for i in range(4): f(f"ds_read_b128 {V(Eg+4*i,4)}, v{g0+3} offset:{16*i}")
    scale(8, 12)
    for i in range(8): f(f"ds_read_b128 {V(gR+4*i,4)}, v{g0+2} offset:{16*i}")
    for q in range(16): f(f"v_mul_f32 v{accD+q}, v{accD+q}, v{Eg+q}")
    gl = [f"buffer_load_dwordx2 {V(Eg+2*i,2)}, v{vEg}, {S(dE,4)}, 0 offen offset:{256*i} sc1" for i in range(16)]
    hld = f"""v_min_u32 v{vPo}, 6, v{vL}
v_lshlrev_b32 v{vPo}, 2, v{vPo}
buffer_load_dword v{vPo}, v{vPo}, {S(dPO,4)}, 0 offen offset:{PFL} sc1"""
    f(hld, at=P["egat"])
    for i in range(16):
        f(gl[i], at=P["egat"])
        scale(12 + i, 13 + i)
    scale(28, 32)
    vCnt = vE1
    f(f"""v_lshlrev_b32 v{vT+2}, 4, v{vH}
v_sub_u32 v{vT+2}, s{sR}, v{vT+2}
v_med3_i32 v{vT+2}, v{vT+2}, 0, 16
v_mul_lo_u32 v{vCnt}, v{vT+2}, s{sTAG}
v_cmp_eq_u32 vcc, 1, v{vH}
v_lshrrev_b32 v{vT+2}, 1, v{vN}
v_and_b32 v{vT+2}, 7, v{vT+2}
v_cndmask_b32 v{cL32}, 1.0, v{cL32}
v_cndmask_b32 v{cL32+1}, 0, v{cL32+1}
v_cndmask_b32 v{elo}, 0, v{elo}
v_lshlrev_b32 v{vT+2}, 4, v{vT+2}
v_lshl_add_u32 v{vT+2}, v{vN}, 7, v{vT+2}
v_lshl_add_u32 v{vT+2}, v{vH}, 13, v{vT+2}
s_lshl_b32 s{sT1}, s{sT3}, 12
v_add_u32 v{vC[0]}, s{sT1}, v{vT+2}""")
    for k in range(1, 8): f(f"v_xor_b32 v{vC[k]}, {16*k}, v{vC[0]}")
    for k in range(8): f(f"v_add_u32 v{vC[8+k]}, 0x10000, v{vC[k]}")
    chk = [f"v_add3_u32 v{vE0}, v{Eg+1}, v{Eg+3}, v{Eg+5}"]
    for i in range(3, 15, 2): chk.append(f"v_add3_u32 v{vE0}, v{vE0}, v{Eg+2*i+1}, v{Eg+2*i+3}")
    chk += [f"v_add_u32 v{vE0}, v{vE0}, v{Eg+31}", f"v_cmp_ne_u32 vcc, v{vE0}, v{vCnt}"]
    f("\n".join(chk), at=P["echk"])
    f("s_cbranch_vccnz L_eretry\nL_eback:")
    OUT = L("L_eretry:\n" + ("s_add_u32 s44, s44, 1\n" if P["prof"] else "") + "\n".join(gl) + f"""
s_add_u32 s{sCNT}, s{sCNT}, 1
s_waitcnt vmcnt(0)
s_cmp_gt_u32 s{sCNT}, 0x8000
s_cbranch_scc1 L_eback
""" + "\n".join(chk) + "\ns_cbranch_vccnz L_eretry\ns_branch L_eback")
    for i in range(6, -1, -1):
        a0, a1, b0, b1 = Eg + 2 * i, Eg + 2 * i + 2, Eg + 16 + 2 * i, Eg + 16 + 2 * i + 2
        f(f"v_fmac_f32 v{a0}, v{cL64}, v{a1}\nv_fmac_f32 v{b0}, v{cL64}, v{b1}\n{cm2(a0, cL64, a1)}\n{cm2(b0, cL64, b1)}")
    k0, k1, c0, c1, hw = Eg, Eg + 1, Eg + 2, Eg + 3, Eg + 8
    f(f"""v_fmac_f32 v{k0}, v{cL512}, v{Eg+16}
v_and_b32 v{hw}, 3, v{vN}
{cm2(k0, cL512, Eg+16)}
v_mov_b32 v{k1}, v{k0}
v_lshlrev_b32 v{hw}, 4, v{hw}
v_lshl_add_u32 v{hw}, v{vN}, 7, v{hw}
v_permlane32_swap_b32 v{k0}, v{k1}
v_lshl_add_u32 v{hw}, v{vH}, 6, v{hw}
v_fmac_f32 v{k0}, v{cL1K}, v{k1}
{cm2(k0, cL1K, k1)}
s_add_u32 s{sT1}, s{sWQ}, {HB}
{cm1(c0, cL32, k0, f'v{elo}')}
{cm2(c0, cL32, k0)}
v_add_u32 v{hw}, s{sT1}, v{hw}
{cm1(c1, cL16, c0, f'v{e0}')}
{cm2(c1, cL16, c0)}
v_mul_f32_dpp v{k0}, v{c0}, v{cS+1} {DPP}
v_xor_b32 v{hw+1}, 16, v{hw}
v_mul_f32_dpp v{k1}, v{c1}, v{cS+1} {DPP}
v_fmac_f32 v{k0}, v{c0}, v{cS}
v_fmac_f32 v{k1}, v{c1}, v{cS}""")
    pa, pb = k0, k1
    for q in range(16):
        da, db = accS + q, accS + 16 + q
        f(f"v_fmac_f32 v{da}, v{cL}, v{pa}\nv_fmac_f32 v{db}, v{cL}, v{pb}\n{cm2(da, cL, pa, '-')}\n{cm2(db, cL, pb, '-')}")
        pa, pb = da, db
    f(f"v_xor_b32 v{hw+2}, 32, v{hw}\nv_xor_b32 v{hw+3}, 48, v{hw}")
    for i in range(4):
        for q in range(8 * i, 8 * i + 8): f(f"v_mul_f32 v{gR+q}, v{gR+q}, v{accS+q}")
        for q in range(4): f(f"v_cvt_pk_bf16_f32 v{Eg+16+4*i+q}, v{gR+8*i+2*q}, v{gR+8*i+2*q+1}")
        f(f"ds_write_b128 v{hw+i}, {V(Eg+16+4*i,4)}")
    if P["prof"]:
        post[S1 - 1][0:0] = stamp()
        for k in P.get("st1", []): post[k][0:0] = stamp(True)
    st, left = spine(mf, post, F, P["bud"])
    info = dict(left=len(left), nd=nd)
    M += st
    M += dump("s1")
    M += stamp()
    M += left
    M += dump("scan")
    M += stamp()

    K1, K3, K4, mt, mh, mo = 80, 82, 84, 88, 96, 104
    e(f"""v_mov_b32 v{K1}, {fb(LOG2E)}
v_mov_b32 v{K1+1}, {fb(LOG2E)}
v_mov_b32 v{K3}, {fb(0.7071067811865476)}
v_mov_b32 v{K3+1}, {fb(0.7071067811865476)}
v_mov_b32 v{K4}, 0.5
v_mov_b32 v{K4+1}, 0.5
v_lshlrev_b32 v{vLin}, 4, v{vL}
s_add_u32 s{sT1}, s{sWQ}, {AB}
v_add_u32 v{vAw}, s{sT1}, v{vLin}
s_lshl_b32 s{sT1}, s{sT0}, 14
s_add_u32 s{sT1}, s{sT1}, {AB}
v_add_u32 v{vAr}, s{sT1}, v{vLin}
v_bfe_u32 v{t0}, v{vL}, 2, 2
v_lshl_add_u32 v{t1}, v{vH}, 3, v{t0}
v_lshlrev_b32 v{t1}, 7, v{t1}
v_and_b32 v{t2}, 1, v{vL}
v_lshl_add_u32 v{t1}, v{t2}, 6, v{t1}
v_and_b32 v{t2}, 2, v{vL}
v_lshl_add_u32 v{t1}, v{t2}, 2, v{t1}
v_lshlrev_b32 v{t2}, 4, v{t0}
v_and_b32 v{t3}, 16, v{vL}
v_xor_b32 v{t2}, v{t2}, v{t3}
s_lshl_b32 s{sT1}, s{sT0}, 5
v_xor_b32 v{t2}, s{sT1}, v{t2}
v_add_u32 v{t1}, v{t1}, v{t2}
v_add_u32 v{vHr}, {HB}, v{t1}
v_lshl_add_u32 v{t0}, v{vH}, 4, v{t0}
v_lshlrev_b32 v{t0}, 7, v{t0}
v_bfe_u32 v{t1}, v{vL}, 3, 1
v_xor_b32 v{t1}, s{sT3}, v{t1}
v_lshl_add_u32 v{t0}, v{t1}, 6, v{t0}
v_lshl_add_u32 v{t0}, v{t3}, 1, v{t0}
v_and_b32 v{t1}, 3, v{vL}
v_lshl_add_u32 v{vW2}, v{t1}, 3, v{t0}
v_add_u32 v{vW2+1}, 0x10000, v{vW2}
v_add_u32 v{vW2+2}, 0x20000, v{vW2}""")
    mf = []
    d2, bd, sel = P["d2"], P["bd"], P["sel"]
    def fragreads(q, kx):
        fr = F2 + 4 * ((8 * q + kx) % RING)
        base = slot(21 + q) * SL
        wn, of = base >> 16, base & 0xffff
        if q % 3 == 0:
            return fr, [I(f"ds_read_b128 {A(fr,4)}, v{vC[8*wn+kx]} offset:{of}", ver=("F", q, kx))]
        return fr, [I(f"ds_read_b64_tr_b16 {A(fr+2*ee,2)}, v{vW2+wn} offset:{of+(32*(kx>>1)+8*(kx&1)+4*ee)*128}",
                      ver=("F", q, kx)) for ee in range(2)]
    early, pos, spos, Rq, Bq, Aq = [], {}, {}, [], [], []
    def selm(u):
        spos[u] = len(mf)
        acc = V(accD, 16) if u >= 3 else V(acc2 + 16 * ((u + 3) & 1), 16)
        if u < 3: assert 24 * (u + 3) < sel[u] < 24 * (u + 4)
        for i in range(2): mfma(acc, V(Sel + 4 * i, 4), V(inb[u] + 4 * i, 4), acc)
    for q in range(21):
        u = q // 3
        acc = V(accD, 16) if u == 6 else V(acc2 + 16 * (u & 1), 16)
        for kx in range(8):
            km = 8 * q + kx
            for s_ in range(6):
                if sel[s_] == km: selm(s_)
            k = pos[km] = len(mf)
            if kx == 0 and q >= 2:
                Bq.append(At(([needlg("act")] if q == 2 else []) + [need(("g", 21 + q)), I("s_barrier")], k - bd, k - bd, name=("b", q)))
            fr, r_ = fragreads(q, kx)
            if k - d2 < 0: early.extend(r_)
            else: Rq += [At(x, pos.get(km - RING, -2) + 1, k - d2, after=[("b", q)] if q >= 2 else []) for x in r_]
            if q % 3 == 0: a_, av = A(aH + 4 * kx, 4), ("h", kx)
            else:
                ka = 8 * (q % 3 - 1) + kx
                a_, av = A(4 * ka, 4), ("act", ka)
            mfma(acc, a_, A(fr, 4), acc if (u == 6 or q % 3 or kx) else "0", [(A(fr, 4), ("F", q, kx)), (a_, av)])
    NM2 = len(mf)
    for ka in range(16):
        Aq.append(At(I(f"ds_read_b128 {A(4*ka,4)}, v{vAr} offset:{1024*ka}", ver=("act", ka), tok="act" if ka == 15 else None),
                     -1, min(8 + ka - d2, (ka * (15 - bd)) // 16 - 1)))
    hreads = [I(f"ds_read_b64_tr_b16 {A(aH+4*kx+2*ee,2)}, v{vHr} offset:{(16*kx+4*ee)*128}", ver=("h", kx))
              for kx in range(8) for ee in range(2)] + early
    xd = []
    while D[nd][1][1] < 27: xd.append(D[nd][0]); nd += 1
    uses = [(0, 1), (0, 0), (1, 1), (1, 0)]
    for b in range(8):
        ft, rt = uses[b >> 1]; kk = b & 1
        h = accF + 32 * ft + 16 * rt + 8 * kk
        o = mo + 4 * (b & 1)
        B = []
        for p in range(4): B += L(f"v_pk_fma_f32 {V(mt+2*p,2)}, {V(h+2*p,2)}, {V(K1,2)}, {V(K4,2)} neg_lo:[0,0,1] neg_hi:[0,0,1]")
        for p in range(8): B += L(f"v_exp_f32 v{mt+p}, v{mt+p}")
        for p in range(4): B += L(f"v_pk_add_f32 {V(mt+2*p,2)}, {V(mt+2*p,2)}, {V(K3,2)}")
        for p in range(4): B += L(f"v_pk_fma_f32 {V(mt+2*p,2)}, {V(mt+2*p,2)}, {V(mt+2*p,2)}, {V(K4,2)}")
        for p in range(8): B += L(f"v_rcp_f32 v{mt+p}, v{mt+p}")
        for p in range(4): B += L(f"v_pk_mul_f32 {V(mh+2*p,2)}, {V(h+2*p,2)}, {V(omg+2*rt,2)}")
        for p in range(4): B += L(f"v_pk_fma_f32 {V(mh+2*p,2)}, {V(mh+2*p,2)}, {V(mt+2*p,2)}, {V(mh+2*p,2)} neg_lo:[1,0,0] neg_hi:[1,0,0]")
        for p in range(4): B += L(f"v_cvt_pk_bf16_f32 v{o+p}, v{mh+2*p}, v{mh+2*p+1}")
        B += L(f"ds_write_b128 v{vAw}, {V(o,4)} offset:{rt*16384+(2*ft+kk)*1024}")
        extra = []
        if b < 4:
            n_ = (len(xd) + 3 - b) // (4 - b)
            extra = xd[:n_]; xd = xd[n_:]
        else:
            n_ = (len(hreads) + 6 - b) // (7 - b) if b < 7 else 0
            extra = [[x] for x in hreads[:n_]]; hreads = hreads[n_:]
        if b == 4: M += [lgkm0(), need(("g", 21)), I("s_barrier")]
        step = max(1, len(B) // (len(extra) + 1))
        for i, x in enumerate(B):
            M.append(x)
            if extra and i % step == step - 1: M += extra.pop(0)
        assert not extra
    M += [lgkm0(), need(("g", 22)), I("s_barrier")]
    M += dump("x")
    M += stamp()

    def gp(km): return pos[km] if km in pos else None
    Dq, last = [], -1
    while nd < len(D):
        q = D[nd][1][1] - 21
        qb = max(2, q - 7)
        lo = 0 if q == 6 else pos[8 * qb] - bd
        p = max(lo + 1, last + (1 if q < 10 else 2))
        Dq.append(At(D[nd][0], p - 1, p, after=[] if q == 6 else [("b", qb)])); last = p; nd += 1
    Vq = [At(x, 8) for x in L(f"""v_mov_b32 v{vTag}, s{sTAG}
v_lshlrev_b32 v{vL4}, 2, v{vL}
v_lshrrev_b32 v{vMo}, 3, v{vL}
v_mul_u32_u24 v{vMo}, {1792-128}, v{vMo}
v_add_u32 v{vMo}, v{vMo}, v{vLin}
v_add_u32 v{vMo+1}, {8*1792}, v{vMo}
s_add_u32 s{sTG1}, s{sTAG}, 1""")]
    V2 = [At(x, 8) for x in L(f"""v_and_b32 v{t0}, 1, v{vL}
v_lshlrev_b32 v{t0}, 4, v{t0}
v_mov_b32 v{t1}, 0x3f80
v_lshlrev_b32 v{t0}, v{t0}, v{t1}
v_lshrrev_b32 v{t1}, 3, v{vN}
v_bfe_u32 v{t2}, v{vL}, 1, 1
v_lshl_add_u32 v{t1}, v{t1}, 1, v{t2}
v_bfe_u32 v{t2}, v{vL}, 2, 1
v_xor_b32 v{t2}, v{t2}, v{vH}
v_lshl_add_u32 v{t1}, v{t2}, 3, v{t1}
v_mul_u32_u24 v{t2}, {32*1792}, v{vH}
v_lshl_add_u32 v{vOut}, v{vN}, 2, v{t2}
v_lshl_add_u32 v{vOut}, s{sJ}, 8, v{vOut}""")]
    for i in range(0, 8, 2):
        V2.append(At(L(f"""v_cmp_eq_u32 vcc, {i}, v{t1}
v_cmp_eq_u32 s[42:43], {i+1}, v{t1}
s_movk_i32 s{sOO+i}, {3584*i}
v_cndmask_b32 v{Sel+i}, 0, v{t0}
v_cndmask_b32 v{Sel+i+1}, 0, v{t0}, s[42:43]"""), 8))
        V2.append(At(L(f"s_movk_i32 s{sOO+i+1}, {3584*(i+1)}"), 8))
    for i, a_ in enumerate(reversed(V2)): a_.dl = min(list(spos.values()) + [NM2]) - 4 - 3 * i
    def chks(dst, r, hop): return [f"v_add3_u32 v{dst}, v{r}, v{r+1}, s{sTG1 if hop else sTAG}"] + [f"v_add3_u32 v{dst}, v{dst}, v{r+2*i}, v{r+2*i+1}" for i in (1, 2, 3)]
    def msg(op, r, tile, c, sd, sw, fl):
        pre_ = f"s_mul_i32 s{sw}, s{tile}, {4*PIN//128}"
        if c < NO:
            pre_ += f"\ns_lshl_b32 s{sd}, s{tile}, 1" if c == 0 else f"\ns_lshl1_add_u32 s{sd}, s{tile}, {32*1792}"
            dat = [f"buffer_{op}_dwordx4 {V(r+4*i,4)}, v{vMo+i}, {S(dO,4)}, s{sd} offen {fl}" for i in range(2)]
            return pre_, dat + [f"buffer_{op}_dword v{r+8}, v{vL4}, {S(dPO,4)}, s{sw} offen offset:{PCK+256*c} {fl}"]
        if PCK > 2048:
            pre_ += f"\ns_add_u32 s{sd}, s{sw}, {2048*(c-NO)}\ns_add_u32 s{sw}, s{sw}, {PCK-2048}"
        else: sd = sw
        dat = [f"buffer_{op}_dwordx4 {V(r+4*i,4)}, v{vLin}, {S(dPO,4)}, s{sd} offen offset:{1024*i} {fl}" for i in range(2)]
        return pre_, dat + [f"buffer_{op}_dword v{r+8}, v{vL4}, {S(dPO,4)}, s{sw} offen offset:{2048+256*c} {fl}"]
    Xq = []
    pre = P.get("pre", "")
    for u in range(6):
        a_ = acc2 + 16 * (u & 1); k0 = pos[24 * u + 23]
        g0_, g1_, g2_ = (k0 + x for x in P["sto"])
        pre_, mm = msg("store", stg, sU + u, u % 3, sT0, sA, "@X")
        for p in range(8):
            Vq.append(At(L(f"v_cvt_pk_bf16_f32 v{stg+p}, v{a_+2*p}, v{a_+2*p+1}"), k0 + 2, (g0_ if p < 4 else g1_) - 1, name=("cv", u, p)))
            if p == 1: Vq.append(At(L(pre_), k0))
        for i, x in enumerate(chks(stg + 8, stg, u // 3)): Vq.append(At(L(x), k0, g2_ - 1, name=("ck", u, i)))
        if "pst" in pre: continue
        for i, g_ in enumerate((g0_, g1_)):
            Xq.append((g_, At(L(mm[i]), g_, g_, after=[("cv", u, 4 * i + 3)], solo=True)))
        Xq.append((g2_, At(L(mm[2]), g2_ - 1, g2_, after=[("ck", u, 3)])))
    OUT2 = []
    def retry(lab, bit, ld, c):
        OUT2.extend(L(f"""L_r{lab}:
{f"s_or_b32 s45, s45, {1 << bit}" if P["prof"] else ""}
{ld}
s_add_u32 s{sCNT}, s{sCNT}, 1
s_waitcnt vmcnt(0)
s_cmp_gt_u32 s{sCNT}, 0x8000
s_cbranch_scc1 L_b{lab}
{c}
s_cbranch_vccnz L_r{lab}
s_branch L_b{lab}"""))
        return L(c + ("" if "nochk" in pre else f"\ns_cbranch_vccnz L_r{lab}") + f"\nL_b{lab}:")
    Xq.append((18, At(L(f"v_cmp_ne_u32 vcc, s{sXT}, v{vPo}\ns_cbranch_vccnz L_mode\nL_near:"), 18, 20)))
    MODE = L(f"""L_mode:
{hld}
s_add_u32 s{sCNT}, s{sCNT}, 1
s_waitcnt vmcnt(0)
s_cmp_gt_u32 s{sCNT}, 0x8000
s_cbranch_scc1 L_nearF
v_subrev_u32 v{t3}, s{sTAG}, v{vPo}
v_cmp_lt_u32 vcc, 15, v{t3}
s_cbranch_vccnz L_mode
v_cmp_ne_u32 vcc, s{sXT}, v{vPo}
s_cbranch_vccnz L_nearF
s_branch L_near""")
    def pl(u, sd=sROT, sw=sB):
        pre_, mm = msg("load", inb[u], sU + min(u + 3, 6), u % 3, sd, sw, "sc1")
        return [pre_ + "\n" + mm[0], mm[1], mm[2]]
    def pchk(u):
        return retry(f"p{u}", u, "\n".join(pl(u, sT1, 42)), "\n".join(chks(t3, inb[u], u // 3)) + f"\nv_cmp_ne_u32 vcc, v{t3}, v{inb[u]+8}")
    tail = []
    for u in range(6):
        k = P["pld"][u]
        if k < 168 and "pld" not in pre:
            for i, x in enumerate(pl(u)): Xq.append((pos[k] + i / 4, At(L(x), pos[k], min(NM2 - 1, pos[k] + 1 + i))))
        if u in spos:
            c = pchk(u)
            Xq.append((spos[u] - 2, At(c[:4], spos[u] - 2, spos[u] - 2)))
            Xq.append((spos[u] - 1, At(c[4:], spos[u] - 1, spos[u] - 1)))
    Xq.sort(key=lambda t: t[0])
    Sq = [At(stamp(True), pos[k], pos[k]) for k in P.get("st2", [])]
    st, left = sched(mf, [Sq, Bq, [x[1] for x in Xq], Dq, Aq, Rq, Vq, V2], P.get("bud2", 32), P["co"], d2 - 1)
    assert not left
    M += st
    M += stamp()
    late = [u for u in range(6) if P["pld"][u] >= 168]
    for u in range(6):
        for u2 in late:
            if P["pld"][u2] - 168 == u or (u2 == u and P["pld"][u2] - 168 > u):
                if "pld" not in pre: e("\n".join(pl(u2)))
        if u in spos: continue
        M += pchk(u)
        for i in range(2): e(f"v_mfma_f32_32x32x16_bf16 {V(accD,16)}, {V(Sel+4*i,4)}, {V(inb[u]+4*i,4)}, {V(accD,16)}")
    M += stamp()
    for q in range(16):
        e(f"buffer_store_dword v{accD+q}, v{vOut}, {S(dO,4)}, s{sOO+q//2} offen offset:{1792*(q&1)} {P['ost']}")
    if P.get("amp"):
        a_, b_ = P["amp"]
        M += [vm0()] + stamp(True) + stamp(True, True) + L("s_waitcnt lgkmcnt(0)")
        e(f"""s_cmp_lg_u32 s2, {P.get("ampw", 141)}
s_cbranch_scc1 L_noamp
s_sub_u32 s44, s{sST+2*b_}, s{46 + P.get('ampc', 0) if a_ < 0 else sST+2*a_}
s_lshl_b32 s44, s44, {0 if P.get('ampc') else 4}
s_min_u32 s44, s44, 60000
L_amp:
s_memrealtime s[42:43]
s_waitcnt lgkmcnt(0)
s_sub_u32 s45, s42, s{sST+2*nst[0]-2}
s_cmp_lt_u32 s45, s44
s_cbranch_scc1 L_amp
L_noamp:""")
    elif P["prof"]:
        M += [vm0()] + stamp() + L("s_waitcnt lgkmcnt(0)")
        e(f"""s_memrealtime s[42:43]
s_mul_i32 s{sT0}, s{sR}, 7
s_add_u32 s{sT0}, s{sT0}, s{sJ}
s_lshl_b32 s{sT0}, s{sT0}, 2
s_add_u32 s{sT0}, s{sT0}, s{sW}
s_lshl_b32 s{sT0}, s{sT0}, 6
s_add_u32 s{sT0}, s{sT0}, {WS_DBG}
v_mov_b32 v0, s{sT0}
s_waitcnt lgkmcnt(0)""")
        for i in range(nst[0]):
            e(f"v_mov_b32 v4, s{sST+2*i}\nglobal_store_dword v0, v4, {S(pWS,2)} offset:{4*i}")
        e(f"v_mov_b32 v4, s44\nglobal_store_dword v0, v4, {S(pWS,2)} offset:40")
        e(f"v_mov_b32 v4, s45\nglobal_store_dword v0, v4, {S(pWS,2)} offset:44")
        e(f"v_mov_b32 v4, s46\nglobal_store_dword v0, v4, {S(pWS,2)} offset:52")
        e(f"v_mov_b32 v4, s47\nglobal_store_dword v0, v4, {S(pWS,2)} offset:48")
        e(f"v_mov_b32 v4, s{sCNT}\nglobal_store_dword v0, v4, {S(pWS,2)} offset:56")
        e(f"v_mov_b32 v4, s42\nglobal_store_dword v0, v4, {S(pWS,2)} offset:60")
    e(f"""s_lshl_b32 s{sT0}, s{sJ}, 2
s_add_u32 s{sT0}, s{sT0}, s{sW}
s_lshl_b32 s{sT0}, s{sT0}, 5
s_add_u32 s{sT0}, s{sT0}, s{sR}
s_cmp_lg_u32 s{sT0}, 31
s_cbranch_scc1 L_exit
v_mov_b32 v0, 0
global_store_dword v0, v{vTag}, {S(pWS,2)} sc1
L_exit:
s_endpgm""")
    if "eld" in pre: M = [x for x in M if not (x.kind == "vld" and x.op.endswith("x2")) and "L_eretry" not in x.text]
    if "esto" in pre: M = [x for x in M if not (x.kind == "vst" and x.op.endswith("x2")) and "L_eretry" not in x.text]
    body, nops = finalize(M, P.get("verbose"))
    drop = P.get("drop", "")
    if "dma" in drop: body = [x for x in body if x.kind != "dma"]
    if "est" in drop: body = [x for x in body if not (x.kind in ("vst", "vld") and x.op.endswith("x2")) and "L_eretry" not in x.text]
    if "bar" in drop: body = [x for x in body if x.op != "s_barrier"]
    if "dsr" in drop: body = [x for x in body if x.kind != "dsr"]
    if "dsw" in drop: body = [x for x in body if x.kind != "dsw"]
    if "wait" in drop: body = [x for x in body if not (x.op == "s_waitcnt" and "lgkmcnt(0)" not in x.text)]
    if "mfma" in drop: body = [x for x in body if x.kind != "mfma"]
    info["nops"] = nops; info["n"] = len(body); info["model"] = model(body)
    PF = L("L_pf:")
    if 1:
        nj = {0: 7, 1: 4, 2: 3, 3: 2}[z]
        PF += L(f"""s_lshr_b32 s50, s2, 3
s_lshl_b32 s50, s50, 8
v_add_u32 v1, s50, v0
s_and_b32 s51, s2, {(1 << z) - 1}
s_mul_i32 s51, s51, 28
s_add_u32 s3, s51, 27
s_lshr_b32 s51, s51, {2 + z}
s_lshr_b32 s3, s3, {2 + z}
s_add_u32 s3, s3, 1
s_and_b32 s4, s2, 7
s_lshr_b32 s4, s4, {z}
v_lshrrev_b32 v2, 6, v1
s_mov_b32 s55, 0x20000
s_mov_b32 s59, 0x20000
s_mov_b32 s63, 0x20000
s_mov_b32 s67, 0x20000
v_readfirstlane_b32 s5, v2
v_lshlrev_b32 v3, 7, v1
v_lshrrev_b32 v4, 2, v1
v_mul_u32_u24 v4, 3584, v4
v_and_b32 v5, 3, v1
v_lshl_add_u32 v4, v5, 7, v4
v_subrev_u32 v5, 448, v1
v_min_u32 v5, v5, v1
v_mul_u32_u24 v5, 896, v5
s_waitcnt lgkmcnt(0)
s_mul_i32 s6, s4, {(4 << z) * 57344}
s_add_u32 s52, s{pX}, s6
s_addc_u32 s53, s{pX+1}, 0
s_mov_b32 s54, {(4 << z) * 57344}
s_lshl_b32 s6, s51, 9
s_add_u32 s56, s{pW1}, s6
s_addc_u32 s57, s{pW1+1}, 0
s_sub_u32 s58, {WSZ}, s6
s_cmp_ge_u32 s5, 7
s_cselect_b32 s60, s{pCIM}, s{pCRE}
s_cselect_b32 s61, s{pCIM+1}, s{pCRE+1}
s_lshl_b32 s6, s51, 7
s_add_u32 s60, s60, s6
s_addc_u32 s61, s61, 0
s_sub_u32 s62, {MSZ}, s6
s_mul_i32 s6, s51, 229376
s_add_u32 s64, s{pW2}, s6
s_addc_u32 s65, s{pW2+1}, 0
s_sub_u32 s66, s3, s51
s_mul_i32 s66, s66, 229376""")
    if 1:
        PF += L(f"""s_and_b32 s50, s2, 7
s_lshl_b32 s50, s50, 2
s_lshr_b32 s51, s2, 3
s_add_u32 s50, s50, s51
s_mul_i32 s51, s50, {28*PIN}
s_add_u32 s51, s51, {WS_P}
s_add_u32 s68, s{pWS}, s51
s_addc_u32 s69, s{pWS+1}, 0
s_mov_b32 s70, {28*PIN}
s_mov_b32 s71, 0x20000
s_mul_i32 s51, s50, {64*1792}
s_add_u32 s72, s{pOUT}, s51
s_addc_u32 s73, s{pOUT+1}, 0
s_mov_b32 s74, {64*1792}
s_mov_b32 s75, 0x20000
v_lshlrev_b32 v7, 7, v0
s_lshl_b32 s50, s2, 15
v_add_u32 v1, s50, v7
s_mov_b32 s79, 0x20000""")
        k = 8
        for c in P["pfo"]:
            if c == ".": PF += L("s_waitcnt vmcnt(0)")
            if c in "x2":
                for i in range(((4 << z) * 448 + 1023) // 1024 if c == "x" else (nj * 1792 + 1023) // 1024):
                    PF += L(f"v_add_u32 v{k}, {i << 17}, v3\nbuffer_load_dword v{k}, v{k}, {'s[52:55]' if c == 'x' else 's[64:67]'}, 0 offen"); k += 1
            if c == "1":
                for i in range(2):
                    PF += L(f"v_add_u32 v6, {i * 256 * 3584}, v4")
                    for jj in range(nj): PF += L(f"buffer_load_dword v{k}, v6, s[56:59], 0 offen offset:{512*jj}"); k += 1
            if c == "c":
                for jj in range(nj): PF += L(f"buffer_load_dword v{k}, v5, s[60:63], 0 offen offset:{128*jj}"); k += 1
            if c in "ABC":
                for ptr, sz in dict(A=((pW1, WSZ),), B=((pCRE, MSZ), (pCIM, MSZ)), C=((pW2, WSZ),))[c]:
                    PF += L(f"s_mov_b32 s76, s{ptr}\ns_mov_b32 s77, s{ptr+1}\ns_mov_b32 s78, {sz}")
                    PF += L(f"buffer_load_dword v{k}, v1, s[76:79], 0 offen"); k += 1
                    if sz > 1 << 20:
                        PF += L(f"v_add_u32 v{k}, 0x100000, v1\nbuffer_load_dword v{k}, v{k}, s[76:79], 0 offen"); k += 1
            if c == "i":
                PF += L(f"""s_getpc_b64 s[80:81]
L_pc:
s_sub_u32 s80, s80, L_pc-{NAME}_kernel
s_subb_u32 s81, s81, 0
s_mov_b32 s82, L_pf-{NAME}_kernel
s_mov_b32 s83, 0x20000
v_lshrrev_b32 v6, 1, v3
buffer_load_dword v{k}, v6, s[80:83], 0 offen"""); k += 1
            if c in "fF":
                for i in range(max(4 if NO else 0, (28 * PIN + 32767) >> 15)):
                    PF += L(f"v_add_u32 v6, {i << 15}, v7")
                    if NO and i < 4: PF += L(f"buffer_load_dword v{k}, v6, s[72:75], 0 offen"); k += 1
                    if i < (28 * PIN + 32767) >> 15: PF += L(f"buffer_load_dword v{k}, v6, s[68:71], 0 offen"); k += 1
                    if c == "F": PF += L("s_waitcnt vmcnt(0)")
    PF += L("L_pe:\ns_endpgm")
    txt = [f"; @launch grid=(256,1,1) block=(256,1,1) lds=163840",
           '.amdgcn_target "amdgcn-amd-amdhsa--gfx950"', ".text", f".globl {NAME}_kernel", ".p2align 8",
           f".type {NAME}_kernel,@function", f"{NAME}_kernel:"]
    near = [x.text for x in body + OUT2]
    far = [re.sub(r"\b(L_\w+)", r"\1F", t).replace("@X", "sc1") for t in near[near.index("L_near:"):]]
    txt += [t.replace("@X", P["sfl"]).rstrip() for t in near] + [x.text for x in OUT + MODE + PF] + far
    txt.append(f""".section .rodata,"a"
.p2align 6
.amdhsa_kernel {NAME}_kernel
  .amdhsa_next_free_vgpr 512
  .amdhsa_next_free_sgpr 102
  .amdhsa_accum_offset 256
  .amdhsa_group_segment_fixed_size 0
  .amdhsa_kernarg_size 136
  .amdhsa_user_sgpr_count 2
  .amdhsa_user_sgpr_kernarg_segment_ptr 1
  .amdhsa_system_sgpr_workgroup_id_x 1
.end_amdhsa_kernel""")
    return "\n".join(txt) + "\n", info

if __name__ == "__main__":
    kw = {}
    for a in sys.argv[2:]:
        k, v = a.split("=", 1); kw[k] = eval(v)
    t, info = gen(**kw)
    open(sys.argv[1], "w").write(t)
    print(info)
```

```python
import sys, collections, re
from asmlib import *

NAME = "gated_mix__ssm_conv_s5__dense_activation_mish__prompt"
LOG2E = 1.4426950408889634
EPC = 0x9E3779B9
XSZ, MSZ, WSZ, OSZ = 2048 * 896, 448 * 896, 448 * 3584, 2048 * 1792
WS_E, WS_P, WS_DBG = 4096, 1 << 20, 18 << 20
SL = 16384
XB = 6 * SL; HB = 6 * SL; AB = 7 * SL
GP = 152 * 1024; GT = 153 * 1024; PR = 154 * 1024
sW, sKB, sR, sJ, sROT, sTAG, sWQ = 3, 4, 11, 12, 13, 14, 15
pX, pLRE, pLIM, pBRE, pBIM, pCRE, pCIM, pDT, pDS, pW1, pB1, pW2, pGW, pOUT, pWS = 16, 18, 20, 22, 24, 26, 28, 30, 32, 36, 38, 40, 42, 44, 48
sT0, sT1 = 50, 51
dX, dBR, dBI, dW1, dC, dW2, dE, dPO, dO = 52, 56, 60, 64, 68, 72, 76, 84, 88
sA, sB, sTG1, sXT = 80, 81, 82, 83
vPo = 42
sU, sCNT, sSO, sT3 = 92, 99, 100, 101
sOO = 34
sST = 16
vL, vN, vH = 1, 2, 3
vdX, vdB, vdW1, vdC, vdW2 = 4, 6, 10, 14, 18
vX, vB, vG, vW1, vP, vP2, vXD = 22, 26, 34, 35, 39, 40, 41
cL, cL16, cL32, cL64, cL512, cL1K, cS = 43, 45, 47, 49, 51, 53, 55
vT = 57
accD, dia, xD, Gx, gwf, raw = 64, 80, 88, 96, 104, 108
Bfr, rawb, accS, Wfr, accF = 112, 128, 144, 176, 192
scr = 208
aG, aH = 224, 224
omg = 4
vE0, vE1 = 8, 9
vC = [22 + i for i in range(8)] + [30, 31, 32, 33, 34, 39, 40, 41]
Eg, gR = 112, 80
F2, RING = 64, 10
vW2 = 168
vHr, vAw, vAr, vLin, vOut = 171, 172, 173, 174, 175
stg, acc2, Sel = 176, 192, 248
vTag, vL4, vMo = 186, 187, 190
inb = [80 + 10 * i for i in range(6)]

DEF = dict(z=0, d=4, la=12, egat=118, echk=150, pld=(66, 90, 114, 130, 150, 168), sel=(92, 116, 140, 156, 168, 168),
           hel=4, ipf=1, sto=(5, 7, 9), nout=2, sfl="", d2=4, bd=5, co=2, ost="", prof=0, dump=None,
           pfo="ABC.F", bud=36, fa=8, co1=4, re=2, egs=1, ndm=999, dsp=(1,2.4), rot=(4, 1, 1, 0), rot2=(4, 0, 1, 0))

def gen(**kw):
    P = dict(DEF); P.update(kw)
    z, d, LA = P["z"], P["d"], P["la"]
    NO = P["nout"]
    PCK = (3 - NO) * 2048
    PFL = PCK + 768
    PIN = PFL + 128
    M = []
    def e(t, **k):
        for x in t.split("\n"):
            if x.strip(): M.append(I(x, **k))
    def L(t, **k): return [I(x, **k) for x in t.split("\n") if x.strip()]
    nst = [0]
    def stamp(custom=False, rt=False):
        if not P["prof"]: return []
        if (P.get("st1") or P.get("st2")) and not custom: return []
        nst[0] += 1
        return [I(f"{'s_memrealtime' if rt or (P.get('amp') and not P.get('ampc')) else 's_memtime'} {S(sST + 2 * (nst[0] - 1), 2)}")]
    def dump(tag):
        if not P["dump"] or P["dump"][0] != tag: return []
        o = [vm0(), lgkm0(), I("s_nop 7"), I("s_nop 7")]
        o += L(f"""s_mul_i32 s{sT0}, s{sR}, 7
s_add_u32 s{sT0}, s{sT0}, s{sJ}
s_lshl_b32 s{sT0}, s{sT0}, 2
s_add_u32 s{sT0}, s{sT0}, s{sW}
s_lshl_b32 s{sT0}, s{sT0}, 15
s_add_u32 s{sT0}, s{sT0}, {WS_DBG}
v_lshlrev_b32 v0, 2, v{vL}
v_add_u32 v0, s{sT0}, v0""")
        for i, r in enumerate(P["dump"][1]):
            o += L(f"global_store_dword v0, {r}, {S(pWS, 2)}\nv_add_u32 v0, 256, v0")
        o += L("s_endpgm")
        return o

    def lin(dst, c, tmp):
        if c[0] == 4 * c[2] and not c[3]:
            terms = [(f"s_mov_b32 @, s{sR}", c[2]), (f"s_mov_b32 @, s{sJ}", c[1])]
        else:
            terms = [(f"s_lshr_b32 @, s{sR}, 2", c[0]), (f"s_mov_b32 @, s{sJ}", c[1]), (f"s_and_b32 @, s{sR}, 3", c[2]),
                     (f"s_bfe_u32 @, s{sR}, 0x10001", c[3])]
        o, first = [], True
        for t, m in terms:
            if not m: continue
            r_ = f"s{dst}" if first else f"s{tmp}"
            if not first and m == 1 and t.startswith("s_mov"): o.append(f"s_add_u32 s{dst}, s{dst}, {t.split()[-1]}"); continue
            o.append(t.replace("@", r_))
            if m > 1: o.append(f"s_mul_i32 {r_}, {r_}, {m}")
            if not first: o.append(f"s_add_u32 s{dst}, s{dst}, {r_}")
            first = False
        return "\n".join(o) if o else f"s_mov_b32 s{dst}, 0"
    if P["prof"]: e("s_memrealtime s[98:99]\ns_memtime s[96:97]")
    e(f"""s_cmp_ge_u32 s2, 256
s_cbranch_scc1 L_exit
s_load_dwordx16 s[16:31], s[0:1], 0
s_load_dwordx16 s[32:47], s[0:1], 64
s_load_dwordx2 s[48:49], s[0:1], 128""")
    if P["ipf"]:
        e(f"""s_getpc_b64 s[50:51]
L_pc0:
v_lshlrev_b32 v{vT}, 7, v0
v_min_u32 v{vT}, L_pe-L_pc0, v{vT}
global_load_dword v191, v{vT}, s[50:51]""")
    e(f"""s_cmp_lt_u32 s2, 32
s_cbranch_scc1 L_pf
v_lshrrev_b32 v{vT}, 6, v0
v_and_b32 v{vL}, 63, v0
v_readfirstlane_b32 s{sW}, v{vT}
s_and_b32 s{sT0}, s2, 7
s_lshr_b32 s{sT1}, s2, 3
s_and_b32 s{sR}, s{sT0}, {(1 << z) - 1}
s_mul_i32 s{sR}, s{sR}, 28
s_add_u32 s{sT1}, s{sT1}, s{sR}
s_sub_u32 s{sT1}, s{sT1}, 4
s_lshr_b32 s{sJ}, s{sT1}, {2 + z}
s_and_b32 s{sT1}, s{sT1}, {(4 << z) - 1}
s_lshr_b32 s{sT0}, s{sT0}, {z}
s_lshl_b32 s{sT0}, s{sT0}, {2 + z}
s_add_u32 s{sR}, s{sT0}, s{sT1}
{lin(sROT, P["rot"], sT0)}
s_mul_i32 s{sT0}, s{sROT}, 37
s_lshr_b32 s{sT0}, s{sT0}, 8
s_mul_i32 s{sT0}, s{sT0}, 7
s_sub_u32 s{sROT}, s{sROT}, s{sT0}
s_lshl_b32 s{sKB}, s{sROT}, 7
s_lshl_b32 s{sWQ}, s{sW}, 12""")
    for s in range(1, 7):
        e(f"""s_add_u32 s{sKB+s}, s{sKB+s-1}, 128
s_cmp_ge_u32 s{sKB+s}, 896
s_cselect_b32 s{sKB+s}, 0, s{sKB+s}""")
    e(f"""s_lshl_b32 s{sT0}, s{sR}, 3
s_add_u32 s{sT0}, s{sT0}, s{sW}
s_mul_i32 s{dX}, s{sT0}, 7168
s_sub_u32 s{dX+2}, {XSZ}, s{dX}
s_lshl_b32 s{sT1}, s{sJ}, 2
s_add_u32 s{sT1}, s{sT1}, s{sW}
s_mul_i32 s{dBR}, s{sT1}, 14336
s_sub_u32 s{dBR+2}, {MSZ}, s{dBR}
s_add_u32 s{dBI+2}, s{dBR+2}, 1024""")
    for dd in (dX, dBR, dBI, dW1, dC, dW2, dE, dPO, dO):
        e(f"s_mov_b32 s{dd+3}, 0x20000")
    t0, t1, t2, t3, t4 = vT, vT + 1, vT + 2, vT + 3, vT + 4
    e(f"""v_and_b32 v{vN}, 31, v{vL}
v_lshrrev_b32 v{vH}, 5, v{vL}
v_lshrrev_b32 v{t0}, 3, v{vL}
v_lshrrev_b32 v{t1}, 4, v{vL}
v_and_b32 v{t3}, 1, v{t1}
v_lshlrev_b32 v{t3}, 2, v{t3}
v_xor_b32 v{t3}, v{t3}, v{vL}
v_and_b32 v{t3}, 7, v{t3}
v_lshlrev_b32 v{t3}, 4, v{t3}
v_xor_b32 v{t1}, v{t1}, v{vL}
v_and_b32 v{t1}, 7, v{t1}
v_lshlrev_b32 v{t1}, 4, v{t1}
v_xor_b32 v{t2}, 64, v{t1}
v_and_b32 v{t4}, 3, v{t0}
v_lshl_add_u32 v{t4}, v{vH}, 5, v{t4}
v_mul_u32_u24 v{t4}, 896, v{t4}
v_add_u32 v{vdX}, v{t4}, v{t1}
v_add_u32 v{vdX+1}, v{t4}, v{t2}
v_add_u32 v{vdX+1}, {3584-1024}, v{vdX+1}
v_mul_u32_u24 v{t4}, 896, v{t0}
v_add_u32 v{vdB}, v{t4}, v{t1}
v_add_u32 v{vdB+1}, v{t4}, v{t2}
v_add_u32 v{vdB+2}, {7168-2048}, v{vdB}
v_add_u32 v{vdB+3}, {7168-2048}, v{vdB+1}
v_add_u32 v{vdW2}, v{t4}, v{t3}
v_mul_u32_u24 v{t4}, 3584, v{t0}
v_add_u32 v{vdW1}, v{t4}, v{t3}""")
    e(f"""v_add_u32 v{t0}, s{sROT}, v{t0}
v_subrev_u32 v{t1}, 7, v{t0}
v_min_u32 v{t0}, v{t0}, v{t1}
v_and_b32 v{t1}, 7, v{vL}
v_lshlrev_b32 v{t4}, 2, v{t1}
v_lshl_add_u32 v{t0}, v{t0}, 7, v{t4}
s_lshl_b32 s{sT0}, s{sW}, 5
v_add_u32 v{t0}, s{sT0}, v{t0}
v_lshrrev_b32 v{t2}, 4, v{vN}
v_lshl_add_u32 v{t2}, v{t2}, 3, v{t1}
s_lshl_b32 s{sT0}, s{sT1}, 4
v_add_lshl_u32 v{t2}, v{t2}, s{sT0}, 1
s_lshl_b32 s{sT0}, s{sT1}, 5
v_add_lshl_u32 v{t1}, v{vN}, s{sT0}, 2
s_and_b32 s{sT3}, s{sW}, 1
s_lshl_b32 s{sT0}, s{sJ}, 1
s_add_u32 s{sT0}, s{sT0}, s{sT3}
s_lshl_b32 s{sT0}, s{sT0}, 5
v_add_lshl_u32 v{t3}, v{vN}, s{sT0}, 1
s_lshr_b32 s{sSO}, s{sWQ}, 1""")
    M.append(lgkm0())
    if P["prof"]: e("s_mov_b32 s46, s98\ns_mov_b32 s47, s96")
    e(f"""s_add_u32 s{dX}, s{dX}, s{pX}
s_addc_u32 s{dX+1}, s{pX+1}, 0
s_load_dword s{sTAG}, {S(pWS, 2)}, 0""")

    D = []
    def dgrp(tok, pre, lines):
        for i, t in enumerate(lines):
            D.append([(L(pre) if i == 0 else []) + [I(t, tok=tok if i == len(lines) - 1 else None)], tok])
    def slot(g):
        if g < 27: return g % 6
        if g < 30: return g - 21
        return slot(g - 9)
    for s in range(7):
        dgrp(("x", s), f"s_add_u32 m0, s{sSO}, {XB + s * 8192}",
             [f"buffer_load_dwordx4 v{vdX+i}, {S(dX,4)}, s{sKB+s} offen offset:{1024*i} lds" for i in range(2)])
        dgrp(("g", s), f"s_add_u32 m0, s{sWQ}, {slot(s) * SL}",
             [f"buffer_load_dwordx4 v{vdB+i}, {S(dBI if i & 1 else dBR,4)}, s{sKB+s} offen offset:{1024*i} lds" for i in range(4)])
    for y in range(14):
        so = f"s_mul_i32 s{sSO}, s{sKB+y//2}, 1792" if y % 2 == 0 else f"s_add_u32 s{sSO}, s{sSO}, 114688"
        dgrp(("g", 7 + y), f"s_add_u32 m0, s{sWQ}, {slot(7 + y) * SL}\n{so}",
             [f"buffer_load_dwordx4 v{vdW1+i}, {S(dW1,4)}, s{sSO} offen offset:{1024*i} lds" for i in range(4)])
    for q in range(21):
        u, k = q // 3, q % 3
        so = (f"s_mul_i32 s{sSO}, s{sU+u}, 448", f"s_mov_b32 s{sSO}, s{sU+u}", f"s_add_u32 s{sSO}, s{sSO}, 114688")[k]
        vd, dd = (vdC, dC) if k == 0 else (vdW2, dW2)
        dgrp(("g", 21 + q), f"s_add_u32 m0, s{sWQ}, {slot(21 + q) * SL}\n{so}",
             [f"buffer_load_dwordx4 v{vd+i}, {S(dd,4)}, s{sSO} offen offset:{1024*i} lds" for i in range(4)])
    NS01 = 42 + 56

    def put(n):
        for x in D[n][0]: M.append(x)
    put(0); put(1)
    e(f"""s_add_u32 s{dBI}, s{dBR}, s{pBIM}
s_addc_u32 s{dBI+1}, s{pBIM+1}, 0
s_add_u32 s{dBR}, s{dBR}, s{pBRE}
s_addc_u32 s{dBR+1}, s{pBRE+1}, 0
s_sub_u32 s{dBI}, s{dBI}, 1024
s_subb_u32 s{dBI+1}, s{dBI+1}, 0""")
    for n in range(2, 6): put(n)
    e(f"""s_lshr_b32 s{sT0}, s{sWQ}, 3
s_add_u32 m0, s{sT0}, {PR}
global_load_ushort v{raw}, v{t2}, {S(pLRE,2)}
global_load_lds_dword v{t0}, {S(pGW,2)}
s_add_u32 m0, s{sT0}, {PR + 256}
global_load_ushort v{raw+1}, v{t2}, {S(pLIM,2)}""")
    e(f"global_load_lds_dword v{t1}, {S(pB1,2)}", tok="par")
    e(f"""global_load_ushort v{raw+2}, v{t2}, {S(pDT,2)}
global_load_ushort v{raw+3}, v{t3}, {S(pDS,2)}""")
    for n in range(6, LA): put(n)

    e(f"""s_lshl_b32 s{dW1}, s{sT1}, 7
s_sub_u32 s{dW1+2}, {WSZ}, s{dW1}
s_add_u32 s{dW1}, s{dW1}, s{pW1}
s_addc_u32 s{dW1+1}, s{pW1+1}, 0
s_mul_i32 s{dC}, s{sT3}, 28672
s_lshl_b32 s{dC+1}, s{sJ}, 7
s_add_u32 s{dC}, s{dC}, s{dC+1}
s_sub_u32 s{dC+2}, {MSZ}, s{dC}
s_cmp_ge_u32 s{sW}, 2
s_cselect_b32 s{pCRE}, s{pCIM}, s{pCRE}
s_cselect_b32 s{pCRE+1}, s{pCIM+1}, s{pCRE+1}
s_add_u32 s{dC}, s{dC}, s{pCRE}
s_addc_u32 s{dC+1}, s{pCRE+1}, 0
s_lshl_b32 s{dW2}, s{sJ}, 3
s_add_u32 s{dW2}, s{dW2}, s{sW}
s_mul_i32 s{dW2}, s{dW2}, 28672
s_sub_u32 s{dW2+2}, {WSZ}, s{dW2}
s_add_u32 s{dW2}, s{dW2}, s{pW2}
s_addc_u32 s{dW2+1}, s{pW2+1}, 0
s_lshl_b32 s{dE}, s{sT1}, 12
s_add_u32 s{dE}, s{dE}, {WS_E}
s_add_u32 s{dE}, s{dE}, s{pWS}
s_addc_u32 s{dE+1}, s{pWS+1}, 0
s_mov_b32 s{dE+2}, 4096
s_mul_i32 s{dPO}, s{sR}, 28
s_add_u32 s{dPO}, s{dPO}, s{sW}
s_mul_i32 s{dPO}, s{dPO}, {PIN}
s_add_u32 s{dPO}, s{dPO}, {WS_P}
s_add_u32 s{dPO}, s{dPO}, s{pWS}
s_addc_u32 s{dPO+1}, s{pWS+1}, 0
s_mov_b32 s{dPO+2}, {25*PIN}
s_lshr_b32 s{sCNT}, s{sW}, 1
s_lshl_b32 s{dO}, s{sR}, 2
s_add_u32 s{dO}, s{dO}, s{sCNT}
s_mul_i32 s{dO}, s{dO}, {16*1792}
s_lshl_b32 s{dO+1}, s{sT3}, 7
s_add_u32 s{dO}, s{dO}, s{dO+1}
s_sub_u32 s{dO+2}, {OSZ}, s{dO}
s_add_u32 s{dO}, s{dO}, s{pOUT}
s_addc_u32 s{dO+1}, s{pOUT+1}, 0
{lin(sU, P["rot2"], sT1)}
s_mul_i32 s{sT1}, s{sU}, 43
s_lshr_b32 s{sT1}, s{sT1}, 8
s_mul_i32 s{sT1}, s{sT1}, 6
s_sub_u32 s{sT1}, s{sU}, s{sT1}""")
    for s in range(6):
        e(f"""s_add_u32 s{sU+s}, s{sT1}, s{sJ}
s_add_u32 s{sU+s}, s{sU+s}, 1
s_cmp_ge_u32 s{sU+s}, 7
s_cselect_b32 s{sU+6}, 7, 0
s_sub_u32 s{sU+s}, s{sU+s}, s{sU+6}
s_lshl_b32 s{sU+s}, s{sU+s}, 7""")
        if s < 5:
            e(f"""s_add_u32 s{sT1}, s{sT1}, 1
s_cmp_ge_u32 s{sT1}, 6
s_cselect_b32 s{sT1}, 0, s{sT1}""")
    e(f"s_lshl_b32 s{sU+6}, s{sJ}, 7")
    for i in range(1, 4):
        e(f"v_add_u32 v{vdW1+i}, {i*(28672-1024)}, v{vdW1}\nv_add_u32 v{vdW2+i}, {i*6144}, v{vdW2}")
    e(f"""v_mov_b32 v{vdC}, v{vdB}
v_add_u32 v{vdC+1}, 6144, v{vdB+1}
v_add_u32 v{vdC+2}, {2*6144}, v{vdB}
v_add_u32 v{vdC+3}, {3*6144}, v{vdB+1}
v_lshrrev_b32 v{t0}, 1, v{vN}
v_xor_b32 v{t0}, v{t0}, v{vH}
v_and_b32 v{t0}, 7, v{t0}
v_lshlrev_b32 v{t0}, 4, v{t0}
v_lshl_add_u32 v{t0}, v{vN}, 7, v{t0}""")
    for k in range(4):
        e(f"""v_xor_b32 v{t1}, {32*k}, v{t0}
v_add_u32 v{vX+k}, {XB}, v{t1}
v_add_u32 v{vB+k}, s{sWQ}, v{t1}
v_add_u32 v{vB+4+k}, 0x10000, v{vB+k}""")
    e(f"""s_lshl_b32 s{sT1}, s{sW}, 5
v_xor_b32 v{vG}, s{sT1}, v{vX}
s_add_u32 s{sT0}, s{sT0}, {PR}
v_lshl_add_u32 v{vP}, v{vH}, 4, s{sT0}
v_lshl_add_u32 v{vP2}, v{vH}, 5, s{sT0}
s_sub_u32 s{sT0}, s{sJ}, s{sROT}
s_cselect_b32 s{sT1}, 7, 0
s_add_u32 s{sT0}, s{sT0}, s{sT1}
s_lshl_b32 s{sT0}, s{sT0}, 1
s_add_u32 s{sT0}, s{sT0}, s{sCNT}
s_lshl_b32 s{sT0}, s{sT0}, 12
s_lshl_b32 s{sT1}, s{sT3}, 6
v_xor_b32 v{vXD}, s{sT1}, v{vX}
v_add_u32 v{vXD}, s{sT0}, v{vXD}
v_xor_b32 v{vXD+1}, 32, v{vXD}
v_bfe_u32 v{t0}, v{vL}, 2, 2
v_lshl_add_u32 v{t0}, v{vH}, 3, v{t0}
v_lshlrev_b32 v{t0}, 7, v{t0}
v_bfe_u32 v{t1}, v{vL}, 3, 1
v_lshl_add_u32 v{t0}, v{t1}, 6, v{t0}
v_and_b32 v{t1}, 1, v{vL}
v_lshl_add_u32 v{t0}, v{t1}, 5, v{t0}
v_and_b32 v{t1}, 16, v{vL}
v_add_u32 v{t0}, v{t0}, v{t1}
v_and_b32 v{t1}, 2, v{vL}
v_lshl_add_u32 v{t0}, v{t1}, 2, v{t0}
v_add_u32 v{vW1}, s{sWQ}, v{t0}
v_xor_b32 v{vW1+1}, 64, v{vW1}
v_add_u32 v{vW1+2}, 0x10000, v{vW1}
v_add_u32 v{vW1+3}, 0x10000, v{vW1+1}
s_mov_b32 s{sCNT}, 0""")
    if P["prof"]: e("s_mov_b32 s44, 0\ns_mov_b32 s45, 0")
    M.append(lgkm0())
    e(f"s_add_u32 s{sTAG}, s{sTAG}, {EPC}")
    M += stamp()

    mf, Bq, Rq, used = [], [], [], {}
    def mfma(dst, a, b, c, exp=None):
        for r in (a, b): used[r] = len(mf)
        mf.append(I(f"v_mfma_f32_32x32x16_bf16 {dst}, {a}, {b}, {c}", exp=exp)); return len(mf) - 1
    def rd(k, frag, bar, ins):
        k = max(-1, k)
        Rq.append(At(ins, min(k, max(used.get(frag, -2) + 1, k - P["re"])), k, after=[bar]))
    def xa(s, ks, rt): return A(((s * 4 + ks) * 2 + rt) * 4, 4)
    tneed, tlast = {}, {}
    nb = 0
    for s in range(7):
        k0 = len(mf)
        tneed[("x", s)] = tneed[("g", s)] = k0 - d
        Bq.append(At([need(("g", s)), I("s_barrier")], max(-1, k0 - d), max(-1, k0 - d), name=s))
        wn, of = (0, slot(s) * SL) if slot(s) < 4 else (4, slot(s) * SL - 65536)
        for ks in range(4):
            b = V(Bfr + 4 * (nb % 4), 4); nb += 1
            k = len(mf)
            rd(k - d, b, s, I(f"ds_read_b128 {b}, v{vB+wn+ks} offset:{of}", ver=("B", s, ks)))
            for rt in range(2):
                rd(k + rt - d, None, s, I(f"ds_read_b128 {xa(s,ks,rt)}, v{vX+ks} offset:{s*8192+rt*4096}", ver=("x", s, ks, rt)))
                acc = V(accS + 16 * rt, 16)
                mfma(acc, xa(s, ks, rt), b, acc if s or ks else "0", [(b, ("B", s, ks)), (xa(s, ks, rt), ("x", s, ks, rt))])
        tlast[s] = len(mf) - 1
        k = len(mf)
        rd(k - d, V(gwf, 4), s, ([need("par")] if s == 0 else []) + [I(f"ds_read_b128 {V(gwf,4)}, v{vP} offset:{32*s}", ver=("gw", s))])
        for rt in range(2):
            g = V(Gx + 4 * rt, 4)
            rd(k + rt - d, g, s, I(f"ds_read_b128 {g}, v{vG} offset:{s*8192+rt*4096}", ver=("gx", s, rt)))
            acc = A(aG + 16 * rt, 16)
            mfma(acc, V(gwf, 4), g, acc if s else "0", [(V(gwf, 4), ("gw", s)), (g, ("gx", s, rt))])
    for kk in range(2):
        k = len(mf)
        rd(k - d, None, 6, I(f"ds_read_b128 {V(xD+4*kk,4)}, v{vXD+kk}", ver=("xd", kk), tok=("xd", kk)))
        mfma(V(accD, 16), V(xD + 4 * kk, 4), V(dia + 4 * kk, 4), V(accD, 16) if kk else "0",
             [(V(xD + 4 * kk, 4), ("xd", kk)), (V(dia + 4 * kk, 4), "dia")])
    S1 = len(mf)
    nw = 0
    for y in range(14):
        g = 7 + y
        tneed[("g", g)] = len(mf) - d - 1
        Bq.append(At(need(("g", g)), len(mf) - d - 1, len(mf) - d - 1, name=g))
        wn, of = (0, slot(g) * SL) if slot(g) < 4 else (2, slot(g) * SL - 65536)
        for k2 in range(2):
            s, ks = y // 2, 2 * (y % 2) + k2
            for ft in range(2):
                wr = Wfr + 4 * (nw % 4); nw += 1
                k = len(mf)
                for ee in range(2):
                    rd(k - d - 1 + ee, V(wr, 4), g, I(f"ds_read_b64_tr_b16 {V(wr+2*ee,2)}, v{vW1+wn+ft} offset:{of+(16*k2+4*ee)*128}", ver=("W", y, k2, ft)))
                for rt in (1, 0):
                    acc = V(accF + 32 * ft + 16 * rt, 16)
                    c = acc if (y or k2) else V(accF + 32 * ft, 16)
                    ex = [(V(wr, 4), ("W", y, k2, ft)), (xa(s, ks, rt), ("x", s, ks, rt))]
                    if not (y or k2): ex.append((c, "bias"))
                    mfma(acc, V(wr, 4), xa(s, ks, rt), c, ex)
        tlast[g] = len(mf) - 1
    NM1 = len(mf)
    ts, prev, n = [], -d - 10, 0
    for s in range(7):
        t = tneed[("g", s)]
        ts += [prev + (t - prev) * (i + 1) / 6 for i in range(6)]; prev = t
    for g in range(7, 21):
        t = tneed[("g", g)]
        ts += [prev + (t - prev) * (i + 1) / 4 for i in range(4)]; prev = t
    vEg = vT
    egp = f"s_add_u32 m0, s{sWQ}, {AB}"
    gl = [f"buffer_load_dwordx4 v{vEg}, {S(dE,4)}, 0 offen offset:{1024*i} sc1 lds" for i in range(4)]
    nd, last, Dq, shift = LA, -1, [], 0
    def dput(ins, p, after=()):
        if Dq: Dq[-1].ins += ins[:-1]; ins = ins[-1:]
        Dq.append(At(list(ins), p - 1, p, after=after))
    while nd - LA < len(ts):
        p = max(int(ts[nd - LA] + shift) + 1, last, 0)
        tok = D[nd][1]
        if tok[0] == "g" and tok[1] >= 6: p = max(p, tlast[tok[1] - 6] + 1)
        if p >= P["egat"] and not shift and len(D[nd][0]) > 1:
            for i in range(4): dput((L(egp) if i == 0 else []) + [I(gl[i], tok="eg" if i == 3 else None)], p + P["egs"] * i, ["eg"])
            shift = P["egs"] * 4
            continue
        if p >= NM1 or nd >= P["ndm"]: break
        dput(D[nd][0], p); last = p; nd += 1

    F = []
    def f(t, **k): F.extend(L(t, **k))
    z0, z1, z2, z3, z4, z5, z6 = range(scr, scr + 7)
    f(f"""s_getreg_b32 s{sXT}, hwreg(HW_REG_XCC_ID, 0, 4)
s_lshl2_add_u32 s{sA}, s{sJ}, {PFL}
s_add_u32 s{sXT}, s{sXT}, s{sTAG}
v_mov_b32 v{z0}, s{sXT}
buffer_store_dword v{z0}, off, {S(dPO,4)}, s{sA} sc1""", at=P["hel"])
    f(f"""v_lshlrev_b32 v{raw+2}, 16, v{raw+2}
v_mul_f32 v{raw+2}, {fb(LOG2E)}, v{raw+2}
v_exp_f32 v{raw+2}, v{raw+2}
v_lshlrev_b32 v{raw}, 16, v{raw}
v_lshlrev_b32 v{raw+1}, 16, v{raw+1}
v_cvt_pk_bf16_f32 v{raw+2}, v{raw+2}, v{raw+2}
v_lshlrev_b32 v{z0}, 28, v{vL}
v_and_b32 v{z0}, 0x80000000, v{z0}
v_lshlrev_b32 v{raw+2}, 16, v{raw+2}
v_xor_b32 v{raw+1}, v{z0}, v{raw+1}
v_xor_b32 v{raw+1}, 0x80000000, v{raw+1}
v_xor_b32 v{z0}, 2.0, v{z0}
v_mul_f32 v{z1}, v{raw+2}, v{raw}
v_mul_f32 v{z2}, v{raw+2}, v{raw+1}
v_mul_f32 v{z1}, {fb(LOG2E)}, v{z1}
v_mul_f32 v{z2}, 0.15915494, v{z2}
v_exp_f32 v{z1}, v{z1}
v_rndne_f32 v{z3}, v{z2}
v_sub_f32 v{z2}, v{z2}, v{z3}
v_cos_f32 v{z3}, v{z2}
v_sin_f32 v{z4}, v{z2}
v_mul_f32 v{z5}, v{raw}, v{raw}
v_fmac_f32 v{z5}, v{raw+1}, v{raw+1}
v_rcp_f32 v{z5}, v{z5}
v_mul_f32 v{cL}, v{z3}, v{z1}
v_mul_f32 v{cL+1}, v{z4}, v{z1}
v_mul_f32 v{z5}, v{z5}, v{z0}
v_add_f32 v{z1}, -1.0, v{cL}
v_mul_f32 v{z2}, v{z1}, v{raw}
v_fmac_f32 v{z2}, v{cL+1}, v{raw+1}
v_mul_f32 v{cS}, v{z2}, v{z5}
v_mul_f32 v{z2}, v{cL+1}, v{raw}
v_fma_f32 v{z2}, -v{z1}, v{raw+1}, v{z2}
v_mul_f32 v{cS+1}, v{z2}, v{z5}""", at=P["fa"])
    def sq(dst, src):
        f(f"""v_mul_f32 v{z6}, v{src+1}, v{src+1}
v_add_f32 v{z5}, v{src}, v{src}
v_fma_f32 v{dst}, v{src}, v{src}, -v{z6}
v_mul_f32 v{dst+1}, v{z5}, v{src+1}""")
    sq(z0, cL); sq(z0, z0); sq(z0, z0); sq(cL16, z0); sq(cL32, cL16); sq(cL64, cL32)
    sq(z0, cL64); sq(z0, z0); sq(cL512, z0); sq(cL1K, cL512)
    f(f"""v_and_b32 v{z0}, 1, v{vL}
v_lshlrev_b32 v{z0}, 4, v{z0}
v_lshlrev_b32 v{z0}, v{z0}, v{raw+3}
v_bfe_u32 v{z1}, v{vL}, 1, 2
v_bfe_u32 v{z2}, v{vL}, 4, 1
v_lshl_add_u32 v{z1}, v{z2}, 2, v{z1}
v_bfe_u32 v{z2}, v{vL}, 3, 1
v_xor_b32 v{z2}, v{z2}, v{vH}
v_lshl_add_u32 v{z1}, v{z2}, 3, v{z1}""")
    for i in range(4):
        f(f"ds_read_b128 {V(rawb+4*i,4)}, v{vP2} offset:{256+64*(i>>1)+16*(i&1)}")
    for i in range(8):
        f(f"v_cmp_eq_u32 vcc, {i}, v{z1}")
        f(f"v_lshlrev_b32 v{accF+32*(i>>2)+4*(i&3)}, 16, v{rawb+2*i}", ver="bias")
        f(f"v_and_b32 v{accF+32*(i>>2)+4*(i&3)+1}, 0xffff0000, v{rawb+2*i}", ver="bias")
        f(f"v_cndmask_b32 v{dia+i}, 0, v{z0}", ver="dia")
        f(f"v_lshlrev_b32 v{accF+32*(i>>2)+4*(i&3)+2}, 16, v{rawb+2*i+1}", ver="bias")
        f(f"v_and_b32 v{accF+32*(i>>2)+4*(i&3)+3}, 0xffff0000, v{rawb+2*i+1}", ver="bias")
    NFA = len(F)

    DPP = "row_ror:8 row_mask:0xf bank_mask:0xf"
    def cm1(dst, m, zz, add): return f"v_fma_f32 v{dst}, v{m}, v{zz}, {add}"
    def cm2(dst, m, zz, neg=""): return f"v_fmac_f32_dpp v{dst}, v{zz}, {neg}v{m+1} {DPP}"
    ea, eb = [vT, vT + 1], [vT + 2, vT + 3]
    pa, pb = accS, accS + 16
    for q in range(1, 16):
        da, db = ea[q & 1], eb[q & 1]
        f("\n".join([cm1(da, cL, pa, f"v{accS+q}"), cm1(db, cL, pb, f"v{accS+16+q}"), cm2(da, cL, pa), cm2(db, cL, pb)]),
          at=S1 - 1)
        pa, pb = da, db
    e0, e32, elo, ehi = pa, vT, vT + 4, vT + 5
    f(f"""v_lshlrev_b32 v{vT+6}, 4, v{vN}
s_lshl_b32 s{sT0}, s{sW}, 2
{cm1(elo, cL16, e0, f'v{pb}')}
{cm2(elo, cL16, e0)}
s_add_u32 s{sT0}, s{sT0}, {GP}
v_mov_b32 v{ehi}, v{elo}
v_add_u32 v{vT+2}, s{sT0}, v{vT+6}
s_sub_u32 s{sT1}, 31, s{sR}
v_permlane32_swap_b32 v{elo}, v{ehi}
s_lshl_b32 s{sT1}, s{sT1}, 7
v_lshlrev_b32 v{vE1}, 3, v{vN}
{cm1(vE0, cL32, elo, f'v{ehi}')}
{cm2(vE0, cL32, elo)}
v_bfe_u32 v{vE1}, s{sTAG}, v{vE1}, 8
s_movk_i32 s{sB}, 0xff00
v_lshl_add_u32 v{vT}, v{vN}, 2, s{sT1}
v_and_or_b32 v{vE0}, v{vE0}, s{sB}, v{vE1}
s_add_u32 s{sT1}, s{sT1}, 128
buffer_store_dword v{vE0}, v{vT}, {S(dE,4)}, 0 offen sc1
ds_write_b32 v{vT+2}, a{aG}
ds_write_b32 v{vT+2}, a{aG+16} offset:512""")
    F[-1].tok = "gpw"
    f(f"""v_lshl_add_u32 v{vEg}, v{vL}, 4, s{sT1}
v_add_u32 v{vT+6}, {GP}, v{vT+6}""")
    F.append([needlg("gpw"), I("s_barrier")]); F[-1][0].nm = "eg"
    g0 = rawb
    f(f"""ds_read_b128 {V(g0,4)}, v{vT+6}
ds_read_b128 {V(g0+4,4)}, v{vT+6} offset:512""")
    def scale(lo, hi):
        for q in range(lo, hi):
            t = vT + 2 + (q & 1)
            f(f"v_mul_f32_dpp v{t}, v{accS+q}, v{cS+1} {DPP}\nv_fma_f32 v{accS+q}, v{accS+q}, v{cS}, v{t}")
    scale(0, 8)
    f(f"""v_add_f32 v{g0}, v{g0}, v{g0+1}
v_add_f32 v{g0+4}, v{g0+4}, v{g0+5}
v_add_f32 v{g0+2}, v{g0+2}, v{g0+3}
v_add_f32 v{g0+6}, v{g0+6}, v{g0+7}
v_add_f32 v{g0}, v{g0}, v{g0+2}
v_add_f32 v{g0+4}, v{g0+4}, v{g0+6}
v_mul_f32 v{g0}, {fb(-LOG2E)}, v{g0}
v_mul_f32 v{g0+4}, {fb(-LOG2E)}, v{g0+4}
v_exp_f32 v{g0}, v{g0}
v_exp_f32 v{g0+4}, v{g0+4}
v_bfe_u32 v{g0+1}, v{vN}, 2, 1
v_add_f32 v{g0}, 1.0, v{g0}
v_add_f32 v{g0+4}, 1.0, v{g0+4}
v_rcp_f32 v{g0}, v{g0}
v_rcp_f32 v{g0+4}, v{g0+4}
v_lshrrev_b32 v{g0+2}, 3, v{vN}
v_lshl_add_u32 v{g0+1}, v{g0+1}, 3, v{g0+2}
v_and_b32 v{g0+2}, 3, v{vN}
v_lshl_add_u32 v{g0+1}, v{g0+1}, 2, v{g0+2}
v_lshlrev_b32 v{g0+1}, 2, v{g0+1}
v_add_u32 v{g0+1}, {GT}, v{g0+1}
v_sub_f32 v{omg}, 1.0, v{g0}
v_sub_f32 v{omg+2}, 1.0, v{g0+4}
ds_write_b32 v{g0+1}, v{g0}
ds_write_b32 v{g0+1}, v{g0+4} offset:64
v_lshlrev_b32 v{g0+2}, 7, v{vH}
v_add_u32 v{g0+2}, {GT}, v{g0+2}
s_lshr_b32 s{sT0}, s{sW}, 1
s_lshl_b32 s{sT1}, s{sT0}, 6
v_add_u32 v{g0+3}, s{sT1}, v{g0+2}
v_mov_b32 v{omg+1}, v{omg}
v_mov_b32 v{omg+3}, v{omg+2}""")
    for i in range(4): f(f"ds_read_b128 {V(Eg+4*i,4)}, v{g0+3} offset:{16*i}")
    scale(8, 12)
    for i in range(8): f(f"ds_read_b128 {V(gR+4*i,4)}, v{g0+2} offset:{16*i}")
    for q in range(16): f(f"v_mul_f32 v{accD+q}, v{accD+q}, v{Eg+q}")
    hld = f"""v_min_u32 v{vPo}, 6, v{vL}
v_lshlrev_b32 v{vPo}, 2, v{vPo}
buffer_load_dword v{vPo}, v{vPo}, {S(dPO,4)}, 0 offen offset:{PFL} sc1"""
    f(hld, at=P["egat"])
    scale(12, 32)
    vCnt, vEr = vE1, Eg + 16
    f(f"""v_lshlrev_b32 v{vT+2}, 4, v{vH}
s_add_u32 s{sT1}, s{sWQ}, {AB}
v_lshl_add_u32 v{vEr}, v{vN}, 2, s{sT1}
v_lshl_add_u32 v{vEr}, v{vH}, 11, v{vEr}
v_sub_u32 v{vT+2}, s{sR}, v{vT+2}
v_add_u32 v{vEr+1}, 128, v{vEr}
v_med3_i32 v{vT+2}, v{vT+2}, 0, 16
v_mul_u32_u24 v{vCnt}, v{vT+2}, v{vE1}
v_cmp_eq_u32 vcc, 1, v{vH}
v_lshrrev_b32 v{vT+2}, 1, v{vN}
v_and_b32 v{vT+2}, 7, v{vT+2}
v_cndmask_b32 v{cL32}, 1.0, v{cL32}
v_cndmask_b32 v{cL32+1}, 0, v{cL32+1}
v_cndmask_b32 v{elo}, 0, v{elo}
v_lshlrev_b32 v{vT+2}, 4, v{vT+2}
v_lshl_add_u32 v{vT+2}, v{vN}, 7, v{vT+2}
v_lshl_add_u32 v{vT+2}, v{vH}, 13, v{vT+2}
s_lshl_b32 s{sT1}, s{sT3}, 12
v_add_u32 v{vC[0]}, s{sT1}, v{vT+2}""")
    erd = [f"ds_read2st64_b32 {V(Eg+2*k,2)}, v{vEr+(k&1)} offset0:{k>>1} offset1:{(k>>1)+4}" for k in range(7, -1, -1)]
    chk = []
    for k in range(7, 0, -2):
        chk += [f"v_add_u32_sdwa v{vEr+2+i}, v{Eg+2*(k-i)}, v{Eg+2*(k-i)+1} dst_sel:DWORD dst_unused:UNUSED_PAD src0_sel:BYTE_0 src1_sel:BYTE_0" for i in range(2)]
        chk.append(f"v_add3_u32 v{vE0}, v{vEr+2}, v{vEr+3}, {f'v{vE0}' if k < 7 else 0}")
    chk.append(f"v_cmp_ne_u32 vcc, v{vE0}, v{vCnt}")
    F.append([need("eg")] + L(erd[0])); F[-1][0].at = P["echk"]
    f("\n".join(erd[1:]))
    for k in range(1, 8): f(f"v_xor_b32 v{vC[k]}, {16*k}, v{vC[0]}")
    for k in range(8): f(f"v_add_u32 v{vC[8+k]}, 0x10000, v{vC[k]}")
    f("\n".join(chk[:-1]))
    F.append(L(chk[-1] + "\ns_cbranch_vccnz L_eretry\nL_eback:"))
    OUT = L(f"""L_eretry:
s_mov_b32 s{sA}, m0
{egp}
L_eloop:
{"s_add_u32 s44, s44, 1" if P["prof"] else ""}
s_add_u32 s{sCNT}, s{sCNT}, 1
""" + "\n".join(gl) + "\ns_waitcnt vmcnt(0)\n" + "\n".join(erd) + f"""
s_cmp_gt_u32 s{sCNT}, 0x8000
s_waitcnt lgkmcnt(0)
s_cbranch_scc1 L_edone
""" + "\n".join(chk) + f"\ns_cbranch_vccnz L_eloop\nL_edone:\ns_mov_b32 m0, s{sA}\ns_branch L_eback")
    def clr(k): f(f"v_and_b32 v{Eg+2*k}, s{sB}, v{Eg+2*k}\nv_and_b32 v{Eg+2*k+1}, s{sB}, v{Eg+2*k+1}")
    clr(7); clr(6)
    for i in range(6, -1, -1):
        a0, a1, b0, b1 = Eg + 2 * i, Eg + 2 * i + 2, Eg + 2 * i + 1, Eg + 2 * i + 3
        f(f"v_fmac_f32 v{a0}, v{cL64}, v{a1}\nv_fmac_f32 v{b0}, v{cL64}, v{b1}\n{cm2(a0, cL64, a1)}\n{cm2(b0, cL64, b1)}")
        if i: clr(i - 1)
    k0, k1, c0, c1, hw = Eg, Eg + 1, Eg + 2, Eg + 3, Eg + 8
    f(f"""v_fmac_f32 v{k0}, v{cL512}, v{k1}
v_and_b32 v{hw}, 3, v{vN}
{cm2(k0, cL512, k1)}
v_mov_b32 v{k1}, v{k0}
v_lshlrev_b32 v{hw}, 4, v{hw}
v_lshl_add_u32 v{hw}, v{vN}, 7, v{hw}
v_permlane32_swap_b32 v{k0}, v{k1}
v_lshl_add_u32 v{hw}, v{vH}, 6, v{hw}
v_fmac_f32 v{k0}, v{cL1K}, v{k1}
{cm2(k0, cL1K, k1)}
s_add_u32 s{sT1}, s{sWQ}, {HB}
{cm1(c0, cL32, k0, f'v{elo}')}
{cm2(c0, cL32, k0)}
v_add_u32 v{hw}, s{sT1}, v{hw}
{cm1(c1, cL16, c0, f'v{e0}')}
{cm2(c1, cL16, c0)}
v_mul_f32_dpp v{k0}, v{c0}, v{cS+1} {DPP}
v_xor_b32 v{hw+1}, 16, v{hw}
v_mul_f32_dpp v{k1}, v{c1}, v{cS+1} {DPP}
v_fmac_f32 v{k0}, v{c0}, v{cS}
v_fmac_f32 v{k1}, v{c1}, v{cS}""")
    pa, pb = k0, k1
    for q in range(16):
        da, db = accS + q, accS + 16 + q
        f(f"v_fmac_f32 v{da}, v{cL}, v{pa}\nv_fmac_f32 v{db}, v{cL}, v{pb}\n{cm2(da, cL, pa, '-')}\n{cm2(db, cL, pb, '-')}")
        pa, pb = da, db
    f(f"v_xor_b32 v{hw+2}, 32, v{hw}\nv_xor_b32 v{hw+3}, 48, v{hw}")
    for i in range(4):
        for q in range(8 * i, 8 * i + 8): f(f"v_mul_f32 v{gR+q}, v{gR+q}, v{accS+q}")
        for q in range(4): f(f"v_cvt_pk_bf16_f32 v{Eg+16+4*i+q}, v{gR+8*i+2*q}, v{gR+8*i+2*q+1}")
        f(f"ds_write_b128 v{hw+i}, {V(Eg+16+4*i,4)}")
    Sq = [At(stamp(), S1 - 1, S1 - 1)] + [At(stamp(True), k, k) for k in P.get("st1", [])]
    Sq = sorted([x for x in Sq if x.ins], key=lambda x: x.dl)
    Fq = []
    for i, x in enumerate(F):
        x0 = x[0] if isinstance(x, list) else x
        Fq.append(At(x, -1 if x0.at is None else x0.at, name=getattr(x0, "nm", None)))
    Fq[NFA - 1].dl = S1 - 4
    st, left = sched(mf, [Sq, Bq, Dq, Rq, Fq], P["bud"], P["co1"], d - 1)
    left = [x for a_ in left for x in a_.ins]
    info = dict(left=len(left), nd=nd)
    M += st
    M += dump("s1")
    M += stamp()
    M += left
    M += dump("scan")
    M += stamp()

    K1, K3, K4, mt, mh, mo = 80, 82, 84, 88, 96, 104
    e(f"""v_mov_b32 v{K1}, {fb(LOG2E)}
v_mov_b32 v{K1+1}, {fb(LOG2E)}
v_mov_b32 v{K3}, {fb(0.7071067811865476)}
v_mov_b32 v{K3+1}, {fb(0.7071067811865476)}
v_mov_b32 v{K4}, 0.5
v_mov_b32 v{K4+1}, 0.5
v_lshlrev_b32 v{vLin}, 4, v{vL}
s_add_u32 s{sT1}, s{sWQ}, {AB}
v_add_u32 v{vAw}, s{sT1}, v{vLin}
s_lshl_b32 s{sT1}, s{sT0}, 14
s_add_u32 s{sT1}, s{sT1}, {AB}
v_add_u32 v{vAr}, s{sT1}, v{vLin}
v_bfe_u32 v{t0}, v{vL}, 2, 2
v_lshl_add_u32 v{t1}, v{vH}, 3, v{t0}
v_lshlrev_b32 v{t1}, 7, v{t1}
v_and_b32 v{t2}, 1, v{vL}
v_lshl_add_u32 v{t1}, v{t2}, 6, v{t1}
v_and_b32 v{t2}, 2, v{vL}
v_lshl_add_u32 v{t1}, v{t2}, 2, v{t1}
v_lshlrev_b32 v{t2}, 4, v{t0}
v_and_b32 v{t3}, 16, v{vL}
v_xor_b32 v{t2}, v{t2}, v{t3}
s_lshl_b32 s{sT1}, s{sT0}, 5
v_xor_b32 v{t2}, s{sT1}, v{t2}
v_add_u32 v{t1}, v{t1}, v{t2}
v_add_u32 v{vHr}, {HB}, v{t1}
v_lshl_add_u32 v{t0}, v{vH}, 4, v{t0}
v_lshlrev_b32 v{t0}, 7, v{t0}
v_bfe_u32 v{t1}, v{vL}, 3, 1
v_xor_b32 v{t1}, s{sT3}, v{t1}
v_lshl_add_u32 v{t0}, v{t1}, 6, v{t0}
v_lshl_add_u32 v{t0}, v{t3}, 1, v{t0}
v_and_b32 v{t1}, 3, v{vL}
v_lshl_add_u32 v{vW2}, v{t1}, 3, v{t0}
v_add_u32 v{vW2+1}, 0x10000, v{vW2}
v_add_u32 v{vW2+2}, 0x20000, v{vW2}""")
    mf = []
    d2, bd, sel = P["d2"], P["bd"], P["sel"]
    def fragreads(q, kx):
        fr = F2 + 4 * ((8 * q + kx) % RING)
        base = slot(21 + q) * SL
        wn, of = base >> 16, base & 0xffff
        if q % 3 == 0:
            return fr, [I(f"ds_read_b128 {A(fr,4)}, v{vC[8*wn+kx]} offset:{of}", ver=("F", q, kx))]
        return fr, [I(f"ds_read_b64_tr_b16 {A(fr+2*ee,2)}, v{vW2+wn} offset:{of+(32*(kx>>1)+8*(kx&1)+4*ee)*128}",
                      ver=("F", q, kx)) for ee in range(2)]
    early, pos, spos, Rq, Bq, Aq = [], {}, {}, [], [], []
    def selm(u):
        spos[u] = len(mf)
        acc = V(accD, 16) if u >= 3 else V(acc2 + 16 * ((u + 3) & 1), 16)
        if u < 3: assert 24 * (u + 3) < sel[u] < 24 * (u + 4)
        for i in range(2): mfma(acc, V(Sel + 4 * i, 4), V(inb[u] + 4 * i, 4), acc)
    for q in range(21):
        u = q // 3
        acc = V(accD, 16) if u == 6 else V(acc2 + 16 * (u & 1), 16)
        for kx in range(8):
            km = 8 * q + kx
            for s_ in range(6):
                if sel[s_] == km: selm(s_)
            k = pos[km] = len(mf)
            if kx == 0 and q >= 2:
                Bq.append(At(([needlg("act")] if q == 2 else []) + [need(("g", 21 + q)), I("s_barrier")], k - bd, k - bd, name=("b", q)))
            fr, r_ = fragreads(q, kx)
            if k - d2 < 0: early.extend(r_)
            else: Rq += [At(x, pos.get(km - RING, -2) + 1, k - d2, after=[("b", q)] if q >= 2 else []) for x in r_]
            if q % 3 == 0: a_, av = A(aH + 4 * kx, 4), ("h", kx)
            else:
                ka = 8 * (q % 3 - 1) + kx
                a_, av = A(4 * ka, 4), ("act", ka)
            mfma(acc, a_, A(fr, 4), acc if (u == 6 or q % 3 or kx) else "0", [(A(fr, 4), ("F", q, kx)), (a_, av)])
    NM2 = len(mf)
    for ka in range(16):
        Aq.append(At(I(f"ds_read_b128 {A(4*ka,4)}, v{vAr} offset:{1024*ka}", ver=("act", ka), tok="act" if ka == 15 else None),
                     -1, min(8 + ka - d2, (ka * (15 - bd)) // 16 - 1)))
    hreads = [I(f"ds_read_b64_tr_b16 {A(aH+4*kx+2*ee,2)}, v{vHr} offset:{(16*kx+4*ee)*128}", ver=("h", kx))
              for kx in range(8) for ee in range(2)] + early
    xd = []
    while D[nd][1][1] < 27: xd.append(D[nd][0]); nd += 1
    uses = [(0, 1), (0, 0), (1, 1), (1, 0)]
    for b in range(8):
        ft, rt = uses[b >> 1]; kk = b & 1
        h = accF + 32 * ft + 16 * rt + 8 * kk
        o = mo + 4 * (b & 1)
        B = []
        for p in range(4): B += L(f"v_pk_fma_f32 {V(mt+2*p,2)}, {V(h+2*p,2)}, {V(K1,2)}, {V(K4,2)} neg_lo:[0,0,1] neg_hi:[0,0,1]")
        for p in range(8): B += L(f"v_exp_f32 v{mt+p}, v{mt+p}")
        for p in range(4): B += L(f"v_pk_add_f32 {V(mt+2*p,2)}, {V(mt+2*p,2)}, {V(K3,2)}")
        for p in range(4): B += L(f"v_pk_fma_f32 {V(mt+2*p,2)}, {V(mt+2*p,2)}, {V(mt+2*p,2)}, {V(K4,2)}")
        for p in range(8): B += L(f"v_rcp_f32 v{mt+p}, v{mt+p}")
        for p in range(4): B += L(f"v_pk_mul_f32 {V(mh+2*p,2)}, {V(h+2*p,2)}, {V(omg+2*rt,2)}")
        for p in range(4): B += L(f"v_pk_fma_f32 {V(mh+2*p,2)}, {V(mh+2*p,2)}, {V(mt+2*p,2)}, {V(mh+2*p,2)} neg_lo:[1,0,0] neg_hi:[1,0,0]")
        for p in range(4): B += L(f"v_cvt_pk_bf16_f32 v{o+p}, v{mh+2*p}, v{mh+2*p+1}")
        B += L(f"ds_write_b128 v{vAw}, {V(o,4)} offset:{rt*16384+(2*ft+kk)*1024}")
        extra = []
        if b < 4:
            n_ = (len(xd) + 3 - b) // (4 - b)
            extra = xd[:n_]; xd = xd[n_:]
        else:
            n_ = (len(hreads) + 6 - b) // (7 - b) if b < 7 else 0
            extra = [[x] for x in hreads[:n_]]; hreads = hreads[n_:]
        if b == 4: M += [lgkm0(), need(("g", 21)), I("s_barrier")]
        step = max(1, len(B) // (len(extra) + 1))
        for i, x in enumerate(B):
            M.append(x)
            if extra and i % step == step - 1: M += extra.pop(0)
        assert not extra
    M += [lgkm0(), need(("g", 22)), I("s_barrier")]
    M += dump("x")
    M += stamp()

    def gp(km): return pos[km] if km in pos else None
    Dq, last = [], -1
    while nd < len(D):
        q = D[nd][1][1] - 21
        qb = max(2, q - 7)
        lo = 0 if q == 6 else pos[8 * qb] - bd
        p = max(lo + 1, last + (1 if q < 10 else 2))
        if P["dsp"]: p = max(lo + 1, last + 1, int(P["dsp"][0] + P["dsp"][1] * len(Dq)))
        Dq.append(At(D[nd][0], p - 1, p, after=[] if q == 6 else [("b", qb)])); last = p; nd += 1
    Vq = [At(x, 8) for x in L(f"""v_mov_b32 v{vTag}, s{sTAG}
v_lshlrev_b32 v{vL4}, 2, v{vL}
v_lshrrev_b32 v{vMo}, 3, v{vL}
v_mul_u32_u24 v{vMo}, {1792-128}, v{vMo}
v_add_u32 v{vMo}, v{vMo}, v{vLin}
v_add_u32 v{vMo+1}, {8*1792}, v{vMo}
s_add_u32 s{sTG1}, s{sTAG}, 1""")]
    V2 = [At(x, 8) for x in L(f"""v_and_b32 v{t0}, 1, v{vL}
v_lshlrev_b32 v{t0}, 4, v{t0}
v_mov_b32 v{t1}, 0x3f80
v_lshlrev_b32 v{t0}, v{t0}, v{t1}
v_lshrrev_b32 v{t1}, 3, v{vN}
v_bfe_u32 v{t2}, v{vL}, 1, 1
v_lshl_add_u32 v{t1}, v{t1}, 1, v{t2}
v_bfe_u32 v{t2}, v{vL}, 2, 1
v_xor_b32 v{t2}, v{t2}, v{vH}
v_lshl_add_u32 v{t1}, v{t2}, 3, v{t1}
v_mul_u32_u24 v{t2}, {32*1792}, v{vH}
v_lshl_add_u32 v{vOut}, v{vN}, 2, v{t2}
v_lshl_add_u32 v{vOut}, s{sJ}, 8, v{vOut}""")]
    for i in range(0, 8, 2):
        V2.append(At(L(f"""v_cmp_eq_u32 vcc, {i}, v{t1}
v_cmp_eq_u32 s[42:43], {i+1}, v{t1}
s_movk_i32 s{sOO+i}, {3584*i}
v_cndmask_b32 v{Sel+i}, 0, v{t0}
v_cndmask_b32 v{Sel+i+1}, 0, v{t0}, s[42:43]"""), 8))
        V2.append(At(L(f"s_movk_i32 s{sOO+i+1}, {3584*(i+1)}"), 8))
    for i, a_ in enumerate(reversed(V2)): a_.dl = min(list(spos.values()) + [NM2]) - 4 - 3 * i
    def chks(dst, r, hop): return [f"v_add3_u32 v{dst}, v{r}, v{r+1}, s{sTG1 if hop else sTAG}"] + [f"v_add3_u32 v{dst}, v{dst}, v{r+2*i}, v{r+2*i+1}" for i in (1, 2, 3)]
    def msg(op, r, tile, c, sd, sw, fl):
        pre_ = f"s_mul_i32 s{sw}, s{tile}, {4*PIN//128}"
        if c < NO:
            pre_ += f"\ns_lshl_b32 s{sd}, s{tile}, 1" if c == 0 else f"\ns_lshl1_add_u32 s{sd}, s{tile}, {32*1792}"
            dat = [f"buffer_{op}_dwordx4 {V(r+4*i,4)}, v{vMo+i}, {S(dO,4)}, s{sd} offen {fl}" for i in range(2)]
            return pre_, dat + [f"buffer_{op}_dword v{r+8}, v{vL4}, {S(dPO,4)}, s{sw} offen offset:{PCK+256*c} {fl}"]
        if PCK > 2048:
            pre_ += f"\ns_add_u32 s{sd}, s{sw}, {2048*(c-NO)}\ns_add_u32 s{sw}, s{sw}, {PCK-2048}"
        else: sd = sw
        dat = [f"buffer_{op}_dwordx4 {V(r+4*i,4)}, v{vLin}, {S(dPO,4)}, s{sd} offen offset:{1024*i} {fl}" for i in range(2)]
        return pre_, dat + [f"buffer_{op}_dword v{r+8}, v{vL4}, {S(dPO,4)}, s{sw} offen offset:{2048+256*c} {fl}"]
    Xq = []
    pre = P.get("pre", "")
    for u in range(6):
        a_ = acc2 + 16 * (u & 1); k0 = pos[24 * u + 23]
        g0_, g1_, g2_ = (k0 + x for x in P["sto"])
        pre_, mm = msg("store", stg, sU + u, u % 3, sT0, sA, "@X")
        for p in range(8):
            Vq.append(At(L(f"v_cvt_pk_bf16_f32 v{stg+p}, v{a_+2*p}, v{a_+2*p+1}"), k0 + 2, (g0_ if p < 4 else g1_) - 1, name=("cv", u, p)))
            if p == 1: Vq.append(At(L(pre_), k0))
        for i, x in enumerate(chks(stg + 8, stg, u // 3)): Vq.append(At(L(x), k0, g2_ - 1, name=("ck", u, i)))
        if "pst" in pre: continue
        for i, g_ in enumerate((g0_, g1_)):
            Xq.append((g_, At(L(mm[i]), g_, g_, after=[("cv", u, 4 * i + 3)], solo=True)))
        Xq.append((g2_, At(L(mm[2]), g2_ - 1, g2_, after=[("ck", u, 3)])))
    OUT2 = []
    def retry(lab, bit, ld, c):
        OUT2.extend(L(f"""L_r{lab}:
{f"s_or_b32 s45, s45, {1 << bit}" if P["prof"] else ""}
{ld}
s_add_u32 s{sCNT}, s{sCNT}, 1
s_waitcnt vmcnt(0)
s_cmp_gt_u32 s{sCNT}, 0x8000
s_cbranch_scc1 L_b{lab}
{c}
s_cbranch_vccnz L_r{lab}
s_branch L_b{lab}"""))
        return L(c + ("" if "nochk" in pre else f"\ns_cbranch_vccnz L_r{lab}") + f"\nL_b{lab}:")
    Xq.append((18, At(L(f"v_cmp_ne_u32 vcc, s{sXT}, v{vPo}\ns_cbranch_vccnz L_mode\nL_near:"), 18, 20)))
    MODE = L(f"""L_mode:
{hld}
s_add_u32 s{sCNT}, s{sCNT}, 1
s_waitcnt vmcnt(0)
s_cmp_gt_u32 s{sCNT}, 0x8000
s_cbranch_scc1 L_nearF
v_subrev_u32 v{t3}, s{sTAG}, v{vPo}
v_cmp_lt_u32 vcc, 15, v{t3}
s_cbranch_vccnz L_mode
v_cmp_ne_u32 vcc, s{sXT}, v{vPo}
s_cbranch_vccnz L_nearF
s_branch L_near""")
    def pl(u, sd=sROT, sw=sB):
        pre_, mm = msg("load", inb[u], sU + min(u + 3, 6), u % 3, sd, sw, "sc1")
        return [pre_ + "\n" + mm[0], mm[1], mm[2]]
    def pchk(u):
        return retry(f"p{u}", u, "\n".join(pl(u, sT1, 42)), "\n".join(chks(t3, inb[u], u // 3)) + f"\nv_cmp_ne_u32 vcc, v{t3}, v{inb[u]+8}")
    tail = []
    for u in range(6):
        k = P["pld"][u]
        if k < 168 and "pld" not in pre:
            for i, x in enumerate(pl(u)): Xq.append((pos[k] + i / 4, At(L(x), pos[k], min(NM2 - 1, pos[k] + 1 + i))))
        if u in spos:
            c = pchk(u)
            Xq.append((spos[u] - 2, At(c[:4], spos[u] - 2, spos[u] - 2)))
            Xq.append((spos[u] - 1, At(c[4:], spos[u] - 1, spos[u] - 1)))
    Xq.sort(key=lambda t: t[0])
    Sq = [At(stamp(True), pos[k], pos[k]) for k in P.get("st2", [])]
    st, left = sched(mf, [Sq, Bq, [x[1] for x in Xq], Dq, Aq, Rq, Vq, V2], P.get("bud2", 32), P["co"], d2 - 1)
    assert not left
    M += st
    M += stamp()
    late = [u for u in range(6) if P["pld"][u] >= 168]
    for u in range(6):
        for u2 in late:
            if P["pld"][u2] - 168 == u or (u2 == u and P["pld"][u2] - 168 > u):
                if "pld" not in pre: e("\n".join(pl(u2)))
        if u in spos: continue
        M += pchk(u)
        for i in range(2): e(f"v_mfma_f32_32x32x16_bf16 {V(accD,16)}, {V(Sel+4*i,4)}, {V(inb[u]+4*i,4)}, {V(accD,16)}")
    M += stamp()
    for q in range(16):
        e(f"buffer_store_dword v{accD+q}, v{vOut}, {S(dO,4)}, s{sOO+q//2} offen offset:{1792*(q&1)} {P['ost']}")
    if P.get("amp"):
        a_, b_ = P["amp"]
        M += [vm0()] + stamp(True) + stamp(True, True) + L("s_waitcnt lgkmcnt(0)")
        e(f"""s_cmp_lg_u32 s2, {P.get("ampw", 141)}
s_cbranch_scc1 L_noamp
s_sub_u32 s44, s{sST+2*b_}, s{46 + P.get('ampc', 0) if a_ < 0 else sST+2*a_}
s_lshl_b32 s44, s44, {0 if P.get('ampc') else 4}
s_min_u32 s44, s44, 60000
L_amp:
s_memrealtime s[42:43]
s_waitcnt lgkmcnt(0)
s_sub_u32 s45, s42, s{sST+2*nst[0]-2}
s_cmp_lt_u32 s45, s44
s_cbranch_scc1 L_amp
L_noamp:""")
    elif P["prof"]:
        M += [vm0()] + stamp() + L("s_waitcnt lgkmcnt(0)")
        e(f"""s_memrealtime s[42:43]
s_mul_i32 s{sT0}, s{sR}, 7
s_add_u32 s{sT0}, s{sT0}, s{sJ}
s_lshl_b32 s{sT0}, s{sT0}, 2
s_add_u32 s{sT0}, s{sT0}, s{sW}
s_lshl_b32 s{sT0}, s{sT0}, 6
s_add_u32 s{sT0}, s{sT0}, {WS_DBG}
v_mov_b32 v0, s{sT0}
s_waitcnt lgkmcnt(0)""")
        for i in range(nst[0]):
            e(f"v_mov_b32 v4, s{sST+2*i}\nglobal_store_dword v0, v4, {S(pWS,2)} offset:{4*i}")
        e(f"v_mov_b32 v4, s44\nglobal_store_dword v0, v4, {S(pWS,2)} offset:40")
        e(f"v_mov_b32 v4, s45\nglobal_store_dword v0, v4, {S(pWS,2)} offset:44")
        e(f"v_mov_b32 v4, s46\nglobal_store_dword v0, v4, {S(pWS,2)} offset:52")
        e(f"v_mov_b32 v4, s47\nglobal_store_dword v0, v4, {S(pWS,2)} offset:48")
        e(f"v_mov_b32 v4, s{sCNT}\nglobal_store_dword v0, v4, {S(pWS,2)} offset:56")
        e(f"v_mov_b32 v4, s42\nglobal_store_dword v0, v4, {S(pWS,2)} offset:60")
    e(f"""s_lshl_b32 s{sT0}, s{sJ}, 2
s_add_u32 s{sT0}, s{sT0}, s{sW}
s_lshl_b32 s{sT0}, s{sT0}, 5
s_add_u32 s{sT0}, s{sT0}, s{sR}
s_cmp_lg_u32 s{sT0}, 31
s_cbranch_scc1 L_exit
v_mov_b32 v0, 0
global_store_dword v0, v{vTag}, {S(pWS,2)} sc1
L_exit:
s_endpgm""")
    if "eld" in pre: M = [x for x in M if not (x.kind == "vld" and x.op.endswith("x2")) and "L_eretry" not in x.text]
    if P.get("en") is not None:
        M = [x for x in M if "L_eretry" not in x.text and not (x.kind == "vld" and x.op.endswith("x2") and int(re.search(r"offset:(\d+)", x.text).group(1)) // 256 % (16 // P["en"]))]
    if "esto" in pre: M = [x for x in M if not (x.kind == "vst" and x.op.endswith("x2")) and "L_eretry" not in x.text]
    body, nops = finalize(M, P.get("verbose"))
    drop = P.get("drop", "")
    if "dma" in drop: body = [x for x in body if x.kind != "dma"]
    if "est" in drop: body = [x for x in body if not (x.kind in ("vst", "vld") and x.op.endswith("x2")) and "L_eretry" not in x.text]
    if "bar" in drop: body = [x for x in body if x.op != "s_barrier"]
    if "dsr" in drop: body = [x for x in body if x.kind != "dsr"]
    if "dsw" in drop: body = [x for x in body if x.kind != "dsw"]
    if "wait" in drop: body = [x for x in body if not (x.op == "s_waitcnt" and "lgkmcnt(0)" not in x.text)]
    if "mfma" in drop: body = [x for x in body if x.kind != "mfma"]
    info["nops"] = nops; info["n"] = len(body); info["model"] = model(body)
    PF = L("L_pf:")
    if 1:
        nj = {0: 7, 1: 4, 2: 3, 3: 2}[z]
        PF += L(f"""s_lshr_b32 s50, s2, 3
s_lshl_b32 s50, s50, 8
v_add_u32 v1, s50, v0
s_and_b32 s51, s2, {(1 << z) - 1}
s_mul_i32 s51, s51, 28
s_add_u32 s3, s51, 27
s_lshr_b32 s51, s51, {2 + z}
s_lshr_b32 s3, s3, {2 + z}
s_add_u32 s3, s3, 1
s_and_b32 s4, s2, 7
s_lshr_b32 s4, s4, {z}
v_lshrrev_b32 v2, 6, v1
s_mov_b32 s55, 0x20000
s_mov_b32 s59, 0x20000
s_mov_b32 s63, 0x20000
s_mov_b32 s67, 0x20000
v_readfirstlane_b32 s5, v2
v_lshlrev_b32 v3, 7, v1
v_lshrrev_b32 v4, 2, v1
v_mul_u32_u24 v4, 3584, v4
v_and_b32 v5, 3, v1
v_lshl_add_u32 v4, v5, 7, v4
v_subrev_u32 v5, 448, v1
v_min_u32 v5, v5, v1
v_mul_u32_u24 v5, 896, v5
s_waitcnt lgkmcnt(0)
s_mul_i32 s6, s4, {(4 << z) * 57344}
s_add_u32 s52, s{pX}, s6
s_addc_u32 s53, s{pX+1}, 0
s_mov_b32 s54, {(4 << z) * 57344}
s_lshl_b32 s6, s51, 9
s_add_u32 s56, s{pW1}, s6
s_addc_u32 s57, s{pW1+1}, 0
s_sub_u32 s58, {WSZ}, s6
s_cmp_ge_u32 s5, 7
s_cselect_b32 s60, s{pCIM}, s{pCRE}
s_cselect_b32 s61, s{pCIM+1}, s{pCRE+1}
s_lshl_b32 s6, s51, 7
s_add_u32 s60, s60, s6
s_addc_u32 s61, s61, 0
s_sub_u32 s62, {MSZ}, s6
s_mul_i32 s6, s51, 229376
s_add_u32 s64, s{pW2}, s6
s_addc_u32 s65, s{pW2+1}, 0
s_sub_u32 s66, s3, s51
s_mul_i32 s66, s66, 229376""")
    if 1:
        PF += L(f"""s_and_b32 s50, s2, 7
s_lshl_b32 s50, s50, 2
s_lshr_b32 s51, s2, 3
s_add_u32 s50, s50, s51
s_mul_i32 s51, s50, {28*PIN}
s_add_u32 s51, s51, {WS_P}
s_add_u32 s68, s{pWS}, s51
s_addc_u32 s69, s{pWS+1}, 0
s_mov_b32 s70, {28*PIN}
s_mov_b32 s71, 0x20000
s_mul_i32 s51, s50, {64*1792}
s_add_u32 s72, s{pOUT}, s51
s_addc_u32 s73, s{pOUT+1}, 0
s_mov_b32 s74, {64*1792}
s_mov_b32 s75, 0x20000
v_lshlrev_b32 v7, 7, v0
s_lshl_b32 s50, s2, 15
v_add_u32 v1, s50, v7
s_mov_b32 s79, 0x20000""")
        k = 8
        for c in P["pfo"]:
            if c == ".": PF += L("s_waitcnt vmcnt(0)")
            if c in "x2":
                for i in range(((4 << z) * 448 + 1023) // 1024 if c == "x" else (nj * 1792 + 1023) // 1024):
                    PF += L(f"v_add_u32 v{k}, {i << 17}, v3\nbuffer_load_dword v{k}, v{k}, {'s[52:55]' if c == 'x' else 's[64:67]'}, 0 offen"); k += 1
            if c == "1":
                for i in range(2):
                    PF += L(f"v_add_u32 v6, {i * 256 * 3584}, v4")
                    for jj in range(nj): PF += L(f"buffer_load_dword v{k}, v6, s[56:59], 0 offen offset:{512*jj}"); k += 1
            if c == "c":
                for jj in range(nj): PF += L(f"buffer_load_dword v{k}, v5, s[60:63], 0 offen offset:{128*jj}"); k += 1
            if c in "ABC":
                for ptr, sz in dict(A=((pW1, WSZ),), B=((pCRE, MSZ), (pCIM, MSZ)), C=((pW2, WSZ),))[c]:
                    PF += L(f"s_mov_b32 s76, s{ptr}\ns_mov_b32 s77, s{ptr+1}\ns_mov_b32 s78, {sz}")
                    PF += L(f"buffer_load_dword v{k}, v1, s[76:79], 0 offen"); k += 1
                    if sz > 1 << 20:
                        PF += L(f"v_add_u32 v{k}, 0x100000, v1\nbuffer_load_dword v{k}, v{k}, s[76:79], 0 offen"); k += 1
            if c == "i":
                PF += L(f"""s_getpc_b64 s[80:81]
L_pc:
s_sub_u32 s80, s80, L_pc-{NAME}_kernel
s_subb_u32 s81, s81, 0
s_mov_b32 s82, L_pf-{NAME}_kernel
s_mov_b32 s83, 0x20000
v_lshrrev_b32 v6, 1, v3
buffer_load_dword v{k}, v6, s[80:83], 0 offen"""); k += 1
            if c in "fF":
                for i in range(max(4 if NO else 0, (28 * PIN + 32767) >> 15)):
                    PF += L(f"v_add_u32 v6, {i << 15}, v7")
                    if NO and i < 4: PF += L(f"buffer_load_dword v{k}, v6, s[72:75], 0 offen"); k += 1
                    if i < (28 * PIN + 32767) >> 15: PF += L(f"buffer_load_dword v{k}, v6, s[68:71], 0 offen"); k += 1
                    if c == "F": PF += L("s_waitcnt vmcnt(0)")
    PF += L("L_pe:\ns_endpgm")
    txt = [f"; @launch grid=(256,1,1) block=(256,1,1) lds=163840",
           '.amdgcn_target "amdgcn-amd-amdhsa--gfx950"', ".text", f".globl {NAME}_kernel", ".p2align 8",
           f".type {NAME}_kernel,@function", f"{NAME}_kernel:"]
    near = [x.text for x in body + OUT2]
    far = [re.sub(r"\b(L_\w+)", r"\1F", t).replace("@X", "sc1") for t in near[near.index("L_near:"):]]
    txt += [t.replace("@X", P["sfl"]).rstrip() for t in near] + [x.text for x in OUT + MODE + PF] + far
    txt.append(f""".section .rodata,"a"
.p2align 6
.amdhsa_kernel {NAME}_kernel
  .amdhsa_next_free_vgpr 512
  .amdhsa_next_free_sgpr 102
  .amdhsa_accum_offset 256
  .amdhsa_group_segment_fixed_size 0
  .amdhsa_kernarg_size 136
  .amdhsa_user_sgpr_count 2
  .amdhsa_user_sgpr_kernarg_segment_ptr 1
  .amdhsa_system_sgpr_workgroup_id_x 1
.end_amdhsa_kernel""")
    return "\n".join(txt) + "\n", info

if __name__ == "__main__":
    kw = {}
    for a in sys.argv[2:]:
        k, v = a.split("=", 1); kw[k] = eval(v)
    t, info = gen(**kw)
    open(sys.argv[1], "w").write(t)
    print(info)
```

```python
import sys, collections, re
from asmlib import *

NAME = "gated_mix__ssm_conv_s5__dense_activation_mish__prompt"
LOG2E = 1.4426950408889634
EPC = 0x9E3779B9
XSZ, MSZ, WSZ, OSZ = 2048 * 896, 448 * 896, 448 * 3584, 2048 * 1792
WS_E, WS_P, WS_DBG = 4096, 1 << 20, 18 << 20
SL = 16384
XB = 6 * SL; HB = 6 * SL; AB = 7 * SL
GP = 152 * 1024; GT = 153 * 1024; PR = 154 * 1024
sW, sKB, sR, sJ, sROT, sTAG, sWQ = 3, 4, 11, 12, 13, 14, 15
pX, pLRE, pLIM, pBRE, pBIM, pCRE, pCIM, pDT, pDS, pW1, pB1, pW2, pGW, pOUT, pWS = 16, 18, 20, 22, 24, 26, 28, 30, 32, 36, 38, 40, 42, 44, 48
sT0, sT1 = 50, 51
dX, dBR, dBI, dW1, dC, dW2, dE, dPO, dO = 52, 56, 60, 64, 68, 72, 76, 84, 88
sA, sB, sTG1, sXT = 80, 81, 82, 83
vPo = 42
sU, sCNT, sSO, sT3 = 92, 99, 100, 101
sOO = 34
sST = 16
vL, vN, vH = 1, 2, 3
vdX, vdB, vdW1, vdC, vdW2 = 4, 6, 10, 14, 18
vX, vB, vG, vW1, vP, vP2, vXD = 22, 26, 34, 35, 39, 40, 41
cL, cL16, cL32, cL64, cL512, cL1K, cS = 43, 45, 47, 49, 51, 53, 55
vT = 57
accD, dia, xD, Gx, gwf, raw = 64, 80, 88, 96, 104, 108
Bfr, rawb, accS, Wfr, accF = 112, 128, 144, 176, 192
scr = 208
aG, aH = 224, 224
omg = 4
vE0, vE1 = 8, 9
vC = [22 + i for i in range(8)] + [30, 31, 32, 33, 34, 39, 40, 41]
Eg, gR = 112, 80
F2, RING = 64, 10
vW2 = 168
vHr, vAw, vAr, vLin, vOut = 171, 172, 173, 174, 175
stg, acc2, Sel = 176, 192, 248
vTag, vL4, vMo = 186, 187, 190
inb = [80 + 10 * i for i in range(6)]

DEF = dict(z=0, d=4, la=12, egat=118, echk=150, pld=(66, 90, 114, 144, 156, 168), sel=(92, 116, 140, 164, 168, 168),
           hel=4, ipf=1, sto=(5, 7, 9), nout=2, sfl="", d2=4, bd=5, co=2, ost="", prof=0, dump=None,
           pfo="ABC.F", bud=36, fa=8, co1=4, re=2, egs=1, ndm=999, dsp=(144, 128, 64), rot=(4, 1, 1, 0), rot2=(4, 0, 1, 0))

def gen(**kw):
    P = dict(DEF); P.update(kw)
    z, d, LA = P["z"], P["d"], P["la"]
    NO = P["nout"]
    PCK = (3 - NO) * 2048
    PFL = PCK + 768
    PIN = PFL + 128
    M = []
    def e(t, **k):
        for x in t.split("\n"):
            if x.strip(): M.append(I(x, **k))
    def L(t, **k): return [I(x, **k) for x in t.split("\n") if x.strip()]
    nst = [0]
    def stamp(custom=False, rt=False):
        if not P["prof"]: return []
        if (P.get("st1") or P.get("st2")) and not custom: return []
        nst[0] += 1
        return [I(f"{'s_memrealtime' if rt or (P.get('amp') and not P.get('ampc')) else 's_memtime'} {S(sST + 2 * (nst[0] - 1), 2)}")]
    def dump(tag):
        if not P["dump"] or P["dump"][0] != tag: return []
        o = [vm0(), lgkm0(), I("s_nop 7"), I("s_nop 7")]
        o += L(f"""s_mul_i32 s{sT0}, s{sR}, 7
s_add_u32 s{sT0}, s{sT0}, s{sJ}
s_lshl_b32 s{sT0}, s{sT0}, 2
s_add_u32 s{sT0}, s{sT0}, s{sW}
s_lshl_b32 s{sT0}, s{sT0}, 15
s_add_u32 s{sT0}, s{sT0}, {WS_DBG}
v_lshlrev_b32 v0, 2, v{vL}
v_add_u32 v0, s{sT0}, v0""")
        for i, r in enumerate(P["dump"][1]):
            o += L(f"global_store_dword v0, {r}, {S(pWS, 2)}\nv_add_u32 v0, 256, v0")
        o += L("s_endpgm")
        return o

    def lin(dst, c, tmp):
        if c[0] == 4 * c[2] and not c[3]:
            terms = [(f"s_mov_b32 @, s{sR}", c[2]), (f"s_mov_b32 @, s{sJ}", c[1])]
        else:
            terms = [(f"s_lshr_b32 @, s{sR}, 2", c[0]), (f"s_mov_b32 @, s{sJ}", c[1]), (f"s_and_b32 @, s{sR}, 3", c[2]),
                     (f"s_bfe_u32 @, s{sR}, 0x10001", c[3])]
        o, first = [], True
        for t, m in terms:
            if not m: continue
            r_ = f"s{dst}" if first else f"s{tmp}"
            if not first and m == 1 and t.startswith("s_mov"): o.append(f"s_add_u32 s{dst}, s{dst}, {t.split()[-1]}"); continue
            o.append(t.replace("@", r_))
            if m > 1: o.append(f"s_mul_i32 {r_}, {r_}, {m}")
            if not first: o.append(f"s_add_u32 s{dst}, s{dst}, {r_}")
            first = False
        return "\n".join(o) if o else f"s_mov_b32 s{dst}, 0"
    if P["prof"]: e("s_memrealtime s[98:99]\ns_memtime s[96:97]")
    e(f"""s_cmp_ge_u32 s2, 256
s_cbranch_scc1 L_exit
s_load_dwordx16 s[16:31], s[0:1], 0
s_load_dwordx16 s[32:47], s[0:1], 64
s_load_dwordx2 s[48:49], s[0:1], 128""")
    if P["ipf"]:
        e(f"""s_getpc_b64 s[50:51]
L_pc0:
v_lshlrev_b32 v{vT}, 7, v0
v_min_u32 v{vT}, L_pe-L_pc0, v{vT}
global_load_dword v191, v{vT}, s[50:51]""")
    e(f"""s_cmp_lt_u32 s2, 32
s_cbranch_scc1 L_pf
v_lshrrev_b32 v{vT}, 6, v0
v_and_b32 v{vL}, 63, v0
v_readfirstlane_b32 s{sW}, v{vT}
s_and_b32 s{sT0}, s2, 7
s_lshr_b32 s{sT1}, s2, 3
s_and_b32 s{sR}, s{sT0}, {(1 << z) - 1}
s_mul_i32 s{sR}, s{sR}, 28
s_add_u32 s{sT1}, s{sT1}, s{sR}
s_sub_u32 s{sT1}, s{sT1}, 4
s_lshr_b32 s{sJ}, s{sT1}, {2 + z}
s_and_b32 s{sT1}, s{sT1}, {(4 << z) - 1}
s_lshr_b32 s{sT0}, s{sT0}, {z}
s_lshl_b32 s{sT0}, s{sT0}, {2 + z}
s_add_u32 s{sR}, s{sT0}, s{sT1}
{lin(sROT, P["rot"], sT0)}
s_mul_i32 s{sT0}, s{sROT}, 37
s_lshr_b32 s{sT0}, s{sT0}, 8
s_mul_i32 s{sT0}, s{sT0}, 7
s_sub_u32 s{sROT}, s{sROT}, s{sT0}
s_lshl_b32 s{sKB}, s{sROT}, 7
s_lshl_b32 s{sWQ}, s{sW}, 12""")
    for s in range(1, 7):
        e(f"""s_add_u32 s{sKB+s}, s{sKB+s-1}, 128
s_cmp_ge_u32 s{sKB+s}, 896
s_cselect_b32 s{sKB+s}, 0, s{sKB+s}""")
    e(f"""s_lshl_b32 s{sT0}, s{sR}, 3
s_add_u32 s{sT0}, s{sT0}, s{sW}
s_mul_i32 s{dX}, s{sT0}, 7168
s_sub_u32 s{dX+2}, {XSZ}, s{dX}
s_lshl_b32 s{sT1}, s{sJ}, 2
s_add_u32 s{sT1}, s{sT1}, s{sW}
s_mul_i32 s{dBR}, s{sT1}, 14336
s_sub_u32 s{dBR+2}, {MSZ}, s{dBR}
s_add_u32 s{dBI+2}, s{dBR+2}, 1024""")
    for dd in (dX, dBR, dBI, dW1, dC, dW2, dE, dPO, dO):
        e(f"s_mov_b32 s{dd+3}, 0x20000")
    t0, t1, t2, t3, t4 = vT, vT + 1, vT + 2, vT + 3, vT + 4
    e(f"""v_and_b32 v{vN}, 31, v{vL}
v_lshrrev_b32 v{vH}, 5, v{vL}
v_lshrrev_b32 v{t0}, 3, v{vL}
v_lshrrev_b32 v{t1}, 4, v{vL}
v_and_b32 v{t3}, 1, v{t1}
v_lshlrev_b32 v{t3}, 2, v{t3}
v_xor_b32 v{t3}, v{t3}, v{vL}
v_and_b32 v{t3}, 7, v{t3}
v_lshlrev_b32 v{t3}, 4, v{t3}
v_xor_b32 v{t1}, v{t1}, v{vL}
v_and_b32 v{t1}, 7, v{t1}
v_lshlrev_b32 v{t1}, 4, v{t1}
v_xor_b32 v{t2}, 64, v{t1}
v_and_b32 v{t4}, 3, v{t0}
v_lshl_add_u32 v{t4}, v{vH}, 5, v{t4}
v_mul_u32_u24 v{t4}, 896, v{t4}
v_add_u32 v{vdX}, v{t4}, v{t1}
v_add_u32 v{vdX+1}, v{t4}, v{t2}
v_add_u32 v{vdX+1}, {3584-1024}, v{vdX+1}
v_mul_u32_u24 v{t4}, 896, v{t0}
v_add_u32 v{vdB}, v{t4}, v{t1}
v_add_u32 v{vdB+1}, v{t4}, v{t2}
v_add_u32 v{vdB+2}, {7168-2048}, v{vdB}
v_add_u32 v{vdB+3}, {7168-2048}, v{vdB+1}
v_add_u32 v{vdW2}, v{t4}, v{t3}
v_mul_u32_u24 v{t4}, 3584, v{t0}
v_add_u32 v{vdW1}, v{t4}, v{t3}""")
    e(f"""v_add_u32 v{t0}, s{sROT}, v{t0}
v_subrev_u32 v{t1}, 7, v{t0}
v_min_u32 v{t0}, v{t0}, v{t1}
v_and_b32 v{t1}, 7, v{vL}
v_lshlrev_b32 v{t4}, 2, v{t1}
v_lshl_add_u32 v{t0}, v{t0}, 7, v{t4}
s_lshl_b32 s{sT0}, s{sW}, 5
v_add_u32 v{t0}, s{sT0}, v{t0}
v_lshrrev_b32 v{t2}, 4, v{vN}
v_lshl_add_u32 v{t2}, v{t2}, 3, v{t1}
s_lshl_b32 s{sT0}, s{sT1}, 4
v_add_lshl_u32 v{t2}, v{t2}, s{sT0}, 1
s_lshl_b32 s{sT0}, s{sT1}, 5
v_add_lshl_u32 v{t1}, v{vN}, s{sT0}, 2
s_and_b32 s{sT3}, s{sW}, 1
s_lshl_b32 s{sT0}, s{sJ}, 1
s_add_u32 s{sT0}, s{sT0}, s{sT3}
s_lshl_b32 s{sT0}, s{sT0}, 5
v_add_lshl_u32 v{t3}, v{vN}, s{sT0}, 1
s_lshr_b32 s{sSO}, s{sWQ}, 1""")
    M.append(lgkm0())
    if P["prof"]: e("s_mov_b32 s46, s98\ns_mov_b32 s47, s96")
    if P.get("st0"): e("s_memtime s[34:35]")
    e(f"""s_add_u32 s{dX}, s{dX}, s{pX}
s_addc_u32 s{dX+1}, s{pX+1}, 0
s_load_dword s{sTAG}, {S(pWS, 2)}, 0""")

    D = []
    def dgrp(tok, pre, lines):
        for i, t in enumerate(lines):
            D.append([(L(pre) if i == 0 else []) + [I(t, tok=tok if i == len(lines) - 1 else None)], tok])
    def slot(g):
        if g < 27: return g % 6
        if g < 30: return g - 21
        return slot(g - 9)
    for s in range(7):
        dgrp(("x", s), f"s_add_u32 m0, s{sSO}, {XB + s * 8192}",
             [f"buffer_load_dwordx4 v{vdX+i}, {S(dX,4)}, s{sKB+s} offen offset:{1024*i} lds" for i in range(2)])
        dgrp(("g", s), f"s_add_u32 m0, s{sWQ}, {slot(s) * SL}",
             [f"buffer_load_dwordx4 v{vdB+i}, {S(dBI if i & 1 else dBR,4)}, s{sKB+s} offen offset:{1024*i} lds" for i in range(4)])
    for y in range(14):
        so = f"s_mul_i32 s{sSO}, s{sKB+y//2}, 1792" if y % 2 == 0 else f"s_add_u32 s{sSO}, s{sSO}, 114688"
        dgrp(("g", 7 + y), f"s_add_u32 m0, s{sWQ}, {slot(7 + y) * SL}\n{so}",
             [f"buffer_load_dwordx4 v{vdW1+i}, {S(dW1,4)}, s{sSO} offen offset:{1024*i} lds" for i in range(4)])
    for q in range(21):
        u, k = q // 3, q % 3
        so = (f"s_mul_i32 s{sSO}, s{sU+u}, 448", f"s_mov_b32 s{sSO}, s{sU+u}", f"s_add_u32 s{sSO}, s{sSO}, 114688")[k]
        vd, dd = (vdC, dC) if k == 0 else (vdW2, dW2)
        dgrp(("g", 21 + q), f"s_add_u32 m0, s{sWQ}, {slot(21 + q) * SL}\n{so}",
             [f"buffer_load_dwordx4 v{vd+i}, {S(dd,4)}, s{sSO} offen offset:{1024*i} lds" for i in range(4)])
    NS01 = 42 + 56

    def put(n):
        for x in D[n][0]: M.append(x)
    put(0); put(1)
    e(f"""s_add_u32 s{dBI}, s{dBR}, s{pBIM}
s_addc_u32 s{dBI+1}, s{pBIM+1}, 0
s_add_u32 s{dBR}, s{dBR}, s{pBRE}
s_addc_u32 s{dBR+1}, s{pBRE+1}, 0
s_sub_u32 s{dBI}, s{dBI}, 1024
s_subb_u32 s{dBI+1}, s{dBI+1}, 0""")
    for n in range(2, 6): put(n)
    e(f"""s_lshr_b32 s{sT0}, s{sWQ}, 3
s_add_u32 m0, s{sT0}, {PR}
global_load_ushort v{raw}, v{t2}, {S(pLRE,2)}
global_load_lds_dword v{t0}, {S(pGW,2)}
s_add_u32 m0, s{sT0}, {PR + 256}
global_load_ushort v{raw+1}, v{t2}, {S(pLIM,2)}""")
    e(f"global_load_lds_dword v{t1}, {S(pB1,2)}", tok="par")
    e(f"""global_load_ushort v{raw+2}, v{t2}, {S(pDT,2)}
global_load_ushort v{raw+3}, v{t3}, {S(pDS,2)}""")
    if P.get("st0"): e("s_memtime s[80:81]")
    for n in range(6, LA): put(n)
    if P.get("st0"): e("s_memtime s[82:83]")

    e(f"""s_lshl_b32 s{dW1}, s{sT1}, 7
s_sub_u32 s{dW1+2}, {WSZ}, s{dW1}
s_add_u32 s{dW1}, s{dW1}, s{pW1}
s_addc_u32 s{dW1+1}, s{pW1+1}, 0
s_mul_i32 s{dC}, s{sT3}, 28672
s_lshl_b32 s{dC+1}, s{sJ}, 7
s_add_u32 s{dC}, s{dC}, s{dC+1}
s_sub_u32 s{dC+2}, {MSZ}, s{dC}
s_cmp_ge_u32 s{sW}, 2
s_cselect_b32 s{pCRE}, s{pCIM}, s{pCRE}
s_cselect_b32 s{pCRE+1}, s{pCIM+1}, s{pCRE+1}
s_add_u32 s{dC}, s{dC}, s{pCRE}
s_addc_u32 s{dC+1}, s{pCRE+1}, 0
s_lshl_b32 s{dW2}, s{sJ}, 3
s_add_u32 s{dW2}, s{dW2}, s{sW}
s_mul_i32 s{dW2}, s{dW2}, 28672
s_sub_u32 s{dW2+2}, {WSZ}, s{dW2}
s_add_u32 s{dW2}, s{dW2}, s{pW2}
s_addc_u32 s{dW2+1}, s{pW2+1}, 0
s_lshl_b32 s{dE}, s{sT1}, 12
s_add_u32 s{dE}, s{dE}, {WS_E}
s_add_u32 s{dE}, s{dE}, s{pWS}
s_addc_u32 s{dE+1}, s{pWS+1}, 0
s_mov_b32 s{dE+2}, 4096
s_mul_i32 s{dPO}, s{sR}, 28
s_add_u32 s{dPO}, s{dPO}, s{sW}
s_mul_i32 s{dPO}, s{dPO}, {PIN}
s_add_u32 s{dPO}, s{dPO}, {WS_P}
s_add_u32 s{dPO}, s{dPO}, s{pWS}
s_addc_u32 s{dPO+1}, s{pWS+1}, 0
s_mov_b32 s{dPO+2}, {25*PIN}
s_lshr_b32 s{sCNT}, s{sW}, 1
s_lshl_b32 s{dO}, s{sR}, 2
s_add_u32 s{dO}, s{dO}, s{sCNT}
s_mul_i32 s{dO}, s{dO}, {16*1792}
s_lshl_b32 s{dO+1}, s{sT3}, 7
s_add_u32 s{dO}, s{dO}, s{dO+1}
s_sub_u32 s{dO+2}, {OSZ}, s{dO}
s_add_u32 s{dO}, s{dO}, s{pOUT}
s_addc_u32 s{dO+1}, s{pOUT+1}, 0
{lin(sU, P["rot2"], sT1)}
s_mul_i32 s{sT1}, s{sU}, 43
s_lshr_b32 s{sT1}, s{sT1}, 8
s_mul_i32 s{sT1}, s{sT1}, 6
s_sub_u32 s{sT1}, s{sU}, s{sT1}""")
    for s in range(6):
        e(f"""s_add_u32 s{sU+s}, s{sT1}, s{sJ}
s_add_u32 s{sU+s}, s{sU+s}, 1
s_cmp_ge_u32 s{sU+s}, 7
s_cselect_b32 s{sU+6}, 7, 0
s_sub_u32 s{sU+s}, s{sU+s}, s{sU+6}
s_lshl_b32 s{sU+s}, s{sU+s}, 7""")
        if s < 5:
            e(f"""s_add_u32 s{sT1}, s{sT1}, 1
s_cmp_ge_u32 s{sT1}, 6
s_cselect_b32 s{sT1}, 0, s{sT1}""")
    e(f"s_lshl_b32 s{sU+6}, s{sJ}, 7")
    for i in range(1, 4):
        e(f"v_add_u32 v{vdW1+i}, {i*(28672-1024)}, v{vdW1}\nv_add_u32 v{vdW2+i}, {i*6144}, v{vdW2}")
    e(f"""v_mov_b32 v{vdC}, v{vdB}
v_add_u32 v{vdC+1}, 6144, v{vdB+1}
v_add_u32 v{vdC+2}, {2*6144}, v{vdB}
v_add_u32 v{vdC+3}, {3*6144}, v{vdB+1}
v_lshrrev_b32 v{t0}, 1, v{vN}
v_xor_b32 v{t0}, v{t0}, v{vH}
v_and_b32 v{t0}, 7, v{t0}
v_lshlrev_b32 v{t0}, 4, v{t0}
v_lshl_add_u32 v{t0}, v{vN}, 7, v{t0}""")
    for k in range(4):
        e(f"""v_xor_b32 v{t1}, {32*k}, v{t0}
v_add_u32 v{vX+k}, {XB}, v{t1}
v_add_u32 v{vB+k}, s{sWQ}, v{t1}
v_add_u32 v{vB+4+k}, 0x10000, v{vB+k}""")
    e(f"""s_lshl_b32 s{sT1}, s{sW}, 5
v_xor_b32 v{vG}, s{sT1}, v{vX}
s_add_u32 s{sT0}, s{sT0}, {PR}
v_lshl_add_u32 v{vP}, v{vH}, 4, s{sT0}
v_lshl_add_u32 v{vP2}, v{vH}, 5, s{sT0}
s_sub_u32 s{sT0}, s{sJ}, s{sROT}
s_cselect_b32 s{sT1}, 7, 0
s_add_u32 s{sT0}, s{sT0}, s{sT1}
s_lshl_b32 s{sT0}, s{sT0}, 1
s_add_u32 s{sT0}, s{sT0}, s{sCNT}
s_lshl_b32 s{sT0}, s{sT0}, 12
s_lshl_b32 s{sT1}, s{sT3}, 6
v_xor_b32 v{vXD}, s{sT1}, v{vX}
v_add_u32 v{vXD}, s{sT0}, v{vXD}
v_xor_b32 v{vXD+1}, 32, v{vXD}
v_bfe_u32 v{t0}, v{vL}, 2, 2
v_lshl_add_u32 v{t0}, v{vH}, 3, v{t0}
v_lshlrev_b32 v{t0}, 7, v{t0}
v_bfe_u32 v{t1}, v{vL}, 3, 1
v_lshl_add_u32 v{t0}, v{t1}, 6, v{t0}
v_and_b32 v{t1}, 1, v{vL}
v_lshl_add_u32 v{t0}, v{t1}, 5, v{t0}
v_and_b32 v{t1}, 16, v{vL}
v_add_u32 v{t0}, v{t0}, v{t1}
v_and_b32 v{t1}, 2, v{vL}
v_lshl_add_u32 v{t0}, v{t1}, 2, v{t0}
v_add_u32 v{vW1}, s{sWQ}, v{t0}
v_xor_b32 v{vW1+1}, 64, v{vW1}
v_add_u32 v{vW1+2}, 0x10000, v{vW1}
v_add_u32 v{vW1+3}, 0x10000, v{vW1+1}
s_mov_b32 s{sCNT}, 0""")
    if P["prof"]: e("s_mov_b32 s44, 0\ns_mov_b32 s45, 0")
    M.append(lgkm0())
    if P.get("st0"): e("s_mov_b32 s16, s34\ns_mov_b32 s18, s80\ns_mov_b32 s20, s82"); nst[0] += 3; M += stamp(True)
    e(f"s_add_u32 s{sTAG}, s{sTAG}, {EPC}")
    M += stamp()

    mf, Bq, Rq, used = [], [], [], {}
    def mfma(dst, a, b, c, exp=None):
        for r in (a, b): used[r] = len(mf)
        mf.append(I(f"v_mfma_f32_32x32x16_bf16 {dst}, {a}, {b}, {c}", exp=exp)); return len(mf) - 1
    def rd(k, frag, bar, ins):
        k = max(-1, k)
        Rq.append(At(ins, min(k, max(used.get(frag, -2) + 1, k - P["re"])), k, after=[bar]))
    def xa(s, ks, rt): return A(((s * 4 + ks) * 2 + rt) * 4, 4)
    tneed, tlast = {}, {}
    nb = 0
    for s in range(7):
        k0 = len(mf)
        tneed[("x", s)] = tneed[("g", s)] = k0 - d
        Bq.append(At([need(("g", s)), I("s_barrier")], max(-1, k0 - d), max(-1, k0 - d), name=s))
        wn, of = (0, slot(s) * SL) if slot(s) < 4 else (4, slot(s) * SL - 65536)
        for ks in range(4):
            b = V(Bfr + 4 * (nb % 4), 4); nb += 1
            k = len(mf)
            rd(k - d, b, s, I(f"ds_read_b128 {b}, v{vB+wn+ks} offset:{of}", ver=("B", s, ks)))
            for rt in range(2):
                rd(k + rt - d, None, s, I(f"ds_read_b128 {xa(s,ks,rt)}, v{vX+ks} offset:{s*8192+rt*4096}", ver=("x", s, ks, rt)))
                acc = V(accS + 16 * rt, 16)
                mfma(acc, xa(s, ks, rt), b, acc if s or ks else "0", [(b, ("B", s, ks)), (xa(s, ks, rt), ("x", s, ks, rt))])
        tlast[s] = len(mf) - 1
        k = len(mf)
        rd(k - d, V(gwf, 4), s, ([need("par")] if s == 0 else []) + [I(f"ds_read_b128 {V(gwf,4)}, v{vP} offset:{32*s}", ver=("gw", s))])
        for rt in range(2):
            g = V(Gx + 4 * rt, 4)
            rd(k + rt - d, g, s, I(f"ds_read_b128 {g}, v{vG} offset:{s*8192+rt*4096}", ver=("gx", s, rt)))
            acc = A(aG + 16 * rt, 16)
            mfma(acc, V(gwf, 4), g, acc if s else "0", [(V(gwf, 4), ("gw", s)), (g, ("gx", s, rt))])
    for kk in range(2):
        k = len(mf)
        rd(k - d, None, 6, I(f"ds_read_b128 {V(xD+4*kk,4)}, v{vXD+kk}", ver=("xd", kk), tok=("xd", kk)))
        mfma(V(accD, 16), V(xD + 4 * kk, 4), V(dia + 4 * kk, 4), V(accD, 16) if kk else "0",
             [(V(xD + 4 * kk, 4), ("xd", kk)), (V(dia + 4 * kk, 4), "dia")])
    S1 = len(mf)
    nw = 0
    for y in range(14):
        g = 7 + y
        tneed[("g", g)] = len(mf) - d - 1
        Bq.append(At(need(("g", g)), len(mf) - d - 1, len(mf) - d - 1, name=g))
        wn, of = (0, slot(g) * SL) if slot(g) < 4 else (2, slot(g) * SL - 65536)
        for k2 in range(2):
            s, ks = y // 2, 2 * (y % 2) + k2
            for ft in range(2):
                wr = Wfr + 4 * (nw % 4); nw += 1
                k = len(mf)
                for ee in range(2):
                    rd(k - d - 1 + ee, V(wr, 4), g, I(f"ds_read_b64_tr_b16 {V(wr+2*ee,2)}, v{vW1+wn+ft} offset:{of+(16*k2+4*ee)*128}", ver=("W", y, k2, ft)))
                for rt in (1, 0):
                    acc = V(accF + 32 * ft + 16 * rt, 16)
                    c = acc if (y or k2) else V(accF + 32 * ft, 16)
                    ex = [(V(wr, 4), ("W", y, k2, ft)), (xa(s, ks, rt), ("x", s, ks, rt))]
                    if not (y or k2): ex.append((c, "bias"))
                    mfma(acc, V(wr, 4), xa(s, ks, rt), c, ex)
        tlast[g] = len(mf) - 1
    NM1 = len(mf)
    ts, prev, n = [], -d - 10, 0
    for s in range(7):
        t = tneed[("g", s)]
        ts += [prev + (t - prev) * (i + 1) / 6 for i in range(6)]; prev = t
    for g in range(7, 21):
        t = tneed[("g", g)]
        ts += [prev + (t - prev) * (i + 1) / 4 for i in range(4)]; prev = t
    vEg = vT
    egp = f"s_add_u32 m0, s{sWQ}, {AB}"
    gl = [f"buffer_load_dwordx4 v{vEg}, {S(dE,4)}, 0 offen offset:{1024*i} sc1 lds" for i in range(4)]
    nd, last, Dq, shift = LA, -1, [], 0
    def dput(ins, p, after=()):
        if Dq: Dq[-1].ins += ins[:-1]; ins = ins[-1:]
        Dq.append(At(list(ins), p - 1, p, after=after))
    while nd - LA < len(ts):
        p = max(int(ts[nd - LA] + shift) + 1, last, 0)
        tok = D[nd][1]
        if tok[0] == "g" and tok[1] >= 6: p = max(p, tlast[tok[1] - 6] + 1)
        if p >= P["egat"] and not shift and len(D[nd][0]) > 1:
            for i in range(4): dput((L(egp) if i == 0 else []) + [I(gl[i], tok="eg" if i == 3 else None)], p + P["egs"] * i, ["eg"])
            shift = P["egs"] * 4
            continue
        if p >= NM1 or nd >= P["ndm"]: break
        dput(D[nd][0], p); last = p; nd += 1

    F = []
    def f(t, **k): F.extend(L(t, **k))
    z0, z1, z2, z3, z4, z5, z6 = range(scr, scr + 7)
    f(f"""s_getreg_b32 s{sXT}, hwreg(HW_REG_XCC_ID, 0, 4)
s_lshl2_add_u32 s{sA}, s{sJ}, {PFL}
s_add_u32 s{sXT}, s{sXT}, s{sTAG}
v_mov_b32 v{z0}, s{sXT}
buffer_store_dword v{z0}, off, {S(dPO,4)}, s{sA} sc1""", at=P["hel"])
    f(f"""v_lshlrev_b32 v{raw+2}, 16, v{raw+2}
v_mul_f32 v{raw+2}, {fb(LOG2E)}, v{raw+2}
v_exp_f32 v{raw+2}, v{raw+2}
v_lshlrev_b32 v{raw}, 16, v{raw}
v_lshlrev_b32 v{raw+1}, 16, v{raw+1}
v_cvt_pk_bf16_f32 v{raw+2}, v{raw+2}, v{raw+2}
v_lshlrev_b32 v{z0}, 28, v{vL}
v_and_b32 v{z0}, 0x80000000, v{z0}
v_lshlrev_b32 v{raw+2}, 16, v{raw+2}
v_xor_b32 v{raw+1}, v{z0}, v{raw+1}
v_xor_b32 v{raw+1}, 0x80000000, v{raw+1}
v_xor_b32 v{z0}, 2.0, v{z0}
v_mul_f32 v{z1}, v{raw+2}, v{raw}
v_mul_f32 v{z2}, v{raw+2}, v{raw+1}
v_mul_f32 v{z1}, {fb(LOG2E)}, v{z1}
v_mul_f32 v{z2}, 0.15915494, v{z2}
v_exp_f32 v{z1}, v{z1}
v_rndne_f32 v{z3}, v{z2}
v_sub_f32 v{z2}, v{z2}, v{z3}
v_cos_f32 v{z3}, v{z2}
v_sin_f32 v{z4}, v{z2}
v_mul_f32 v{z5}, v{raw}, v{raw}
v_fmac_f32 v{z5}, v{raw+1}, v{raw+1}
v_rcp_f32 v{z5}, v{z5}
v_mul_f32 v{cL}, v{z3}, v{z1}
v_mul_f32 v{cL+1}, v{z4}, v{z1}
v_mul_f32 v{z5}, v{z5}, v{z0}
v_add_f32 v{z1}, -1.0, v{cL}
v_mul_f32 v{z2}, v{z1}, v{raw}
v_fmac_f32 v{z2}, v{cL+1}, v{raw+1}
v_mul_f32 v{cS}, v{z2}, v{z5}
v_mul_f32 v{z2}, v{cL+1}, v{raw}
v_fma_f32 v{z2}, -v{z1}, v{raw+1}, v{z2}
v_mul_f32 v{cS+1}, v{z2}, v{z5}""", at=P["fa"])
    def sq(dst, src):
        f(f"""v_mul_f32 v{z6}, v{src+1}, v{src+1}
v_add_f32 v{z5}, v{src}, v{src}
v_fma_f32 v{dst}, v{src}, v{src}, -v{z6}
v_mul_f32 v{dst+1}, v{z5}, v{src+1}""")
    sq(z0, cL); sq(z0, z0); sq(z0, z0); sq(cL16, z0); sq(cL32, cL16); sq(cL64, cL32)
    sq(z0, cL64); sq(z0, z0); sq(cL512, z0); sq(cL1K, cL512)
    f(f"""v_and_b32 v{z0}, 1, v{vL}
v_lshlrev_b32 v{z0}, 4, v{z0}
v_lshlrev_b32 v{z0}, v{z0}, v{raw+3}
v_bfe_u32 v{z1}, v{vL}, 1, 2
v_bfe_u32 v{z2}, v{vL}, 4, 1
v_lshl_add_u32 v{z1}, v{z2}, 2, v{z1}
v_bfe_u32 v{z2}, v{vL}, 3, 1
v_xor_b32 v{z2}, v{z2}, v{vH}
v_lshl_add_u32 v{z1}, v{z2}, 3, v{z1}""")
    for i in range(4):
        f(f"ds_read_b128 {V(rawb+4*i,4)}, v{vP2} offset:{256+64*(i>>1)+16*(i&1)}")
    for i in range(8):
        f(f"v_cmp_eq_u32 vcc, {i}, v{z1}")
        f(f"v_lshlrev_b32 v{accF+32*(i>>2)+4*(i&3)}, 16, v{rawb+2*i}", ver="bias")
        f(f"v_and_b32 v{accF+32*(i>>2)+4*(i&3)+1}, 0xffff0000, v{rawb+2*i}", ver="bias")
        f(f"v_cndmask_b32 v{dia+i}, 0, v{z0}", ver="dia")
        f(f"v_lshlrev_b32 v{accF+32*(i>>2)+4*(i&3)+2}, 16, v{rawb+2*i+1}", ver="bias")
        f(f"v_and_b32 v{accF+32*(i>>2)+4*(i&3)+3}, 0xffff0000, v{rawb+2*i+1}", ver="bias")
    NFA = len(F)

    DPP = "row_ror:8 row_mask:0xf bank_mask:0xf"
    def cm1(dst, m, zz, add): return f"v_fma_f32 v{dst}, v{m}, v{zz}, {add}"
    def cm2(dst, m, zz, neg=""): return f"v_fmac_f32_dpp v{dst}, v{zz}, {neg}v{m+1} {DPP}"
    ea, eb = [vT, vT + 1], [vT + 2, vT + 3]
    pa, pb = accS, accS + 16
    for q in range(1, 16):
        da, db = ea[q & 1], eb[q & 1]
        f("\n".join([cm1(da, cL, pa, f"v{accS+q}"), cm1(db, cL, pb, f"v{accS+16+q}"), cm2(da, cL, pa), cm2(db, cL, pb)]),
          at=S1 - 1)
        pa, pb = da, db
    e0, e32, elo, ehi = pa, vT, vT + 4, vT + 5
    f(f"""v_lshlrev_b32 v{vT+6}, 4, v{vN}
s_lshl_b32 s{sT0}, s{sW}, 2
{cm1(elo, cL16, e0, f'v{pb}')}
{cm2(elo, cL16, e0)}
s_add_u32 s{sT0}, s{sT0}, {GP}
v_mov_b32 v{ehi}, v{elo}
v_add_u32 v{vT+2}, s{sT0}, v{vT+6}
s_sub_u32 s{sT1}, 31, s{sR}
v_permlane32_swap_b32 v{elo}, v{ehi}
s_lshl_b32 s{sT1}, s{sT1}, 7
v_lshlrev_b32 v{vE1}, 3, v{vN}
{cm1(vE0, cL32, elo, f'v{ehi}')}
{cm2(vE0, cL32, elo)}
v_bfe_u32 v{vE1}, s{sTAG}, v{vE1}, 8
s_movk_i32 s{sB}, 0xff00
v_lshl_add_u32 v{vT}, v{vN}, 2, s{sT1}
v_and_or_b32 v{vE0}, v{vE0}, s{sB}, v{vE1}
s_add_u32 s{sT1}, s{sT1}, 128
buffer_store_dword v{vE0}, v{vT}, {S(dE,4)}, 0 offen sc1
ds_write_b32 v{vT+2}, a{aG}
ds_write_b32 v{vT+2}, a{aG+16} offset:512""")
    F[-1].tok = "gpw"
    f(f"""v_lshl_add_u32 v{vEg}, v{vL}, 4, s{sT1}
v_add_u32 v{vT+6}, {GP}, v{vT+6}""")
    F.append([needlg("gpw"), I("s_barrier")]); F[-1][0].nm = "eg"
    g0 = rawb
    f(f"""ds_read_b128 {V(g0,4)}, v{vT+6}
ds_read_b128 {V(g0+4,4)}, v{vT+6} offset:512""")
    def scale(lo, hi):
        for q in range(lo, hi):
            t = vT + 2 + (q & 1)
            f(f"v_mul_f32_dpp v{t}, v{accS+q}, v{cS+1} {DPP}\nv_fma_f32 v{accS+q}, v{accS+q}, v{cS}, v{t}")
    scale(0, 8)
    f(f"""v_add_f32 v{g0}, v{g0}, v{g0+1}
v_add_f32 v{g0+4}, v{g0+4}, v{g0+5}
v_add_f32 v{g0+2}, v{g0+2}, v{g0+3}
v_add_f32 v{g0+6}, v{g0+6}, v{g0+7}
v_add_f32 v{g0}, v{g0}, v{g0+2}
v_add_f32 v{g0+4}, v{g0+4}, v{g0+6}
v_mul_f32 v{g0}, {fb(-LOG2E)}, v{g0}
v_mul_f32 v{g0+4}, {fb(-LOG2E)}, v{g0+4}
v_exp_f32 v{g0}, v{g0}
v_exp_f32 v{g0+4}, v{g0+4}
v_bfe_u32 v{g0+1}, v{vN}, 2, 1
v_add_f32 v{g0}, 1.0, v{g0}
v_add_f32 v{g0+4}, 1.0, v{g0+4}
v_rcp_f32 v{g0}, v{g0}
v_rcp_f32 v{g0+4}, v{g0+4}
v_lshrrev_b32 v{g0+2}, 3, v{vN}
v_lshl_add_u32 v{g0+1}, v{g0+1}, 3, v{g0+2}
v_and_b32 v{g0+2}, 3, v{vN}
v_lshl_add_u32 v{g0+1}, v{g0+1}, 2, v{g0+2}
v_lshlrev_b32 v{g0+1}, 2, v{g0+1}
v_add_u32 v{g0+1}, {GT}, v{g0+1}
v_sub_f32 v{omg}, 1.0, v{g0}
v_sub_f32 v{omg+2}, 1.0, v{g0+4}
ds_write_b32 v{g0+1}, v{g0}
ds_write_b32 v{g0+1}, v{g0+4} offset:64
v_lshlrev_b32 v{g0+2}, 7, v{vH}
v_add_u32 v{g0+2}, {GT}, v{g0+2}
s_lshr_b32 s{sT0}, s{sW}, 1
s_lshl_b32 s{sT1}, s{sT0}, 6
v_add_u32 v{g0+3}, s{sT1}, v{g0+2}
v_mov_b32 v{omg+1}, v{omg}
v_mov_b32 v{omg+3}, v{omg+2}""")
    for i in range(4): f(f"ds_read_b128 {V(Eg+4*i,4)}, v{g0+3} offset:{16*i}")
    scale(8, 12)
    for i in range(8): f(f"ds_read_b128 {V(gR+4*i,4)}, v{g0+2} offset:{16*i}")
    for q in range(16): f(f"v_mul_f32 v{accD+q}, v{accD+q}, v{Eg+q}")
    hld = f"""v_min_u32 v{vPo}, 6, v{vL}
v_lshlrev_b32 v{vPo}, 2, v{vPo}
buffer_load_dword v{vPo}, v{vPo}, {S(dPO,4)}, 0 offen offset:{PFL} sc1"""
    f(hld, at=P["egat"])
    scale(12, 32)
    vCnt, vEr = vE1, Eg + 16
    f(f"""v_lshlrev_b32 v{vT+2}, 4, v{vH}
s_add_u32 s{sT1}, s{sWQ}, {AB}
v_lshl_add_u32 v{vEr}, v{vN}, 2, s{sT1}
v_lshl_add_u32 v{vEr}, v{vH}, 11, v{vEr}
v_sub_u32 v{vT+2}, s{sR}, v{vT+2}
v_add_u32 v{vEr+1}, 128, v{vEr}
v_med3_i32 v{vT+2}, v{vT+2}, 0, 16
v_mul_u32_u24 v{vCnt}, v{vT+2}, v{vE1}
v_cmp_eq_u32 vcc, 1, v{vH}
v_lshrrev_b32 v{vT+2}, 1, v{vN}
v_and_b32 v{vT+2}, 7, v{vT+2}
v_cndmask_b32 v{cL32}, 1.0, v{cL32}
v_cndmask_b32 v{cL32+1}, 0, v{cL32+1}
v_cndmask_b32 v{elo}, 0, v{elo}
v_lshlrev_b32 v{vT+2}, 4, v{vT+2}
v_lshl_add_u32 v{vT+2}, v{vN}, 7, v{vT+2}
v_lshl_add_u32 v{vT+2}, v{vH}, 13, v{vT+2}
s_lshl_b32 s{sT1}, s{sT3}, 12
v_add_u32 v{vC[0]}, s{sT1}, v{vT+2}""")
    erd = [f"ds_read2st64_b32 {V(Eg+2*k,2)}, v{vEr+(k&1)} offset0:{k>>1} offset1:{(k>>1)+4}" for k in range(7, -1, -1)]
    chk = []
    for k in range(7, 0, -2):
        chk += [f"v_add_u32_sdwa v{vEr+2+i}, v{Eg+2*(k-i)}, v{Eg+2*(k-i)+1} dst_sel:DWORD dst_unused:UNUSED_PAD src0_sel:BYTE_0 src1_sel:BYTE_0" for i in range(2)]
        chk.append(f"v_add3_u32 v{vE0}, v{vEr+2}, v{vEr+3}, {f'v{vE0}' if k < 7 else 0}")
    chk.append(f"v_cmp_ne_u32 vcc, v{vE0}, v{vCnt}")
    F.append([need("eg")] + L(erd[0])); F[-1][0].at = P["echk"]
    f("\n".join(erd[1:]))
    for k in range(1, 8): f(f"v_xor_b32 v{vC[k]}, {16*k}, v{vC[0]}")
    for k in range(8): f(f"v_add_u32 v{vC[8+k]}, 0x10000, v{vC[k]}")
    f("\n".join(chk[:-1]))
    F.append(L(chk[-1] + "\ns_cbranch_vccnz L_eretry\nL_eback:"))
    OUT = L(f"""L_eretry:
s_mov_b32 s{sA}, m0
{egp}
L_eloop:
{"s_add_u32 s44, s44, 1" if P["prof"] else ""}
s_add_u32 s{sCNT}, s{sCNT}, 1
""" + "\n".join(gl) + "\ns_waitcnt vmcnt(0)\n" + "\n".join(erd) + f"""
s_cmp_gt_u32 s{sCNT}, 0x8000
s_waitcnt lgkmcnt(0)
s_cbranch_scc1 L_edone
""" + "\n".join(chk) + f"\ns_cbranch_vccnz L_eloop\nL_edone:\ns_mov_b32 m0, s{sA}\ns_branch L_eback")
    def clr(k): f(f"v_and_b32 v{Eg+2*k}, s{sB}, v{Eg+2*k}\nv_and_b32 v{Eg+2*k+1}, s{sB}, v{Eg+2*k+1}")
    clr(7); clr(6)
    for i in range(6, -1, -1):
        a0, a1, b0, b1 = Eg + 2 * i, Eg + 2 * i + 2, Eg + 2 * i + 1, Eg + 2 * i + 3
        f(f"v_fmac_f32 v{a0}, v{cL64}, v{a1}\nv_fmac_f32 v{b0}, v{cL64}, v{b1}\n{cm2(a0, cL64, a1)}\n{cm2(b0, cL64, b1)}")
        if i: clr(i - 1)
    k0, k1, c0, c1, hw = Eg, Eg + 1, Eg + 2, Eg + 3, Eg + 8
    f(f"""v_fmac_f32 v{k0}, v{cL512}, v{k1}
v_and_b32 v{hw}, 3, v{vN}
{cm2(k0, cL512, k1)}
v_mov_b32 v{k1}, v{k0}
v_lshlrev_b32 v{hw}, 4, v{hw}
v_lshl_add_u32 v{hw}, v{vN}, 7, v{hw}
v_permlane32_swap_b32 v{k0}, v{k1}
v_lshl_add_u32 v{hw}, v{vH}, 6, v{hw}
v_fmac_f32 v{k0}, v{cL1K}, v{k1}
{cm2(k0, cL1K, k1)}
s_add_u32 s{sT1}, s{sWQ}, {HB}
{cm1(c0, cL32, k0, f'v{elo}')}
{cm2(c0, cL32, k0)}
v_add_u32 v{hw}, s{sT1}, v{hw}
{cm1(c1, cL16, c0, f'v{e0}')}
{cm2(c1, cL16, c0)}
v_mul_f32_dpp v{k0}, v{c0}, v{cS+1} {DPP}
v_xor_b32 v{hw+1}, 16, v{hw}
v_mul_f32_dpp v{k1}, v{c1}, v{cS+1} {DPP}
v_fmac_f32 v{k0}, v{c0}, v{cS}
v_fmac_f32 v{k1}, v{c1}, v{cS}""")
    pa, pb = k0, k1
    for q in range(16):
        da, db = accS + q, accS + 16 + q
        f(f"v_fmac_f32 v{da}, v{cL}, v{pa}\nv_fmac_f32 v{db}, v{cL}, v{pb}\n{cm2(da, cL, pa, '-')}\n{cm2(db, cL, pb, '-')}")
        pa, pb = da, db
    f(f"v_xor_b32 v{hw+2}, 32, v{hw}\nv_xor_b32 v{hw+3}, 48, v{hw}")
    for i in range(4):
        for q in range(8 * i, 8 * i + 8): f(f"v_mul_f32 v{gR+q}, v{gR+q}, v{accS+q}")
        for q in range(4): f(f"v_cvt_pk_bf16_f32 v{Eg+16+4*i+q}, v{gR+8*i+2*q}, v{gR+8*i+2*q+1}")
        f(f"ds_write_b128 v{hw+i}, {V(Eg+16+4*i,4)}")
    Sq = [At(stamp(), S1 - 1, S1 - 1)] + [At(stamp(True), k, k) for k in P.get("st1", [])]
    Sq = sorted([x for x in Sq if x.ins], key=lambda x: x.dl)
    Fq = []
    for i, x in enumerate(F):
        x0 = x[0] if isinstance(x, list) else x
        Fq.append(At(x, -1 if x0.at is None else x0.at, name=getattr(x0, "nm", None)))
    Fq[NFA - 1].dl = S1 - 4
    st, left = sched(mf, [Sq, Bq, Dq, Rq, Fq], P["bud"], P["co1"], d - 1)
    left = [x for a_ in left for x in a_.ins]
    info = dict(left=len(left), nd=nd)
    M += st
    M += dump("s1")
    M += stamp()
    M += left
    M += dump("scan")
    M += stamp()

    K1, K3, K4, mt, mh, mo = 80, 82, 84, 88, 96, 104
    e(f"""v_mov_b32 v{K1}, {fb(LOG2E)}
v_mov_b32 v{K1+1}, {fb(LOG2E)}
v_mov_b32 v{K3}, {fb(0.7071067811865476)}
v_mov_b32 v{K3+1}, {fb(0.7071067811865476)}
v_mov_b32 v{K4}, 0.5
v_mov_b32 v{K4+1}, 0.5
v_lshlrev_b32 v{vLin}, 4, v{vL}
s_add_u32 s{sT1}, s{sWQ}, {AB}
v_add_u32 v{vAw}, s{sT1}, v{vLin}
s_lshl_b32 s{sT1}, s{sT0}, 14
s_add_u32 s{sT1}, s{sT1}, {AB}
v_add_u32 v{vAr}, s{sT1}, v{vLin}
v_bfe_u32 v{t0}, v{vL}, 2, 2
v_lshl_add_u32 v{t1}, v{vH}, 3, v{t0}
v_lshlrev_b32 v{t1}, 7, v{t1}
v_and_b32 v{t2}, 1, v{vL}
v_lshl_add_u32 v{t1}, v{t2}, 6, v{t1}
v_and_b32 v{t2}, 2, v{vL}
v_lshl_add_u32 v{t1}, v{t2}, 2, v{t1}
v_lshlrev_b32 v{t2}, 4, v{t0}
v_and_b32 v{t3}, 16, v{vL}
v_xor_b32 v{t2}, v{t2}, v{t3}
s_lshl_b32 s{sT1}, s{sT0}, 5
v_xor_b32 v{t2}, s{sT1}, v{t2}
v_add_u32 v{t1}, v{t1}, v{t2}
v_add_u32 v{vHr}, {HB}, v{t1}
v_lshl_add_u32 v{t0}, v{vH}, 4, v{t0}
v_lshlrev_b32 v{t0}, 7, v{t0}
v_bfe_u32 v{t1}, v{vL}, 3, 1
v_xor_b32 v{t1}, s{sT3}, v{t1}
v_lshl_add_u32 v{t0}, v{t1}, 6, v{t0}
v_lshl_add_u32 v{t0}, v{t3}, 1, v{t0}
v_and_b32 v{t1}, 3, v{vL}
v_lshl_add_u32 v{vW2}, v{t1}, 3, v{t0}
v_add_u32 v{vW2+1}, 0x10000, v{vW2}
v_add_u32 v{vW2+2}, 0x20000, v{vW2}""")
    mf = []
    d2, bd, sel = P["d2"], P["bd"], P["sel"]
    def fragreads(q, kx):
        fr = F2 + 4 * ((8 * q + kx) % RING)
        base = slot(21 + q) * SL
        wn, of = base >> 16, base & 0xffff
        if q % 3 == 0:
            return fr, [I(f"ds_read_b128 {A(fr,4)}, v{vC[8*wn+kx]} offset:{of}", ver=("F", q, kx))]
        return fr, [I(f"ds_read_b64_tr_b16 {A(fr+2*ee,2)}, v{vW2+wn} offset:{of+(32*(kx>>1)+8*(kx&1)+4*ee)*128}",
                      ver=("F", q, kx)) for ee in range(2)]
    early, pos, spos, Rq, Bq, Aq = [], {}, {}, [], [], []
    def selm(u):
        spos[u] = len(mf)
        acc = V(accD, 16) if u >= 3 else V(acc2 + 16 * ((u + 3) & 1), 16)
        if u < 3: assert 24 * (u + 3) < sel[u] < 24 * (u + 4)
        for i in range(2): mfma(acc, V(Sel + 4 * i, 4), V(inb[u] + 4 * i, 4), acc)
    for q in range(21):
        u = q // 3
        acc = V(accD, 16) if u == 6 else V(acc2 + 16 * (u & 1), 16)
        for kx in range(8):
            km = 8 * q + kx
            for s_ in range(6):
                if sel[s_] == km: selm(s_)
            k = pos[km] = len(mf)
            if kx == 0 and q >= 2:
                Bq.append(At(([needlg("act")] if q == 2 else []) + [need(("g", 21 + q)), I("s_barrier")], k - bd, k - bd, name=("b", q)))
            fr, r_ = fragreads(q, kx)
            if P.get("hr") and q < 18 and kx & 1:
                fr, r_ = fragreads(q, kx - 1)[0], []
            if k - d2 < 0: early.extend(r_)
            else: Rq += [At(x, pos.get(km - RING, -2) + 1, k - d2, after=[("b", q)] if q >= 2 else []) for x in r_]
            if q % 3 == 0: a_, av = A(aH + 4 * kx, 4), ("h", kx)
            else:
                ka = 8 * (q % 3 - 1) + kx
                a_, av = A(4 * ka, 4), ("act", ka)
            mfma(acc, a_, A(fr, 4), acc if (u == 6 or q % 3 or kx) else "0", [(A(fr, 4), ("F", q, kx if r_ else kx - 1)), (a_, av)])
    NM2 = len(mf)
    for ka in range(16):
        Aq.append(At(I(f"ds_read_b128 {A(4*ka,4)}, v{vAr} offset:{1024*ka}", ver=("act", ka), tok="act" if ka == 15 else None),
                     -1, min(8 + ka - d2, (ka * (15 - bd)) // 16 - 1)))
    hreads = [I(f"ds_read_b64_tr_b16 {A(aH+4*kx+2*ee,2)}, v{vHr} offset:{(16*kx+4*ee)*128}", ver=("h", kx))
              for kx in range(8) for ee in range(2)] + early
    xd = []
    while D[nd][1][1] < 27: xd.append(D[nd][0]); nd += 1
    uses = [(0, 1), (0, 0), (1, 1), (1, 0)]
    for b in range(8):
        ft, rt = uses[b >> 1]; kk = b & 1
        h = accF + 32 * ft + 16 * rt + 8 * kk
        o = mo + 4 * (b & 1)
        B = []
        for p in range(4): B += L(f"v_pk_fma_f32 {V(mt+2*p,2)}, {V(h+2*p,2)}, {V(K1,2)}, {V(K4,2)} neg_lo:[0,0,1] neg_hi:[0,0,1]")
        for p in range(8): B += L(f"v_exp_f32 v{mt+p}, v{mt+p}")
        for p in range(4): B += L(f"v_pk_add_f32 {V(mt+2*p,2)}, {V(mt+2*p,2)}, {V(K3,2)}")
        for p in range(4): B += L(f"v_pk_fma_f32 {V(mt+2*p,2)}, {V(mt+2*p,2)}, {V(mt+2*p,2)}, {V(K4,2)}")
        for p in range(8): B += L(f"v_rcp_f32 v{mt+p}, v{mt+p}")
        for p in range(4): B += L(f"v_pk_mul_f32 {V(mh+2*p,2)}, {V(h+2*p,2)}, {V(omg+2*rt,2)}")
        for p in range(4): B += L(f"v_pk_fma_f32 {V(mh+2*p,2)}, {V(mh+2*p,2)}, {V(mt+2*p,2)}, {V(mh+2*p,2)} neg_lo:[1,0,0] neg_hi:[1,0,0]")
        for p in range(4): B += L(f"v_cvt_pk_bf16_f32 v{o+p}, v{mh+2*p}, v{mh+2*p+1}")
        B += L(f"ds_write_b128 v{vAw}, {V(o,4)} offset:{rt*16384+(2*ft+kk)*1024}")
        extra = []
        if b < 4:
            n_ = (len(xd) + 3 - b) // (4 - b)
            extra = xd[:n_]; xd = xd[n_:]
        else:
            n_ = (len(hreads) + 6 - b) // (7 - b) if b < 7 else 0
            extra = [[x] for x in hreads[:n_]]; hreads = hreads[n_:]
        if b == 4: M += [lgkm0(), need(("g", 21)), I("s_barrier")]
        step = max(1, len(B) // (len(extra) + 1))
        for i, x in enumerate(B):
            M.append(x)
            if extra and i % step == step - 1: M += extra.pop(0)
        assert not extra
    M += [lgkm0(), need(("g", 22)), I("s_barrier")]
    M += dump("x")
    M += stamp()

    def gp(km): return pos[km] if km in pos else None
    Vq = [At(x, 8) for x in L(f"""v_mov_b32 v{vTag}, s{sTAG}
v_lshlrev_b32 v{vL4}, 2, v{vL}
v_lshrrev_b32 v{vMo}, 3, v{vL}
v_mul_u32_u24 v{vMo}, {1792-128}, v{vMo}
v_add_u32 v{vMo}, v{vMo}, v{vLin}
v_add_u32 v{vMo+1}, {8*1792}, v{vMo}
s_add_u32 s{sTG1}, s{sTAG}, 1""")]
    V2 = [At(x, 8) for x in L(f"""v_and_b32 v{t0}, 1, v{vL}
v_lshlrev_b32 v{t0}, 4, v{t0}
v_mov_b32 v{t1}, 0x3f80
v_lshlrev_b32 v{t0}, v{t0}, v{t1}
v_lshrrev_b32 v{t1}, 3, v{vN}
v_bfe_u32 v{t2}, v{vL}, 1, 1
v_lshl_add_u32 v{t1}, v{t1}, 1, v{t2}
v_bfe_u32 v{t2}, v{vL}, 2, 1
v_xor_b32 v{t2}, v{t2}, v{vH}
v_lshl_add_u32 v{t1}, v{t2}, 3, v{t1}
v_mul_u32_u24 v{t2}, {32*1792}, v{vH}
v_lshl_add_u32 v{vOut}, v{vN}, 2, v{t2}
v_lshl_add_u32 v{vOut}, s{sJ}, 8, v{vOut}""")]
    for i in range(0, 8, 2):
        V2.append(At(L(f"""v_cmp_eq_u32 vcc, {i}, v{t1}
v_cmp_eq_u32 s[42:43], {i+1}, v{t1}
s_movk_i32 s{sOO+i}, {3584*i}
v_cndmask_b32 v{Sel+i}, 0, v{t0}
v_cndmask_b32 v{Sel+i+1}, 0, v{t0}, s[42:43]"""), 8))
        V2.append(At(L(f"s_movk_i32 s{sOO+i+1}, {3584*(i+1)}"), 8))
    for i, a_ in enumerate(reversed(V2)): a_.dl = min(list(spos.values()) + [NM2]) - 4 - 3 * i
    def chks(dst, r, hop): return [f"v_add3_u32 v{dst}, v{r}, v{r+1}, s{sTG1 if hop else sTAG}"] + [f"v_add3_u32 v{dst}, v{dst}, v{r+2*i}, v{r+2*i+1}" for i in (1, 2, 3)]
    def msg(op, r, tile, c, sd, sw, fl):
        pre_ = f"s_mul_i32 s{sw}, s{tile}, {4*PIN//128}"
        if c < NO:
            pre_ += f"\ns_lshl_b32 s{sd}, s{tile}, 1" if c == 0 else f"\ns_lshl1_add_u32 s{sd}, s{tile}, {32*1792}"
            dat = [f"buffer_{op}_dwordx4 {V(r+4*i,4)}, v{vMo+i}, {S(dO,4)}, s{sd} offen {fl}" for i in range(2)]
            return pre_, dat + [f"buffer_{op}_dword v{r+8}, v{vL4}, {S(dPO,4)}, s{sw} offen offset:{PCK+256*c} {fl}"]
        if PCK > 2048:
            pre_ += f"\ns_add_u32 s{sd}, s{sw}, {2048*(c-NO)}\ns_add_u32 s{sw}, s{sw}, {PCK-2048}"
        else: sd = sw
        dat = [f"buffer_{op}_dwordx4 {V(r+4*i,4)}, v{vLin}, {S(dPO,4)}, s{sd} offen offset:{1024*i} {fl}" for i in range(2)]
        return pre_, dat + [f"buffer_{op}_dword v{r+8}, v{vL4}, {S(dPO,4)}, s{sw} offen offset:{2048+256*c} {fl}"]
    Xq = []
    pre = P.get("pre", "")
    for u in range(6):
        a_ = acc2 + 16 * (u & 1); k0 = pos[24 * u + 23]
        g0_, g1_, g2_ = (k0 + x for x in P["sto"])
        pre_, mm = msg("store", stg, sU + u, u % 3, sT0, sA, "@X")
        for p in range(8):
            Vq.append(At(L(f"v_cvt_pk_bf16_f32 v{stg+p}, v{a_+2*p}, v{a_+2*p+1}"), k0 + 2, (g0_ if p < 4 else g1_) - 1, name=("cv", u, p)))
            if p == 1: Vq.append(At(L(pre_), k0))
        for i, x in enumerate(chks(stg + 8, stg, u // 3)): Vq.append(At(L(x), k0, g2_ - 1, name=("ck", u, i)))
        if "pst" in pre: continue
        for i, g_ in enumerate((g0_, g1_)):
            Xq.append((g_, At(L(mm[i]), g_, g_, after=[("cv", u, 4 * i + 3)], solo=True)))
        Xq.append((g2_, At(L(mm[2]), g2_ - 1, g2_, after=[("ck", u, 3)])))
    OUT2 = []
    def retry(lab, bit, ld, c):
        OUT2.extend(L(f"""L_r{lab}:
{f"s_or_b32 s45, s45, {1 << bit}" if P["prof"] else ""}
{ld}
s_add_u32 s{sCNT}, s{sCNT}, 1
s_waitcnt vmcnt(0)
s_cmp_gt_u32 s{sCNT}, 0x8000
s_cbranch_scc1 L_b{lab}
{c}
s_cbranch_vccnz L_r{lab}
s_branch L_b{lab}"""))
        return L(c + ("" if "nochk" in pre else f"\ns_cbranch_vccnz L_r{lab}") + f"\nL_b{lab}:")
    Xq.append((18, At(L(f"v_cmp_ne_u32 vcc, s{sXT}, v{vPo}\ns_cbranch_vccnz L_mode\nL_near:"), 18, 20)))
    MODE = L(f"""L_mode:
{hld}
s_add_u32 s{sCNT}, s{sCNT}, 1
s_waitcnt vmcnt(0)
s_cmp_gt_u32 s{sCNT}, 0x8000
s_cbranch_scc1 L_nearF
v_subrev_u32 v{t3}, s{sTAG}, v{vPo}
v_cmp_lt_u32 vcc, 15, v{t3}
s_cbranch_vccnz L_mode
v_cmp_ne_u32 vcc, s{sXT}, v{vPo}
s_cbranch_vccnz L_nearF
s_branch L_near""")
    def pl(u, sd=sROT, sw=sB):
        pre_, mm = msg("load", inb[u], sU + min(u + 3, 6), u % 3, sd, sw, "sc1")
        return [pre_ + "\n" + mm[0], mm[1], mm[2]]
    def pchk(u):
        return retry(f"p{u}", u, "\n".join(pl(u, sT1, 42)), "\n".join(chks(t3, inb[u], u // 3)) + f"\nv_cmp_ne_u32 vcc, v{t3}, v{inb[u]+8}")
    tail = []
    for u in range(6):
        k = P["pld"][u]
        if k < 168 and "pld" not in pre:
            for i, x in enumerate(pl(u)): Xq.append((pos[k] + i / 4, At(L(x), pos[k], min(NM2 - 1, pos[k] + 1 + i))))
        if u in spos:
            c = pchk(u)
            Xq.append((spos[u] - 2, At(c[:4], spos[u] - 2, spos[u] - 2)))
            Xq.append((spos[u] - 1, At(c[4:], spos[u] - 1, spos[u] - 1)))
    Xq.sort(key=lambda t: t[0])
    end, cst, cs1 = P["dsp"]
    fixed = collections.Counter()
    for g_, a_ in Xq:
        for x in a_.ins:
            if x.kind in ("vst", "vld"): fixed[int(g_)] += {"vstx4": cst, "vstrd": cs1, "vldx4": 64, "vldrd": 32}[x.kind + x.op[-2:]]
    def plan(c):
        out, busy, n = [], 0, nd
        for k in range(NM2):
            busy = max(busy, k * c) + fixed[k]
            if n == len(D): continue
            q = D[n][1][1] - 21
            if k >= (0 if q == 6 else pos[8 * max(2, q - 7)] - bd) and busy + fixed[k + 1] / 2 < (k + 1) * c:
                out.append(k); busy += 64; n += 1
        return out if n == len(D) and out[-1] <= end else None
    c = next(c for c in range(30, 100) if plan(c))
    info["c"] = c
    Dq = []
    for p in plan(c):
        q = D[nd][1][1] - 21
        Dq.append(At(D[nd][0], p, p + 1, after=[] if q == 6 else [("b", max(2, q - 7))])); nd += 1
    info["du"] = [sum(pos[24 * u] <= p < pos.get(24 * u + 24, 999) for p in [a_.at for a_ in Dq]) for u in range(7)]
    Sq = [At(stamp(True), pos[k], pos[k]) for k in P.get("st2", [])]
    st, left = sched(mf, [Sq, Bq, [x[1] for x in Xq], Dq, Aq, Rq, Vq, V2], P.get("bud2", 32), P["co"], d2 - 1)
    assert not left
    M += st
    M += stamp()
    late = [u for u in range(6) if P["pld"][u] >= 168]
    for u in range(6):
        for u2 in late:
            if P["pld"][u2] - 168 == u or (u2 == u and P["pld"][u2] - 168 > u):
                if "pld" not in pre: e("\n".join(pl(u2)))
        if u in spos: continue
        M += pchk(u)
        for i in range(2): e(f"v_mfma_f32_32x32x16_bf16 {V(accD,16)}, {V(Sel+4*i,4)}, {V(inb[u]+4*i,4)}, {V(accD,16)}")
    M += stamp()
    for q in range(16):
        e(f"buffer_store_dword v{accD+q}, v{vOut}, {S(dO,4)}, s{sOO+q//2} offen offset:{1792*(q&1)} {P['ost']}")
    if P.get("amp"):
        a_, b_ = P["amp"]
        M += [vm0()] + stamp(True) + stamp(True, True) + L("s_waitcnt lgkmcnt(0)")
        e(f"""s_cmp_lg_u32 s2, {P.get("ampw", 141)}
s_cbranch_scc1 L_noamp
s_sub_u32 s44, s{sST+2*b_}, s{46 + P.get('ampc', 0) if a_ < 0 else sST+2*a_}
s_lshl_b32 s44, s44, {0 if P.get('ampc') else 4}
s_min_u32 s44, s44, 60000
L_amp:
s_memrealtime s[42:43]
s_waitcnt lgkmcnt(0)
s_sub_u32 s45, s42, s{sST+2*nst[0]-2}
s_cmp_lt_u32 s45, s44
s_cbranch_scc1 L_amp
L_noamp:""")
    elif P["prof"]:
        M += [vm0()] + stamp() + L("s_waitcnt lgkmcnt(0)")
        e(f"""s_memrealtime s[42:43]
s_mul_i32 s{sT0}, s{sR}, 7
s_add_u32 s{sT0}, s{sT0}, s{sJ}
s_lshl_b32 s{sT0}, s{sT0}, 2
s_add_u32 s{sT0}, s{sT0}, s{sW}
s_lshl_b32 s{sT0}, s{sT0}, 6
s_add_u32 s{sT0}, s{sT0}, {WS_DBG}
v_mov_b32 v0, s{sT0}
s_waitcnt lgkmcnt(0)""")
        for i in range(nst[0]):
            e(f"v_mov_b32 v4, s{sST+2*i}\nglobal_store_dword v0, v4, {S(pWS,2)} offset:{4*i}")
        e(f"v_mov_b32 v4, s44\nglobal_store_dword v0, v4, {S(pWS,2)} offset:40")
        e(f"v_mov_b32 v4, s45\nglobal_store_dword v0, v4, {S(pWS,2)} offset:44")
        e(f"v_mov_b32 v4, s46\nglobal_store_dword v0, v4, {S(pWS,2)} offset:52")
        e(f"v_mov_b32 v4, s47\nglobal_store_dword v0, v4, {S(pWS,2)} offset:48")
        e(f"v_mov_b32 v4, s{sCNT}\nglobal_store_dword v0, v4, {S(pWS,2)} offset:56")
        e(f"v_mov_b32 v4, s42\nglobal_store_dword v0, v4, {S(pWS,2)} offset:60")
    e(f"""s_lshl_b32 s{sT0}, s{sJ}, 2
s_add_u32 s{sT0}, s{sT0}, s{sW}
s_lshl_b32 s{sT0}, s{sT0}, 5
s_add_u32 s{sT0}, s{sT0}, s{sR}
s_cmp_lg_u32 s{sT0}, 31
s_cbranch_scc1 L_exit
v_mov_b32 v0, 0
global_store_dword v0, v{vTag}, {S(pWS,2)} sc1
L_exit:
s_endpgm""")
    if "eld" in pre: M = [x for x in M if not (x.kind == "vld" and x.op.endswith("x2")) and "L_eretry" not in x.text]
    if P.get("en") is not None:
        M = [x for x in M if "L_eretry" not in x.text and not (x.kind == "vld" and x.op.endswith("x2") and int(re.search(r"offset:(\d+)", x.text).group(1)) // 256 % (16 // P["en"]))]
    if "esto" in pre: M = [x for x in M if not (x.kind == "vst" and x.op.endswith("x2")) and "L_eretry" not in x.text]
    body, nops = finalize(M, P.get("verbose"))
    drop = P.get("drop", "")
    if "dma" in drop: body = [x for x in body if x.kind != "dma"]
    if "est" in drop: body = [x for x in body if not (x.kind in ("vst", "vld") and x.op.endswith("x2")) and "L_eretry" not in x.text]
    if "bar" in drop: body = [x for x in body if x.op != "s_barrier"]
    if "dsr" in drop: body = [x for x in body if x.kind != "dsr"]
    if "dsw" in drop: body = [x for x in body if x.kind != "dsw"]
    if "wait" in drop: body = [x for x in body if not (x.op == "s_waitcnt" and "lgkmcnt(0)" not in x.text)]
    if "mfma" in drop: body = [x for x in body if x.kind != "mfma"]
    info["nops"] = nops; info["n"] = len(body); info["model"] = model(body)
    PF = L("L_pf:")
    if 1:
        nj = {0: 7, 1: 4, 2: 3, 3: 2}[z]
        PF += L(f"""s_lshr_b32 s50, s2, 3
s_lshl_b32 s50, s50, 8
v_add_u32 v1, s50, v0
s_and_b32 s51, s2, {(1 << z) - 1}
s_mul_i32 s51, s51, 28
s_add_u32 s3, s51, 27
s_lshr_b32 s51, s51, {2 + z}
s_lshr_b32 s3, s3, {2 + z}
s_add_u32 s3, s3, 1
s_and_b32 s4, s2, 7
s_lshr_b32 s4, s4, {z}
v_lshrrev_b32 v2, 6, v1
s_mov_b32 s55, 0x20000
s_mov_b32 s59, 0x20000
s_mov_b32 s63, 0x20000
s_mov_b32 s67, 0x20000
v_readfirstlane_b32 s5, v2
v_lshlrev_b32 v3, 7, v1
v_lshrrev_b32 v4, 2, v1
v_mul_u32_u24 v4, 3584, v4
v_and_b32 v5, 3, v1
v_lshl_add_u32 v4, v5, 7, v4
v_subrev_u32 v5, 448, v1
v_min_u32 v5, v5, v1
v_mul_u32_u24 v5, 896, v5
s_waitcnt lgkmcnt(0)
s_mul_i32 s6, s4, {(4 << z) * 57344}
s_add_u32 s52, s{pX}, s6
s_addc_u32 s53, s{pX+1}, 0
s_mov_b32 s54, {(4 << z) * 57344}
s_lshl_b32 s6, s51, 9
s_add_u32 s56, s{pW1}, s6
s_addc_u32 s57, s{pW1+1}, 0
s_sub_u32 s58, {WSZ}, s6
s_cmp_ge_u32 s5, 7
s_cselect_b32 s60, s{pCIM}, s{pCRE}
s_cselect_b32 s61, s{pCIM+1}, s{pCRE+1}
s_lshl_b32 s6, s51, 7
s_add_u32 s60, s60, s6
s_addc_u32 s61, s61, 0
s_sub_u32 s62, {MSZ}, s6
s_mul_i32 s6, s51, 229376
s_add_u32 s64, s{pW2}, s6
s_addc_u32 s65, s{pW2+1}, 0
s_sub_u32 s66, s3, s51
s_mul_i32 s66, s66, 229376""")
    if 1:
        PF += L(f"""s_and_b32 s50, s2, 7
s_lshl_b32 s50, s50, 2
s_lshr_b32 s51, s2, 3
s_add_u32 s50, s50, s51
s_mul_i32 s51, s50, {28*PIN}
s_add_u32 s51, s51, {WS_P}
s_add_u32 s68, s{pWS}, s51
s_addc_u32 s69, s{pWS+1}, 0
s_mov_b32 s70, {28*PIN}
s_mov_b32 s71, 0x20000
s_mul_i32 s51, s50, {64*1792}
s_add_u32 s72, s{pOUT}, s51
s_addc_u32 s73, s{pOUT+1}, 0
s_mov_b32 s74, {64*1792}
s_mov_b32 s75, 0x20000
v_lshlrev_b32 v7, 7, v0
s_lshl_b32 s50, s2, 15
v_add_u32 v1, s50, v7
s_mov_b32 s79, 0x20000""")
        k = 8
        npf = 1
        if P["prof"]: PF += L("s_memtime s[84:85]")
        for c in P["pfo"] + ("." if P["prof"] else ""):
            if c == ".":
                PF += L("s_waitcnt vmcnt(0)")
                if P["prof"]: PF += L(f"s_memtime s[{84+2*npf}:{85+2*npf}]"); npf += 1
            if c in "x2":
                for i in range(((4 << z) * 448 + 1023) // 1024 if c == "x" else (nj * 1792 + 1023) // 1024):
                    PF += L(f"v_add_u32 v{k}, {i << 17}, v3\nbuffer_load_dword v{k}, v{k}, {'s[52:55]' if c == 'x' else 's[64:67]'}, 0 offen"); k += 1
            if c == "1":
                for i in range(2):
                    PF += L(f"v_add_u32 v6, {i * 256 * 3584}, v4")
                    for jj in range(nj): PF += L(f"buffer_load_dword v{k}, v6, s[56:59], 0 offen offset:{512*jj}"); k += 1
            if c == "c":
                for jj in range(nj): PF += L(f"buffer_load_dword v{k}, v5, s[60:63], 0 offen offset:{128*jj}"); k += 1
            if c in "ABC":
                for ptr, sz in dict(A=((pW1, WSZ),), B=((pCRE, MSZ), (pCIM, MSZ)), C=((pW2, WSZ),))[c]:
                    PF += L(f"s_mov_b32 s76, s{ptr}\ns_mov_b32 s77, s{ptr+1}\ns_mov_b32 s78, {sz}")
                    PF += L(f"buffer_load_dword v{k}, v1, s[76:79], 0 offen"); k += 1
                    if sz > 1 << 20:
                        PF += L(f"v_add_u32 v{k}, 0x100000, v1\nbuffer_load_dword v{k}, v{k}, s[76:79], 0 offen"); k += 1
            if c == "i":
                PF += L(f"""s_getpc_b64 s[80:81]
L_pc:
s_sub_u32 s80, s80, L_pc-{NAME}_kernel
s_subb_u32 s81, s81, 0
s_mov_b32 s82, L_pf-{NAME}_kernel
s_mov_b32 s83, 0x20000
v_lshrrev_b32 v6, 1, v3
buffer_load_dword v{k}, v6, s[80:83], 0 offen"""); k += 1
            if c in "fF":
                for i in range(max(4 if NO else 0, (28 * PIN + 32767) >> 15)):
                    PF += L(f"v_add_u32 v6, {i << 15}, v7")
                    if NO and i < 4: PF += L(f"buffer_load_dword v{k}, v6, s[72:75], 0 offen"); k += 1
                    if i < (28 * PIN + 32767) >> 15: PF += L(f"buffer_load_dword v{k}, v6, s[68:71], 0 offen"); k += 1
                    if c == "F": PF += L("s_waitcnt vmcnt(0)")
    if P["prof"]:
        PF += L(f"s_waitcnt lgkmcnt(0)\ns_lshl_b32 s50, s2, 6\ns_add_u32 s50, s50, {WS_DBG + 65536}\nv_mov_b32 v0, s50")
        for i in range(npf): PF += L(f"s_sub_u32 s50, s{84+2*i}, s96\nv_mov_b32 v4, s50\nglobal_store_dword v0, v4, {S(pWS,2)} offset:{4*i}")
    PF += L("L_pe:\ns_endpgm")
    txt = [f"; @launch grid=(256,1,1) block=(256,1,1) lds=163840",
           '.amdgcn_target "amdgcn-amd-amdhsa--gfx950"', ".text", f".globl {NAME}_kernel", ".p2align 8",
           f".type {NAME}_kernel,@function", f"{NAME}_kernel:"]
    near = [x.text for x in body + OUT2]
    far = [re.sub(r"\b(L_\w+)", r"\1F", t).replace("@X", "sc1") for t in near[near.index("L_near:"):]]
    txt += [t.replace("@X", P["sfl"]).rstrip() for t in near] + [x.text for x in OUT + MODE + PF] + far
    txt.append(f""".section .rodata,"a"
.p2align 6
.amdhsa_kernel {NAME}_kernel
  .amdhsa_next_free_vgpr 512
  .amdhsa_next_free_sgpr 102
  .amdhsa_accum_offset 256
  .amdhsa_group_segment_fixed_size 0
  .amdhsa_kernarg_size 136
  .amdhsa_user_sgpr_count 2
  .amdhsa_user_sgpr_kernarg_segment_ptr 1
  .amdhsa_system_sgpr_workgroup_id_x 1
.end_amdhsa_kernel""")
    return "\n".join(txt) + "\n", info

if __name__ == "__main__":
    kw = {}
    for a in sys.argv[2:]:
        k, v = a.split("=", 1); kw[k] = eval(v)
    t, info = gen(**kw)
    open(sys.argv[1], "w").write(t)
    print(info)
```

```python
import sys, collections, re
from asmlib import *

NAME = "gated_mix__ssm_conv_s5__dense_activation_mish__prompt"
LOG2E = 1.4426950408889634
EPC = 0x9E3779B9
XSZ, MSZ, WSZ, OSZ = 2048 * 896, 448 * 896, 448 * 3584, 2048 * 1792
WS_E, WS_P, WS_DBG = 4096, 1 << 20, 18 << 20
SL = 16384
XB = 6 * SL; HB = 6 * SL; AB = 7 * SL
GP = 152 * 1024; GT = 153 * 1024; PR = 154 * 1024
sW, sKB, sR, sJ, sROT, sTAG, sWQ = 3, 4, 11, 12, 13, 14, 15
pX, pLRE, pLIM, pBRE, pBIM, pCRE, pCIM, pDT, pDS, pW1, pB1, pW2, pGW, pOUT, pWS = 16, 18, 20, 22, 24, 26, 28, 30, 32, 36, 38, 40, 42, 44, 48
sT0, sT1 = 50, 51
dX, dBR, dBI, dW1, dC, dW2, dE, dPO, dO = 52, 56, 60, 64, 68, 72, 76, 84, 88
sA, sB, sTG1, sXT = 80, 81, 82, 83
vPo = 42
sU, sCNT, sSO, sT3 = 92, 99, 100, 101
sOO = 34
sST = 16
vL, vN, vH = 1, 2, 3
vdX, vdB, vdW1, vdC, vdW2 = 4, 6, 10, 14, 18
vX, vB, vG, vW1, vP, vP2, vXD = 22, 26, 34, 35, 39, 40, 41
cL, cL16, cL32, cL64, cL512, cL1K, cS = 43, 45, 47, 49, 51, 53, 55
vT = 57
accD, dia, xD, Gx, gwf, raw = 64, 80, 88, 96, 104, 108
Bfr, rawb, accS, Wfr, accF = 112, 240, 144, 176, 192
scr = 208
aG, aH = 224, 224
omg = 4
vE0, vE1 = 8, 9
vC = [140] + [22 + i for i in range(1, 8)] + [30, 31, 32, 33, 34, 39, 40, 41]
Eg, gR = 112, 80
F2, RING = 64, 10
vW2 = [139, 169, 170]
vHr, vGw, vHw, vEr, vAw, vAr, vLin, vOut = 136, 137, 138, 141, 142, 143, 0, 175
sK1, sK3 = 34, 36
stg, acc2, Sel = 176, 192, 248
vTag, vL4, vMo = 186, 187, 190
inb = [80 + 10 * i for i in range(6)]

DEF = dict(npre=7, s9=1, qa=3, bx=1, hb=5, xg=1, xn='0122333', swp=(), isp=(5, 13, 2), d=4, la=12, egat=124, echk=140, pld=(47, 71, 95, 119, 144, 161), sel=(70, 94, 118, 142, 166, 168),
           hel=4, sto=(4, 6, 7), nout=2, sfl="", d2=4, bd=5, co=2, ost="", prof=0, dump=None,
           nc=2, pfo=".bB.a.a.w.o.c.c.o.o.o", bud=[(0, 36), (70, 40)], fa=8, co1=4, re=2, egs=1, ndm=999, dsp=(144, 128, 64), rot2=(1, 0, 0, 0))

def gen(**kw):
    P = dict(DEF); P.update(kw)
    d, LA = P["d"], P["la"]
    NO = P["nout"]
    NC = P["nc"]
    PCK = (NC - NO) * 2048
    PFL = PCK + 256 * NC
    PIN = PFL + 128
    M = []
    def e(t, **k):
        nonlocal M
        for x in t.split("\n"):
            if x.strip(): M.append(I(x, **k))
    def L(t, **k): return [I(x, **k) for x in t.split("\n") if x.strip()]
    nst = [0]
    def stamp(custom=False, rt=False):
        if not P["prof"]: return []
        if (P.get("st1") or P.get("st2")) and not custom: return []
        nst[0] += 1
        return [I(f"{'s_memrealtime' if rt or (P.get('amp') and not P.get('ampc')) else 's_memtime'} {S(sST + 2 * (nst[0] - 1), 2)}")]
    def dump(tag):
        if not P["dump"] or P["dump"][0] != tag: return []
        o = [vm0(), lgkm0(), I("s_nop 7"), I("s_nop 7")]
        o += L(f"""s_mul_i32 s{sT0}, s{sR}, 7
s_add_u32 s{sT0}, s{sT0}, s{sJ}
s_lshl_b32 s{sT0}, s{sT0}, 2
s_add_u32 s{sT0}, s{sT0}, s{sW}
s_lshl_b32 s{sT0}, s{sT0}, 15
s_add_u32 s{sT0}, s{sT0}, {WS_DBG}
v_lshlrev_b32 v0, 2, v{vL}
v_add_u32 v0, s{sT0}, v0""")
        for i, r in enumerate(P["dump"][1]):
            o += L(f"global_store_dword v0, {r}, {S(pWS, 2)}\nv_add_u32 v0, 256, v0")
        o += L("s_endpgm")
        return o

    def lin(dst, c, tmp):
        if c[0] == 4 * c[2] and not c[3]:
            terms = [(f"s_mov_b32 @, s{sR}", c[2]), (f"s_mov_b32 @, s{sJ}", c[1])]
        else:
            terms = [(f"s_lshr_b32 @, s{sR}, 2", c[0]), (f"s_mov_b32 @, s{sJ}", c[1]), (f"s_and_b32 @, s{sR}, 3", c[2]),
                     (f"s_bfe_u32 @, s{sR}, 0x10001", c[3])]
        o, first = [], True
        for t, m in terms:
            if not m: continue
            r_ = f"s{dst}" if first else f"s{tmp}"
            if not first and m == 1 and t.startswith("s_mov"): o.append(f"s_add_u32 s{dst}, s{dst}, {t.split()[-1]}"); continue
            o.append(t.replace("@", r_))
            if m > 1: o.append(f"s_mul_i32 {r_}, {r_}, {m}")
            if not first: o.append(f"s_add_u32 s{dst}, s{dst}, {r_}")
            first = False
        return "\n".join(o) if o else f"s_mov_b32 s{dst}, 0"
    if P["prof"]: e("s_memrealtime s[98:99]\ns_memtime s[96:97]")
    e(f"""s_cmp_ge_u32 s2, 256
s_cbranch_scc1 L_exit
s_load_dwordx16 s[16:31], s[0:1], 0
s_load_dwordx16 s[32:47], s[0:1], 64
s_load_dwordx2 s[48:49], s[0:1], 128""")
    t0, t1, t2, t3, t4, t5 = range(vT, vT + 6)
    e(f"""s_getpc_b64 s[50:51]
L_pc0:
s_lshr_b32 s{sJ}, s2, 5
s_sub_u32 s{sJ}, s{sJ}, 1
s_cbranch_scc0 L_main
v_lshlrev_b32 v{vT}, 7, v0
v_min_u32 v{vT}, L_pe-L_pc0, v{vT}
global_load_dword v191, v{vT}, s[50:51]
s_branch L_pf
L_main:
v_lshrrev_b32 v{t5}, 6, v0
v_and_b32 v{vL}, 63, v0
s_and_b32 s{sT0}, 7, s2
v_readfirstlane_b32 s{sW}, v{t5}
v_lshrrev_b32 v{t5}, 4, v{vL}
v_lshrrev_b32 v{t0}, 3, v{vL}
v_xor_b32 v{t1}, v{t5}, v{vL}
v_lshrrev_b32 v{vH}, 5, v{vL}
v_and_b32 v{t1}, 7, v{t1}
v_and_b32 v{t4}, 3, v{t0}
v_lshlrev_b32 v{t1}, 4, v{t1}
s_add_u32 s{sROT}, s{sT0}, s{sJ}
s_cmp_ge_u32 s{sROT}, 7
s_cselect_b32 s{sT1}, 7, 0
s_sub_u32 s{sROT}, s{sROT}, s{sT1}
s_bfe_u32 s{sT1}, s2, 0x20003
s_lshl2_add_u32 s{sR}, s{sT0}, s{sT1}
s_lshl_b32 s{sKB}, s{sROT}, 7
s_lshl3_add_u32 s{sT0}, s{sR}, s{sW}
s_mul_i32 s{dX}, s{sT0}, 7168
v_lshl_add_u32 v{t4}, v{vH}, 5, v{t4}
s_sub_u32 s{dX+2}, {XSZ}, s{dX}
v_mul_u32_u24 v{t4}, 896, v{t4}
s_mov_b32 s{dX+3}, 0x20000
s_lshl_b32 s{sSO}, s{sW}, 11
v_add_u32 v{vdX}, v{t4}, v{t1}""")

    D = []
    def dgrp(tok, pre, lines):
        for i, t in enumerate(lines):
            D.append([(L(pre) if i == 0 else []) + [I(t, tok=tok if i == len(lines) - 1 else None)], tok])
    NPRE = P["npre"]
    s2slot, s2bar = [3, 4, 5, 0, 1, 9, 2][:NPRE] if NPRE == 7 else [3, 4, 5, 0, 1, 2], {}
    free = [(1, 6), (P["qa"], 8), (P["qa"], 7)] + [(q + 2, x) for q, x in enumerate(s2slot)] + ([(1, 9)] if NPRE == 6 and P["s9"] else [])
    for q in range(NPRE, 21):
        b_, x = min((f_ for f_ in free if q % 3 or f_[1] < 8), key=lambda f_: (f_[0], -f_[1]))
        free.remove((b_, x)); free.append((q + 2, x)); s2slot.append(x); s2bar[q] = b_
    def slot(g): return g % 6 if g < 21 else s2slot[g - 21]
    for s in range(7):
        dgrp(("x", s), f"s_add_u32 m0, s{sSO}, {XB + s * 8192}",
             [f"buffer_load_dwordx4 v{vdX+i}, {S(dX,4)}, s{sKB+s} offen offset:{1024*i} lds" for i in range(2)])
        dgrp(("g", s), f"s_add_u32 m0, s{sWQ}, {slot(s) * SL}",
             [f"buffer_load_dwordx4 v{vdB+i}, {S(dBI if i & 1 else dBR,4)}, s{sKB+s} offen offset:{1024*i} lds" for i in range(4)])
    for y in range(14):
        so = f"s_mul_i32 s{sSO}, s{sKB+y//2}, 1792" if y % 2 == 0 else f"s_add_u32 s{sSO}, s{sSO}, 114688"
        dgrp(("g", 7 + y), f"s_add_u32 m0, s{sWQ}, {slot(7 + y) * SL}\n{so}",
             [f"buffer_load_dwordx4 v{vdW1+i}, {S(dW1,4)}, s{sSO} offen offset:{1024*i} lds" for i in range(4)])
    for q in range(21):
        u, k = q // 3, q % 3
        so = (f"s_mul_i32 s{sSO}, s{sU+u}, 448", f"s_mov_b32 s{sSO}, s{sU+u}", f"s_add_u32 s{sSO}, s{sSO}, 114688")[k]
        vd, dd = (vdC, dC) if k == 0 else (vdW2, dW2)
        dgrp(("g", 21 + q), f"s_add_u32 m0, s{sWQ}, {slot(21 + q) * SL}\n{so}",
             [f"buffer_load_dwordx4 v{vd+i}, {S(dd,4)}, s{sSO} offen offset:{1024*i} lds" for i in range(4)])
    NS01 = 42 + 56

    M.append(D[0][0][0]); M.append(lgkm0())
    if P["prof"]: e("s_mov_b32 s46, s98\ns_mov_b32 s47, s96")
    if P.get("st0"): e("s_memtime s[34:35]")
    e(f"s_add_u32 s{dX}, s{dX}, s{pX}\ns_addc_u32 s{dX+1}, s{pX+1}, 0")
    M.append(D[0][0][1])
    e(f"""v_xor_b32 v{t2}, 64, v{t1}
s_lshl_b32 s{sWQ}, s{sW}, 12
v_add_u32 v{vdX+1}, v{t4}, v{t2}
s_lshl2_add_u32 s{sT1}, s{sJ}, s{sW}
v_add_u32 v{vdX+1}, {3584-1024}, v{vdX+1}""")
    M += D[1][0]
    M.append(D[2][0][0])
    e(f"""s_mul_i32 s{dBR}, s{sT1}, 14336
v_mul_u32_u24 v{t4}, 896, v{t0}
s_sub_u32 s{dBR+2}, {MSZ}, s{dBR}
s_mov_b32 s{dBR+3}, 0x20000
s_add_u32 s{dBI}, s{dBR}, s{pBIM}
s_addc_u32 s{dBI+1}, s{pBIM+1}, 0
s_add_u32 s{dBR}, s{dBR}, s{pBRE}
s_addc_u32 s{dBR+1}, s{pBRE+1}, 0
v_add_u32 v{vdB}, v{t4}, v{t1}""")
    M.append(D[2][0][1])
    e(f"""s_add_u32 s{dBI+2}, s{dBR+2}, 1024
s_mov_b32 s{dBI+3}, 0x20000
s_sub_u32 s{dBI}, s{dBI}, 1024
s_subb_u32 s{dBI+1}, s{dBI+1}, 0
v_add_u32 v{vdB+1}, v{t4}, v{t2}
v_add_u32 v{vdB+2}, {7168-2048}, v{vdB}""")
    M += D[3][0]
    e(f"""s_load_dword s{sTAG}, {S(pWS, 2)}, 0
v_add_u32 v{vdB+3}, {7168-2048}, v{vdB+1}
v_and_b32 v{vN}, 31, v{vL}
v_and_b32 v{t3}, 1, v{t5}
v_lshlrev_b32 v{t3}, 2, v{t3}
v_xor_b32 v{t3}, v{t3}, v{vL}
v_and_b32 v{t3}, 7, v{t3}
v_lshlrev_b32 v{t3}, 4, v{t3}""")
    M += D[4][0]
    e(f"""v_add_u32 v{vdW2}, v{t4}, v{t3}
v_mul_u32_u24 v{t4}, 3584, v{t0}
v_add_u32 v{vdW1}, v{t4}, v{t3}
v_add_u32 v{t0}, s{sROT}, v{t0}
v_subrev_u32 v{t1}, 7, v{t0}
v_min_u32 v{t0}, v{t0}, v{t1}
v_and_b32 v{t1}, 7, v{vL}
v_lshlrev_b32 v{t4}, 2, v{t1}
v_lshl_add_u32 v{t0}, v{t0}, 7, v{t4}""")
    M += D[5][0]
    e(f"""v_lshl_add_u32 v{t0}, s{sW}, 5, v{t0}
v_lshrrev_b32 v{t2}, 4, v{vN}
v_lshl_add_u32 v{t2}, v{t2}, 3, v{t1}
s_lshl_b32 s{sT0}, s{sT1}, 4
v_add_lshl_u32 v{t2}, v{t2}, s{sT0}, 1
s_lshl_b32 s{sT0}, s{sT1}, 5
v_add_lshl_u32 v{t1}, v{vN}, s{sT0}, 2
s_and_b32 s{sT3}, s{sW}, 1
s_lshl1_add_u32 s{sT0}, s{sJ}, s{sT3}
s_lshl_b32 s{sT0}, s{sT0}, 5
v_add_lshl_u32 v{t3}, v{vN}, s{sT0}, 1
s_lshr_b32 s{sT0}, s{sWQ}, 3""")
    if P.get("st0"): e("s_memtime s[80:81]")
    par = [L(f"s_add_u32 m0, s{sT0}, {PR}\nglobal_load_ushort v{raw}, v{t2}, {S(pLRE,2)}"),
           L(f"global_load_lds_dword v{t0}, {S(pGW,2)}\ns_add_u32 m0, s{sT0}, {PR + 256}"),
           L(f"global_load_ushort v{raw+1}, v{t2}, {S(pLIM,2)}"),
           L(f"global_load_lds_dword v{t1}, {S(pB1,2)}", tok="par") + D[6][0][:1],
           L(f"global_load_ushort v{raw+2}, v{t2}, {S(pDT,2)}"),
           L(f"global_load_ushort v{raw+3}, v{t3}, {S(pDS,2)}")]
    ahead = [D[n][0][-1:] + (D[n + 1][0][:-1] if n + 1 < LA else []) for n in range(6, LA)]
    head, M = M, []
    for s in range(1, 7):
        e(f"""s_add_u32 s{sKB+s}, s{sKB+s-1}, 128
s_cmp_ge_u32 s{sKB+s}, 896
s_cselect_b32 s{sKB+s}, 0, s{sKB+s}""")
    for dd in (dW1, dC, dW2, dE, dPO, dO):
        e(f"s_mov_b32 s{dd+3}, 0x20000")
    e(f"""s_lshl_b32 s{dW1}, s{sT1}, 7
s_sub_u32 s{dW1+2}, {WSZ}, s{dW1}
s_add_u32 s{dW1}, s{dW1}, s{pW1}
s_addc_u32 s{dW1+1}, s{pW1+1}, 0
s_mul_i32 s{dC}, s{sT3}, 28672
s_lshl_b32 s{dC+1}, s{sJ}, 7
s_add_u32 s{dC}, s{dC}, s{dC+1}
s_sub_u32 s{dC+2}, {MSZ}, s{dC}
s_cmp_ge_u32 s{sW}, 2
s_cselect_b32 s{pCRE}, s{pCIM}, s{pCRE}
s_cselect_b32 s{pCRE+1}, s{pCIM+1}, s{pCRE+1}
s_add_u32 s{dC}, s{dC}, s{pCRE}
s_addc_u32 s{dC+1}, s{pCRE+1}, 0
s_lshl_b32 s{dW2}, s{sJ}, 3
s_add_u32 s{dW2}, s{dW2}, s{sW}
s_mul_i32 s{dW2}, s{dW2}, 28672
s_sub_u32 s{dW2+2}, {WSZ}, s{dW2}
s_add_u32 s{dW2}, s{dW2}, s{pW2}
s_addc_u32 s{dW2+1}, s{pW2+1}, 0
s_lshl_b32 s{dE}, s{sT1}, 12
s_add_u32 s{dE}, s{dE}, {WS_E}
s_add_u32 s{dE}, s{dE}, s{pWS}
s_addc_u32 s{dE+1}, s{pWS+1}, 0
s_mov_b32 s{dE+2}, 4096
s_mul_i32 s{dPO}, s{sR}, 28
s_add_u32 s{dPO}, s{dPO}, s{sW}
s_mul_i32 s{dPO}, s{dPO}, {PIN}
s_add_u32 s{dPO}, s{dPO}, {WS_P}
s_add_u32 s{dPO}, s{dPO}, s{pWS}
s_addc_u32 s{dPO+1}, s{pWS+1}, 0
s_mov_b32 s{dPO+2}, {25*PIN}
s_lshr_b32 s{sCNT}, s{sW}, 1
s_lshl_b32 s{dO}, s{sR}, 2
s_add_u32 s{dO}, s{dO}, s{sCNT}
s_mul_i32 s{dO}, s{dO}, {16*1792}
s_lshl_b32 s{dO+1}, s{sT3}, 7
s_add_u32 s{dO}, s{dO}, s{dO+1}
s_sub_u32 s{dO+2}, {OSZ}, s{dO}
s_add_u32 s{dO}, s{dO}, s{pOUT}
s_addc_u32 s{dO+1}, s{pOUT+1}, 0
{lin(sU, P["rot2"], sT1)}
s_mul_i32 s{sT1}, s{sU}, 43
s_lshr_b32 s{sT1}, s{sT1}, 8
s_mul_i32 s{sT1}, s{sT1}, 6
s_sub_u32 s{sT1}, s{sU}, s{sT1}""")
    for s in range(6):
        e(f"""s_add_u32 s{sU+s}, s{sT1}, s{sJ}
s_add_u32 s{sU+s}, s{sU+s}, 1
s_cmp_ge_u32 s{sU+s}, 7
s_cselect_b32 s{sU+6}, 7, 0
s_sub_u32 s{sU+s}, s{sU+s}, s{sU+6}
s_lshl_b32 s{sU+s}, s{sU+s}, 7""")
        if s < 5:
            e(f"""s_add_u32 s{sT1}, s{sT1}, 1
s_cmp_ge_u32 s{sT1}, 6
s_cselect_b32 s{sT1}, 0, s{sT1}""")
    for bit, a_, b_ in P["swp"]:
        e(f"""s_bitcmp1_b32 s{sR}, {bit}
s_cselect_b32 s{sU+6}, s{sU+b_}, s{sU+a_}
s_cselect_b32 s{sU+b_}, s{sU+a_}, s{sU+b_}
s_mov_b32 s{sU+a_}, s{sU+6}""")
    e(f"s_lshl_b32 s{sU+6}, s{sJ}, 7")
    for i in range(1, 4):
        e(f"v_add_u32 v{vdW1+i}, {i*(28672-1024)}, v{vdW1}\nv_add_u32 v{vdW2+i}, {i*6144}, v{vdW2}")
    e(f"""v_mov_b32 v{vdC}, v{vdB}
v_add_u32 v{vdC+1}, 6144, v{vdB+1}
v_add_u32 v{vdC+2}, {2*6144}, v{vdB}
v_add_u32 v{vdC+3}, {3*6144}, v{vdB+1}
v_lshrrev_b32 v{t0}, 1, v{vN}
v_xor_b32 v{t0}, v{t0}, v{vH}
v_and_b32 v{t0}, 7, v{t0}
v_lshlrev_b32 v{t0}, 4, v{t0}
v_lshl_add_u32 v{t0}, v{vN}, 7, v{t0}""")
    for k in range(4):
        e(f"""v_xor_b32 v{t1}, {32*k}, v{t0}
v_add_u32 v{vX+k}, {XB}, v{t1}
v_add_u32 v{vB+k}, s{sWQ}, v{t1}
v_add_u32 v{vB+4+k}, 0x10000, v{vB+k}""")
    e(f"""s_lshl_b32 s{sT1}, s{sW}, 5
v_xor_b32 v{vG}, s{sT1}, v{vX}
s_add_u32 s{sT0}, s{sT0}, {PR}
v_lshl_add_u32 v{vP}, v{vH}, 4, s{sT0}
v_lshl_add_u32 v{vP2}, v{vH}, 5, s{sT0}
s_sub_u32 s{sT0}, s{sJ}, s{sROT}
s_cselect_b32 s{sT1}, 7, 0
s_add_u32 s{sT0}, s{sT0}, s{sT1}
s_lshl_b32 s{sT0}, s{sT0}, 1
s_add_u32 s{sT0}, s{sT0}, s{sCNT}
s_lshl_b32 s{sT0}, s{sT0}, 12
s_lshl_b32 s{sT1}, s{sT3}, 6
v_xor_b32 v{vXD}, s{sT1}, v{vX}
v_add_u32 v{vXD}, s{sT0}, v{vXD}
v_xor_b32 v{vXD+1}, 32, v{vXD}
v_bfe_u32 v{t0}, v{vL}, 2, 2
v_lshl_add_u32 v{t0}, v{vH}, 3, v{t0}
v_lshlrev_b32 v{t0}, 7, v{t0}
v_bfe_u32 v{t1}, v{vL}, 3, 1
v_lshl_add_u32 v{t0}, v{t1}, 6, v{t0}
v_and_b32 v{t1}, 1, v{vL}
v_lshl_add_u32 v{t0}, v{t1}, 5, v{t0}
v_and_b32 v{t1}, 16, v{vL}
v_add_u32 v{t0}, v{t0}, v{t1}
v_and_b32 v{t1}, 2, v{vL}
v_lshl_add_u32 v{t0}, v{t1}, 2, v{t0}
v_add_u32 v{vW1}, s{sWQ}, v{t0}
v_xor_b32 v{vW1+1}, 64, v{vW1}
v_add_u32 v{vW1+2}, 0x10000, v{vW1}
v_add_u32 v{vW1+3}, 0x10000, v{vW1+1}
v_lshlrev_b32 v{vLin}, 4, v{vL}
s_add_u32 s{sT1}, s{sWQ}, {AB}
v_add_u32 v{vAw}, s{sT1}, v{vLin}
v_lshl_add_u32 v{vEr}, v{vN}, 2, s{sT1}
v_lshl_add_u32 v{vEr}, v{vH}, 11, v{vEr}
s_lshl_b32 s{sT1}, s{sCNT}, 14
s_add_u32 s{sT1}, s{sT1}, {AB}
v_add_u32 v{vAr}, s{sT1}, v{vLin}
v_bfe_u32 v{t0}, v{vL}, 2, 2
v_lshl_add_u32 v{t1}, v{vH}, 3, v{t0}
v_lshlrev_b32 v{t1}, 7, v{t1}
v_and_b32 v{t2}, 1, v{vL}
v_lshl_add_u32 v{t1}, v{t2}, 6, v{t1}
v_and_b32 v{t2}, 2, v{vL}
v_lshl_add_u32 v{t1}, v{t2}, 2, v{t1}
v_lshlrev_b32 v{t2}, 4, v{t0}
v_and_b32 v{t3}, 16, v{vL}
v_xor_b32 v{t2}, v{t2}, v{t3}
s_lshl_b32 s{sT1}, s{sCNT}, 5
v_xor_b32 v{t2}, s{sT1}, v{t2}
v_add_u32 v{t1}, v{t1}, v{t2}
v_add_u32 v{vHr}, {HB}, v{t1}
v_lshl_add_u32 v{t0}, v{vH}, 4, v{t0}
v_lshlrev_b32 v{t0}, 7, v{t0}
v_bfe_u32 v{t1}, v{vL}, 3, 1
v_xor_b32 v{t1}, s{sT3}, v{t1}
v_lshl_add_u32 v{t0}, v{t1}, 6, v{t0}
v_lshl_add_u32 v{t0}, v{t3}, 1, v{t0}
v_and_b32 v{t1}, 3, v{vL}
v_lshl_add_u32 v{vW2[0]}, v{t1}, 3, v{t0}
v_lshlrev_b32 v{t0}, 4, v{t1}
v_lshl_add_u32 v{t0}, v{vN}, 7, v{t0}
v_lshl_add_u32 v{t0}, v{vH}, 6, v{t0}
s_add_u32 s{sT1}, s{sWQ}, {HB}
v_add_u32 v{vHw}, s{sT1}, v{t0}
v_bfe_u32 v{t0}, v{vN}, 2, 1
v_lshrrev_b32 v{t2}, 3, v{vN}
v_lshl_add_u32 v{t0}, v{t0}, 3, v{t2}
v_lshl_add_u32 v{t0}, v{t0}, 2, v{t1}
v_lshlrev_b32 v{t0}, 2, v{t0}
v_add_u32 v{vGw}, {GT}, v{t0}
v_bfe_u32 v{t0}, v{vN}, 1, 3
v_lshlrev_b32 v{t0}, 4, v{t0}
v_lshl_add_u32 v{t0}, v{vN}, 7, v{t0}
v_lshl_add_u32 v{t0}, v{vH}, 13, v{t0}
v_lshl_add_u32 v{vC[0]}, s{sT3}, 12, v{t0}
s_mov_b32 s{sCNT}, 0""")
    def scc_dead(i):
        for x in M[i:]:
            if x.op in ("s_addc_u32", "s_subb_u32", "s_cselect_b32"): return False
            if x.op.startswith("s_") and x.op not in ("s_mov_b32", "s_mul_i32", "s_movk_i32"): return True
        return True
    todo = [(P["isp"][0] * i, x) for i, x in enumerate(par)]
    todo += [(todo[-1][0] + P["isp"][0] + P["isp"][1] * i, x) for i, x in enumerate(ahead[:len(ahead) - P["isp"][2]])]
    assert all(x.kind != "valu" for x in M[:P["isp"][0] * 6 + 3])
    for i, x in enumerate(M):
        if todo and todo[0][0] <= i and scc_dead(i): head += todo.pop(0)[1]
        head.append(x)
    assert not todo
    M = head
    if P.get("st0"): e("s_memtime s[82:83]")
    for x in ahead[len(ahead) - P["isp"][2]:]: M += x
    if P["prof"]: e("s_mov_b32 s44, 0\ns_mov_b32 s45, 0")
    M.append(lgkm0())
    if P.get("st0"): e("s_mov_b32 s16, s34\ns_mov_b32 s18, s80\ns_mov_b32 s20, s82"); nst[0] += 3; M += stamp(True)
    e(f"s_add_u32 s{sTAG}, s{sTAG}, {EPC}\ns_mov_b32 s{sK1}, {fb(LOG2E)}\ns_mov_b32 s{sK3}, {fb(0.7071067811865476)}")
    M += stamp()

    mf, Bq, Rq, used = [], [], [], {}
    def mfma(dst, a, b, c, exp=None):
        for r in (a, b): used[r] = len(mf)
        mf.append(I(f"v_mfma_f32_32x32x16_bf16 {dst}, {a}, {b}, {c}", exp=exp)); return len(mf) - 1
    def rd(k, frag, bar, ins):
        k = max(-1, k)
        Rq.append(At(ins, min(k, max(used.get(frag, -2) + 1, k - P["re"])), k, after=[bar]))
    def xa(s, ks, rt): return A(((s * 4 + ks) * 2 + rt) * 4, 4)
    tneed, tlast = {}, {}
    nb = 0
    for s in range(7):
        k0 = len(mf)
        tneed[("x", s)] = tneed[("g", s)] = k0 - d
        Bq.append(At([need(("g", s)), I("s_barrier")], max(-1, k0 - d), max(-1, k0 - d), name=s))
        wn, of = (0, slot(s) * SL) if slot(s) < 4 else (4, slot(s) * SL - 65536)
        for ks in range(4):
            b = V(Bfr + 4 * (nb % 4), 4); nb += 1
            k = len(mf)
            rd(k - d, b, s, I(f"ds_read_b128 {b}, v{vB+wn+ks} offset:{of}", ver=("B", s, ks)))
            for rt in range(2):
                rd(k + rt - d, None, s, I(f"ds_read_b128 {xa(s,ks,rt)}, v{vX+ks} offset:{s*8192+rt*4096}", ver=("x", s, ks, rt)))
                acc = V(accS + 16 * rt, 16)
                mfma(acc, xa(s, ks, rt), b, acc if s or ks else "0", [(b, ("B", s, ks)), (xa(s, ks, rt), ("x", s, ks, rt))])
        tlast[s] = len(mf) - 1
        k = len(mf)
        rd(k - d, V(gwf, 4), s, ([need("par")] if s == 0 else []) + [I(f"ds_read_b128 {V(gwf,4)}, v{vP} offset:{32*s}", ver=("gw", s))])
        for rt in range(2):
            g = V(Gx + 4 * rt, 4)
            rd(k + rt - d, g, s, I(f"ds_read_b128 {g}, v{vG} offset:{s*8192+rt*4096}", ver=("gx", s, rt)))
            acc = A(aG + 16 * rt, 16)
            mfma(acc, V(gwf, 4), g, acc if s else "0", [(V(gwf, 4), ("gw", s)), (g, ("gx", s, rt))])
    for kk in range(2):
        k = len(mf)
        rd(k - d, None, 6, I(f"ds_read_b128 {V(xD+4*kk,4)}, v{vXD+kk}", ver=("xd", kk), tok=("xd", kk)))
        mfma(V(accD, 16), V(xD + 4 * kk, 4), V(dia + 4 * kk, 4), V(accD, 16) if kk else "0",
             [(V(xD + 4 * kk, 4), ("xd", kk)), (V(dia + 4 * kk, 4), "dia")])
    S1 = len(mf)
    nw = 0
    for y in range(14):
        g = 7 + y
        tneed[("g", g)] = len(mf) - d - 1
        Bq.append(At(need(("g", g)), len(mf) - d - 1, len(mf) - d - 1, name=g))
        wn, of = (0, slot(g) * SL) if slot(g) < 4 else (2, slot(g) * SL - 65536)
        for k2 in range(2):
            s, ks = y // 2, 2 * (y % 2) + k2
            for ft in range(2):
                wr = Wfr + 4 * (nw % 4); nw += 1
                k = len(mf)
                for ee in range(2):
                    rd(k - d - 1 + ee, V(wr, 4), g, I(f"ds_read_b64_tr_b16 {V(wr+2*ee,2)}, v{vW1+wn+ft} offset:{of+(16*k2+4*ee)*128}", ver=("W", y, k2, ft)))
                for rt in (1, 0):
                    acc = V(accF + 32 * ft + 16 * rt, 16)
                    c = acc if (y or k2) else V(accF + 32 * ft, 16)
                    ex = [(V(wr, 4), ("W", y, k2, ft)), (xa(s, ks, rt), ("x", s, ks, rt))]
                    if not (y or k2): ex.append((c, "bias"))
                    mfma(acc, V(wr, 4), xa(s, ks, rt), c, ex)
        tlast[g] = len(mf) - 1
    NM1 = len(mf)
    ts, prev, n = [], -d - 10, 0
    for s in range(7):
        t = tneed[("g", s)]
        ts += [prev + (t - prev) * (i + 1) / 6 for i in range(6)]; prev = t
    for g in range(7, 21):
        t = tneed[("g", g)]
        ts += [prev + (t - prev) * (i + 1) / 4 for i in range(4)]; prev = t
    vEg = vT
    egp = f"s_add_u32 m0, s{sWQ}, {AB}"
    gl = [f"buffer_load_dwordx4 v{vEg}, {S(dE,4)}, 0 offen offset:{1024*i} sc1 lds" for i in range(4)]
    nd, last, Dq, shift = LA, -1, [], 0
    def dput(ins, p, after=()):
        if Dq: Dq[-1].ins += ins[:-1]; ins = ins[-1:]
        Dq.append(At(list(ins), p - 1, p, after=after))
    while nd - LA < len(ts):
        p = max(int(ts[nd - LA] + shift) + 1, last, 0)
        tok = D[nd][1]
        if tok[0] == "g" and tok[1] >= 6: p = max(p, tlast[tok[1] - 6] + 1)
        if p >= P["egat"] and not shift and len(D[nd][0]) > 1:
            for i in range(4): dput((L(egp) if i == 0 else []) + [I(gl[i], tok="eg" if i == 3 else None)], p + P["egs"] * i, ["eg"])
            shift = P["egs"] * 4
            continue
        if p >= NM1 or nd >= P["ndm"]: break
        dput(D[nd][0], p); last = p; nd += 1

    F = []
    def f(t, **k): F.extend(L(t, **k))
    z0, z1, z2, z3, z4, z5, z6 = range(scr, scr + 7)
    f(f"""s_getreg_b32 s{sXT}, hwreg(HW_REG_XCC_ID, 0, 4)
s_lshl2_add_u32 s{sA}, s{sJ}, {PFL}
s_add_u32 s{sXT}, s{sXT}, s{sTAG}
v_mov_b32 v{z0}, s{sXT}
buffer_store_dword v{z0}, off, {S(dPO,4)}, s{sA} sc1""", at=P["hel"])
    f(f"""v_lshlrev_b32 v{raw+2}, 16, v{raw+2}
v_mul_f32 v{raw+2}, {fb(LOG2E)}, v{raw+2}
v_exp_f32 v{raw+2}, v{raw+2}
v_lshlrev_b32 v{raw}, 16, v{raw}
v_lshlrev_b32 v{raw+1}, 16, v{raw+1}
v_cvt_pk_bf16_f32 v{raw+2}, v{raw+2}, v{raw+2}
v_lshlrev_b32 v{z0}, 28, v{vL}
v_and_b32 v{z0}, 0x80000000, v{z0}
v_lshlrev_b32 v{raw+2}, 16, v{raw+2}
v_xor_b32 v{raw+1}, v{z0}, v{raw+1}
v_xor_b32 v{raw+1}, 0x80000000, v{raw+1}
v_xor_b32 v{z0}, 2.0, v{z0}
v_mul_f32 v{z1}, v{raw+2}, v{raw}
v_mul_f32 v{z2}, v{raw+2}, v{raw+1}
v_mul_f32 v{z1}, {fb(LOG2E)}, v{z1}
v_mul_f32 v{z2}, 0.15915494, v{z2}
v_exp_f32 v{z1}, v{z1}
v_rndne_f32 v{z3}, v{z2}
v_sub_f32 v{z2}, v{z2}, v{z3}
v_cos_f32 v{z3}, v{z2}
v_sin_f32 v{z4}, v{z2}
v_mul_f32 v{z5}, v{raw}, v{raw}
v_fmac_f32 v{z5}, v{raw+1}, v{raw+1}
v_rcp_f32 v{z5}, v{z5}
v_mul_f32 v{cL}, v{z3}, v{z1}
v_mul_f32 v{cL+1}, v{z4}, v{z1}
v_mul_f32 v{z5}, v{z5}, v{z0}
v_add_f32 v{z1}, -1.0, v{cL}
v_mul_f32 v{z2}, v{z1}, v{raw}
v_fmac_f32 v{z2}, v{cL+1}, v{raw+1}
v_mul_f32 v{cS}, v{z2}, v{z5}
v_mul_f32 v{z2}, v{cL+1}, v{raw}
v_fma_f32 v{z2}, -v{z1}, v{raw+1}, v{z2}
v_mul_f32 v{cS+1}, v{z2}, v{z5}""", at=P["fa"])
    def sq(dst, src):
        f(f"""v_mul_f32 v{z6}, v{src+1}, v{src+1}
v_add_f32 v{z5}, v{src}, v{src}
v_fma_f32 v{dst}, v{src}, v{src}, -v{z6}
v_mul_f32 v{dst+1}, v{z5}, v{src+1}""")
    sq(z0, cL); sq(z0, z0); sq(z0, z0); sq(cL16, z0); sq(cL32, cL16); sq(cL64, cL32)
    sq(z0, cL64); sq(z0, z0); sq(cL512, z0); sq(cL1K, cL512)
    f(f"""v_and_b32 v{z0}, 1, v{vL}
v_lshlrev_b32 v{z0}, 4, v{z0}
v_lshlrev_b32 v{z0}, v{z0}, v{raw+3}
v_bfe_u32 v{z1}, v{vL}, 1, 2
v_bfe_u32 v{z2}, v{vL}, 4, 1
v_lshl_add_u32 v{z1}, v{z2}, 2, v{z1}
v_bfe_u32 v{z2}, v{vL}, 3, 1
v_xor_b32 v{z2}, v{z2}, v{vH}
v_lshl_add_u32 v{z1}, v{z2}, 3, v{z1}""")
    for i in range(4):
        f(f"ds_read_b128 {V(rawb+4*i,4)}, v{vP2} offset:{256+64*(i>>1)+16*(i&1)}")
    for i in range(8):
        f(f"v_cmp_eq_u32 vcc, {i}, v{z1}")
        f(f"v_lshlrev_b32 v{accF+32*(i>>2)+4*(i&3)}, 16, v{rawb+2*i}", ver="bias")
        f(f"v_and_b32 v{accF+32*(i>>2)+4*(i&3)+1}, 0xffff0000, v{rawb+2*i}", ver="bias")
        f(f"v_cndmask_b32 v{dia+i}, 0, v{z0}", ver="dia")
        f(f"v_lshlrev_b32 v{accF+32*(i>>2)+4*(i&3)+2}, 16, v{rawb+2*i+1}", ver="bias")
        f(f"v_and_b32 v{accF+32*(i>>2)+4*(i&3)+3}, 0xffff0000, v{rawb+2*i+1}", ver="bias")
    NFA = len(F)

    DPP = "row_ror:8 row_mask:0xf bank_mask:0xf"
    def cm1(dst, m, zz, add): return f"v_fma_f32 v{dst}, v{m}, v{zz}, {add}"
    def cm2(dst, m, zz, neg=""): return f"v_fmac_f32_dpp v{dst}, v{zz}, {neg}v{m+1} {DPP}"
    ea, eb = [vT, vT + 1], [vT + 2, vT + 3]
    pa, pb = accS, accS + 16
    for q in range(1, 16):
        da, db = ea[q & 1], eb[q & 1]
        f("\n".join([cm1(da, cL, pa, f"v{accS+q}"), cm1(db, cL, pb, f"v{accS+16+q}"), cm2(da, cL, pa), cm2(db, cL, pb)]),
          at=S1 - 1)
        pa, pb = da, db
    e0, e32, elo, ehi = pa, vT, vT + 4, vT + 5
    f(f"""v_lshlrev_b32 v{vT+6}, 4, v{vN}
s_lshl_b32 s{sT0}, s{sW}, 2
{cm1(elo, cL16, e0, f'v{pb}')}
{cm2(elo, cL16, e0)}
s_add_u32 s{sT0}, s{sT0}, {GP}
v_mov_b32 v{ehi}, v{elo}
v_add_u32 v{vT+2}, s{sT0}, v{vT+6}
s_sub_u32 s{sT1}, 31, s{sR}
v_permlane32_swap_b32 v{elo}, v{ehi}
s_lshl_b32 s{sT1}, s{sT1}, 7
v_lshlrev_b32 v{vE1}, 3, v{vN}
{cm1(vE0, cL32, elo, f'v{ehi}')}
{cm2(vE0, cL32, elo)}
v_bfe_u32 v{vE1}, s{sTAG}, v{vE1}, 8
s_movk_i32 s{sB}, 0xff00
v_lshl_add_u32 v{vT}, v{vN}, 2, s{sT1}
v_and_or_b32 v{vE0}, v{vE0}, s{sB}, v{vE1}
s_add_u32 s{sT1}, s{sT1}, 128
buffer_store_dword v{vE0}, v{vT}, {S(dE,4)}, 0 offen sc1
ds_write_b32 v{vT+2}, a{aG}
ds_write_b32 v{vT+2}, a{aG+16} offset:512""")
    F[-1].tok = "gpw"
    f(f"""v_lshl_add_u32 v{vEg}, v{vL}, 4, s{sT1}
v_add_u32 v{vT+6}, {GP}, v{vT+6}""")
    F.append([needlg("gpw"), I("s_barrier")]); F[-1][0].nm = "eg"
    g0 = Eg + 16
    f(f"""ds_read_b128 {V(g0,4)}, v{vT+6}
ds_read_b128 {V(g0+4,4)}, v{vT+6} offset:512""")
    def scale(lo, hi):
        for q in range(lo, hi):
            t = vT + 2 + (q & 1)
            f(f"v_mul_f32_dpp v{t}, v{accS+q}, v{cS+1} {DPP}\nv_fma_f32 v{accS+q}, v{accS+q}, v{cS}, v{t}")
    scale(0, 8)
    f(f"""v_add_f32 v{g0}, v{g0}, v{g0+1}
v_add_f32 v{g0+4}, v{g0+4}, v{g0+5}
v_add_f32 v{g0+2}, v{g0+2}, v{g0+3}
v_add_f32 v{g0+6}, v{g0+6}, v{g0+7}
v_add_f32 v{g0}, v{g0}, v{g0+2}
v_add_f32 v{g0+4}, v{g0+4}, v{g0+6}
v_mul_f32 v{g0}, {fb(-LOG2E)}, v{g0}
v_mul_f32 v{g0+4}, {fb(-LOG2E)}, v{g0+4}
v_exp_f32 v{g0}, v{g0}
v_exp_f32 v{g0+4}, v{g0+4}
v_lshlrev_b32 v{g0+2}, 7, v{vH}
v_add_f32 v{g0}, 1.0, v{g0}
v_add_f32 v{g0+4}, 1.0, v{g0+4}
v_rcp_f32 v{g0}, v{g0}
v_rcp_f32 v{g0+4}, v{g0+4}
v_add_u32 v{g0+2}, {GT}, v{g0+2}
s_lshr_b32 s{sT0}, s{sW}, 1
ds_write_b32 v{vGw}, v{g0}
ds_write_b32 v{vGw}, v{g0+4} offset:64
v_lshl_add_u32 v{g0+3}, s{sT0}, 6, v{g0+2}
v_sub_f32 v{omg}, 1.0, v{g0}
v_sub_f32 v{omg+2}, 1.0, v{g0+4}""")
    for i in range(4): f(f"ds_read_b128 {V(Eg+4*i,4)}, v{g0+3} offset:{16*i}")
    scale(8, 12)
    for i in range(8): f(f"ds_read_b128 {V(gR+4*i,4)}, v{g0+2} offset:{16*i}")
    for q in range(16): f(f"v_mul_f32 v{accD+q}, v{accD+q}, v{Eg+q}")
    hld = f"""v_min_u32 v{vPo}, 6, v{vL}
v_lshlrev_b32 v{vPo}, 2, v{vPo}
buffer_load_dword v{vPo}, v{vPo}, {S(dPO,4)}, 0 offen offset:{PFL} sc1"""
    f(hld, at=P["egat"])
    scale(12, 32)
    vCnt, vE2 = vE1, Eg + 17
    f(f"""v_lshlrev_b32 v{vT+2}, 4, v{vH}
v_cmp_eq_u32 vcc, 1, v{vH}
v_sub_u32 v{vT+2}, s{sR}, v{vT+2}
v_add_u32 v{vE2}, 128, v{vEr}
v_cndmask_b32 v{cL32}, 1.0, v{cL32}
v_med3_i32 v{vT+2}, v{vT+2}, 0, 16
v_cndmask_b32 v{cL32+1}, 0, v{cL32+1}
v_mul_u32_u24 v{vCnt}, v{vT+2}, v{vE1}
v_cndmask_b32 v{elo}, 0, v{elo}""")
    erd = [f"ds_read2st64_b32 {V(Eg+2*k,2)}, v{vE2 if k & 1 else vEr} offset0:{k>>1} offset1:{(k>>1)+4}" for k in range(7, -1, -1)]
    chk = []
    for k in range(7, 0, -2):
        chk += [f"v_add_u32_sdwa v{vE2+1+i}, v{Eg+2*(k-i)}, v{Eg+2*(k-i)+1} dst_sel:DWORD dst_unused:UNUSED_PAD src0_sel:BYTE_0 src1_sel:BYTE_0" for i in range(2)]
        chk.append(f"v_add3_u32 v{vE0}, v{vE2+1}, v{vE2+2}, {f'v{vE0}' if k < 7 else 0}")
    chk.append(f"v_cmp_ne_u32 vcc, v{vE0}, v{vCnt}")
    F.append([need("eg")] + L(erd[0])); F[-1][0].at = P["echk"]
    f("\n".join(erd[1:]))
    for k in range(1, 8): f(f"v_xor_b32 v{vC[k]}, {16*k}, v{vC[0]}")
    spare = [f"v_add_u32 v{vC[8+k]}, 0x10000, v{vC[k]}" for k in range(8)]
    for k in range(4): f(spare.pop())
    f("\n".join(chk[:-1]))
    F.append(L(chk[-1] + "\ns_cbranch_vccnz L_eretry\nL_eback:"))
    OUT = L(f"""L_eretry:
s_mov_b32 s{sA}, m0
{egp}
L_eloop:
{"s_add_u32 s44, s44, 1" if P["prof"] else ""}
s_add_u32 s{sCNT}, s{sCNT}, 1
""" + "\n".join(gl) + "\ns_waitcnt vmcnt(0)\n" + "\n".join(erd) + f"""
s_cmp_gt_u32 s{sCNT}, 0x8000
s_waitcnt lgkmcnt(0)
s_cbranch_scc1 L_edone
""" + "\n".join(chk) + f"\ns_cbranch_vccnz L_eloop\nL_edone:\ns_mov_b32 m0, s{sA}\ns_branch L_eback")
    def clr(k): f(f"v_and_b32 v{Eg+2*k}, s{sB}, v{Eg+2*k}\nv_and_b32 v{Eg+2*k+1}, s{sB}, v{Eg+2*k+1}")
    clr(7); clr(6)
    for i in range(6, -1, -1):
        a0, a1, b0, b1 = Eg + 2 * i, Eg + 2 * i + 2, Eg + 2 * i + 1, Eg + 2 * i + 3
        f(f"v_fmac_f32 v{a0}, v{cL64}, v{a1}\nv_fmac_f32 v{b0}, v{cL64}, v{b1}\n{cm2(a0, cL64, a1)}\n{cm2(b0, cL64, b1)}")
        if i: clr(i - 1)
    k0, k1, c0, c1, hw = Eg, Eg + 1, Eg + 2, Eg + 3, [vHw, Eg + 9, Eg + 10, Eg + 11]
    f(f"""v_fmac_f32 v{k0}, v{cL512}, v{k1}
v_xor_b32 v{hw[1]}, 16, v{vHw}
{cm2(k0, cL512, k1)}
v_mov_b32 v{k1}, v{k0}
v_xor_b32 v{hw[2]}, 32, v{vHw}
v_xor_b32 v{hw[3]}, 48, v{vHw}
v_permlane32_swap_b32 v{k0}, v{k1}
{spare.pop()}
v_fmac_f32 v{k0}, v{cL1K}, v{k1}
{cm2(k0, cL1K, k1)}
{spare.pop()}
{cm1(c0, cL32, k0, f'v{elo}')}
{cm2(c0, cL32, k0)}
{spare.pop()}
{cm1(c1, cL16, c0, f'v{e0}')}
{cm2(c1, cL16, c0)}
v_mul_f32_dpp v{k0}, v{c0}, v{cS+1} {DPP}
{spare.pop()}
v_mul_f32_dpp v{k1}, v{c1}, v{cS+1} {DPP}
v_fmac_f32 v{k0}, v{c0}, v{cS}
v_fmac_f32 v{k1}, v{c1}, v{cS}""")
    pa, pb = k0, k1
    for q in range(16):
        da, db = accS + q, accS + 16 + q
        f(f"v_fmac_f32 v{da}, v{cL}, v{pa}\nv_fmac_f32 v{db}, v{cL}, v{pb}\n{cm2(da, cL, pa, '-')}\n{cm2(db, cL, pb, '-')}")
        pa, pb = da, db
    for i in range(4):
        for q in range(8 * i, 8 * i + 8): f(f"v_mul_f32 v{gR+q}, v{gR+q}, v{accS+q}")
        for q in range(4): f(f"v_cvt_pk_bf16_f32 v{Eg+16+4*(i&1)+q}, v{gR+8*i+2*q}, v{gR+8*i+2*q+1}")
        f(f"ds_write_b128 v{hw[i]}, {V(Eg+16+4*(i&1),4)}", tok="hw" if i == 3 else None)
    Sq = [At(stamp(), S1 - 1, S1 - 1)] + [At(stamp(True), k, k) for k in P.get("st1", [])]
    Sq = sorted([x for x in Sq if x.ins], key=lambda x: x.dl)
    Fq = []
    for i, x in enumerate(F):
        x0 = x[0] if isinstance(x, list) else x
        Fq.append(At(x, -1 if x0.at is None else x0.at, name=getattr(x0, "nm", None)))
    Fq[NFA - 1].dl = S1 - 4
    st, left = sched(mf, [Sq, Bq, Dq, Rq, Fq], P["bud"], P["co1"], d - 1)
    left = [x for a_ in left for x in a_.ins]
    info = dict(left=len(left), nd=nd)
    M += st
    M += dump("s1")
    M += stamp()
    M += left
    M += dump("scan")
    M += stamp()

    mt, mh, mo = 88, 96, 104
    mf = []
    d2, bd, sel = P["d2"], P["bd"], P["sel"]
    def fragreads(q, kx):
        fr = F2 + 4 * ((8 * q + kx) % RING)
        base = slot(21 + q) * SL
        wn, of = base >> 16, base & 0xffff
        if q % 3 == 0:
            return fr, [I(f"ds_read_b128 {A(fr,4)}, v{vC[8*wn+kx]} offset:{of}", ver=("F", q, kx))]
        return fr, [I(f"ds_read_b64_tr_b16 {A(fr+2*ee,2)}, v{vW2[wn]} offset:{of+(32*(kx>>1)+8*(kx&1)+4*ee)*128}",
                      ver=("F", q, kx)) for ee in range(2)]
    early, pos, spos, Rq, Bq, Aq, bg = [], {}, {}, [], [], [], {}
    def selm(u):
        spos[u] = len(mf)
        acc = V(accD, 16) if u + NC >= 6 else V(acc2 + 16 * ((u + NC) & 1), 16)
        if u + NC < 6: assert 24 * (u + NC) < sel[u] < 24 * (u + NC + 1)
        for i in range(2): mfma(acc, V(Sel + 4 * i, 4), V(inb[u] + 4 * i, 4), acc)
    for q in range(21):
        u = q // 3
        acc = V(accD, 16) if u == 6 else V(acc2 + 16 * (u & 1), 16)
        for kx in range(8):
            km = 8 * q + kx
            for s_ in range(6):
                if sel[s_] == km: selm(s_)
            k = pos[km] = len(mf)
            if kx == 0 and q >= 1:
                bg[q] = P["bx"] if q == 1 else k - bd
                Bq.append(At([needlg("aw")] * (q == 1) + [needlg("act")] * (q == P["qa"]) + [need(("g", 21 + q)), I("s_barrier")], bg[q], bg[q], name=("b", q)))
            fr, r_ = fragreads(q, kx)
            if P.get("hr") and q < 18 and kx & 1:
                fr, r_ = fragreads(q, kx - 1)[0], []
            if k - d2 < 0: early.extend(r_)
            else: Rq += [At(x, pos.get(km - RING, -2) + 1, k - d2, after=[("b", q)] if q >= 1 else []) for x in r_]
            if q % 3 == 0: a_, av = A(aH + 4 * kx, 4), ("h", kx)
            else:
                ka = 8 * (q % 3 - 1) + kx
                a_, av = A(4 * ka, 4), ("act", ka)
            mfma(acc, a_, A(fr, 4), acc if (u == 6 or q % 3 or kx) else "0", [(A(fr, 4), ("F", q, kx if r_ else kx - 1)), (a_, av)])
    NM2 = len(mf)
    for ka in range(16):
        Aq.append(At(I(f"ds_read_b128 {A(4*ka,4)}, v{vAr} offset:{1024*ka}", ver=("act", ka), tok="act" if ka == 15 else None),
                     -1, max(bg[1], min(8 + ka - d2, bg[1] + (ka * (bg[P["qa"]] - 2 - bg[1])) // 15)), after=[("b", 1)]))
    hreads = [I(f"ds_read_b64_tr_b16 {A(aH+4*kx+2*ee,2)}, v{vHr} offset:{(16*kx+4*ee)*128}", ver=("h", kx))
              for kx in range(8) for ee in range(2)] + early
    xd = []
    while D[nd][1][1] < 21 + NPRE: xd.append(D[nd]); nd += 1
    uses = [(0, 1), (0, 0), (1, 1), (1, 0)]
    hb, xg = P["hb"], P["xg"]
    e(f"v_add_u32 v{vW2[1]}, 0x10000, v{vW2[0]}\nv_add_u32 v{vW2[2]}, 0x20000, v{vW2[0]}")
    for b in range(8):
        ft, rt = uses[b >> 1]; kk = b & 1
        h = accF + 32 * ft + 16 * rt + 8 * kk
        o = mo + 4 * (b & 1)
        B = []
        for p in range(4): B += L(f"v_pk_fma_f32 {V(mt+2*p,2)}, {V(h+2*p,2)}, {S(sK1,2)}, -0.5 op_sel_hi:[1,0,0]")
        for p in range(8): B += L(f"v_exp_f32 v{mt+p}, v{mt+p}")
        for p in range(4): B += L(f"v_pk_add_f32 {V(mt+2*p,2)}, {V(mt+2*p,2)}, {S(sK3,2)} op_sel_hi:[1,0]")
        for p in range(4): B += L(f"v_pk_fma_f32 {V(mt+2*p,2)}, {V(mt+2*p,2)}, {V(mt+2*p,2)}, 0.5 op_sel_hi:[1,1,0]")
        for p in range(8): B += L(f"v_rcp_f32 v{mt+p}, v{mt+p}")
        for p in range(4): B += L(f"v_pk_mul_f32 {V(mh+2*p,2)}, {V(h+2*p,2)}, {V(omg+2*rt,2)} op_sel_hi:[1,0]")
        for p in range(4): B += L(f"v_pk_fma_f32 {V(mh+2*p,2)}, {V(mh+2*p,2)}, {V(mt+2*p,2)}, {V(mh+2*p,2)} neg_lo:[1,0,0] neg_hi:[1,0,0]")
        for p in range(4): B += L(f"v_cvt_pk_bf16_f32 v{o+p}, v{mh+2*p}, v{mh+2*p+1}")
        B += L(f"ds_write_b128 v{vAw}, {V(o,4)} offset:{rt*16384+(2*ft+kk)*1024}", tok="aw" if b == 7 else None)
        extra = [[] for _ in range(xg)]
        n_ = int(P["xn"][b]) if b < 7 else len(xd)
        for i in range(n_):
            if slot(xd[0][1][1]) == 9 and b < hb: break
            extra[i * xg // n_] += xd.pop(0)[0]
        n_ = -(-len(hreads) // (8 - b)) if b >= hb else 0
        for i in range(n_): extra[i * xg // n_].append(hreads.pop(0))
        if b == hb: extra[0][0:0] = [needlg("hw"), need(("g", 21)), I("s_barrier")]
        for i, x in enumerate(B):
            if i % (len(B) // xg) == 0 and extra: M += extra.pop(0)
            M.append(x)
    assert not xd and not hreads
    M += dump("x")
    M += stamp()

    def gp(km): return pos[km] if km in pos else None
    Vq = [At(x, 8) for x in L(f"""v_mov_b32 v{vTag}, s{sTAG}
v_lshlrev_b32 v{vL4}, 2, v{vL}
v_lshrrev_b32 v{vMo}, 3, v{vL}
v_mul_u32_u24 v{vMo}, {1792-128}, v{vMo}
v_add_u32 v{vMo}, v{vMo}, v{vLin}
v_add_u32 v{vMo+1}, {8*1792}, v{vMo}
s_add_u32 s{sTG1}, s{sTAG}, 1
{f's_add_u32 s{sKB}, s{sTAG}, 2' if NC == 2 else ''}""")]
    V2 = [At(x, 8) for x in L(f"""v_and_b32 v{t0}, 1, v{vL}
v_lshlrev_b32 v{t0}, 4, v{t0}
v_mov_b32 v{t1}, 0x3f80
v_lshlrev_b32 v{t0}, v{t0}, v{t1}
v_lshrrev_b32 v{t1}, 3, v{vN}
v_bfe_u32 v{t2}, v{vL}, 1, 1
v_lshl_add_u32 v{t1}, v{t1}, 1, v{t2}
v_bfe_u32 v{t2}, v{vL}, 2, 1
v_xor_b32 v{t2}, v{t2}, v{vH}
v_lshl_add_u32 v{t1}, v{t2}, 3, v{t1}
v_mul_u32_u24 v{t2}, {32*1792}, v{vH}
v_lshl_add_u32 v{vOut}, v{vN}, 2, v{t2}
v_lshl_add_u32 v{vOut}, s{sJ}, 8, v{vOut}""")]
    for i in range(0, 8, 2):
        V2.append(At(L(f"""v_cmp_eq_u32 vcc, {i}, v{t1}
v_cmp_eq_u32 s[42:43], {i+1}, v{t1}
s_movk_i32 s{sOO+i}, {3584*i}
v_cndmask_b32 v{Sel+i}, 0, v{t0}
v_cndmask_b32 v{Sel+i+1}, 0, v{t0}, s[42:43]"""), 8))
        V2.append(At(L(f"s_movk_i32 s{sOO+i+1}, {3584*(i+1)}"), 8))
    for i, a_ in enumerate(reversed(V2)): a_.dl = min(list(spos.values()) + [NM2]) - 4 - NC * i
    def chks(dst, r, hop): return [f"v_add3_u32 v{dst}, v{r}, v{r+1}, s{(sTAG, sTG1, sKB)[hop]}"] + [f"v_add3_u32 v{dst}, v{dst}, v{r+2*i}, v{r+2*i+1}" for i in (1, 2, 3)]
    def msg(op, r, tile, c, sd, sw, fl):
        pre_ = f"s_mul_i32 s{sw}, s{tile}, {4*PIN//128}"
        if c < NO:
            pre_ += f"\ns_lshl_b32 s{sd}, s{tile}, 1" if c == 0 else f"\ns_lshl1_add_u32 s{sd}, s{tile}, {32*1792}"
            dat = [f"buffer_{op}_dwordx4 {V(r+4*i,4)}, v{vMo+i}, {S(dO,4)}, s{sd} offen {fl}" for i in range(2)]
            return pre_, dat + [f"buffer_{op}_dword v{r+8}, v{vL4}, {S(dPO,4)}, s{sw} offen offset:{PCK+256*c} {fl}"]
        if PCK > 2048:
            pre_ += f"\ns_add_u32 s{sd}, s{sw}, {2048*(c-NO)}\ns_add_u32 s{sw}, s{sw}, {PCK-2048}"
        else: sd = sw
        dat = [f"buffer_{op}_dwordx4 {V(r+4*i,4)}, v{vLin}, {S(dPO,4)}, s{sd} offen offset:{1024*i} {fl}" for i in range(2)]
        return pre_, dat + [f"buffer_{op}_dword v{r+8}, v{vL4}, {S(dPO,4)}, s{sw} offen offset:{2048+256*c} {fl}"]
    Xq = []
    pre = P.get("pre", "")
    for u in range(6):
        a_ = acc2 + 16 * (u & 1); k0 = pos[24 * u + 23]
        g0_, g1_, g2_ = (k0 + x for x in P["sto"])
        pre_, mm = msg("store", stg, sU + u, u % NC, sT0, sA, "@X")
        for p in range(8):
            Vq.append(At(L(f"v_cvt_pk_bf16_f32 v{stg+p}, v{a_+2*p}, v{a_+2*p+1}"), k0 + 2, (g0_ if p < 4 else g1_) - 1, name=("cv", u, p)))
            if p == 1: Vq.append(At(L(pre_), k0))
        for i, x in enumerate(chks(stg + 8, stg, u // NC)): Vq.append(At(L(x), k0, g2_ - 1, name=("ck", u, i)))
        if "pst" in pre: continue
        for i, g_ in enumerate((g0_, g1_)):
            Xq.append((g_, At(L(mm[i]), g_, g_, after=[("cv", u, 4 * i + 3)], solo=True)))
        Xq.append((g2_, At(L(mm[2]), g2_ - 1, g2_, after=[("ck", u, 3)])))
    OUT2 = []
    def retry(lab, bit, ld, c):
        OUT2.extend(L(f"""L_r{lab}:
{f"s_or_b32 s45, s45, {1 << bit}" if P["prof"] else ""}
{ld}
s_add_u32 s{sCNT}, s{sCNT}, 1
s_waitcnt vmcnt(0)
s_cmp_gt_u32 s{sCNT}, 0x8000
s_cbranch_scc1 L_b{lab}
{c}
s_cbranch_vccnz L_r{lab}
s_branch L_b{lab}"""))
        return L(c + ("" if "nochk" in pre else f"\ns_cbranch_vccnz L_r{lab}") + f"\nL_b{lab}:")
    Xq.append((18, At(L(f"v_cmp_ne_u32 vcc, s{sXT}, v{vPo}\ns_cbranch_vccnz L_mode\nL_near:"), 18, 20)))
    MODE = L(f"""L_mode:
{hld}
s_add_u32 s{sCNT}, s{sCNT}, 1
s_waitcnt vmcnt(0)
s_cmp_gt_u32 s{sCNT}, 0x8000
s_cbranch_scc1 L_nearF
v_subrev_u32 v{t3}, s{sTAG}, v{vPo}
v_cmp_lt_u32 vcc, 15, v{t3}
s_cbranch_vccnz L_mode
v_cmp_ne_u32 vcc, s{sXT}, v{vPo}
s_cbranch_vccnz L_nearF
s_branch L_near""")
    def pl(u, sd=sROT, sw=sB):
        pre_, mm = msg("load", inb[u], sU + min(u + NC, 6), u % NC, sd, sw, "sc1")
        return [pre_ + "\n" + mm[0], mm[1], mm[2]]
    def pchk(u):
        return retry(f"p{u}", u, "\n".join(pl(u, sT1, 42)), "\n".join(chks(t3, inb[u], u // NC)) + f"\nv_cmp_ne_u32 vcc, v{t3}, v{inb[u]+8}")
    tail = []
    for u in range(6):
        k = P["pld"][u]
        if k < 168 and "pld" not in pre:
            for i, x in enumerate(pl(u)): Xq.append((pos[k] + i / 4, At(L(x), pos[k], min(NM2 - 1, pos[k] + 1 + i))))
        if u in spos:
            c = pchk(u)
            Xq.append((spos[u] - 2, At(c[:4], spos[u] - 2, spos[u] - 2)))
            Xq.append((spos[u] - 1, At(c[4:], spos[u] - 1, spos[u] - 1)))
    Xq.sort(key=lambda t: t[0])
    end, cst, cs1 = P["dsp"]
    fixed = collections.Counter()
    for g_, a_ in Xq:
        for x in a_.ins:
            if x.kind in ("vst", "vld"): fixed[int(g_)] += {"vstx4": cst, "vstrd": cs1, "vldx4": 64, "vldrd": 32}[x.kind + x.op[-2:]]
    def plan(c):
        out, busy, n = [], 0, nd
        for k in range(NM2):
            busy = max(busy, k * c) + fixed[k]
            if n == len(D): continue
            q = D[n][1][1] - 21
            if k >= bg[s2bar[q]] and busy + fixed[k + 1] / 2 < (k + 1) * c:
                out.append(k); busy += 64; n += 1
        return out if n == len(D) and out[-1] <= end else None
    c = next(c for c in range(30, 100) if plan(c))
    info["c"] = c
    Dq = []
    for p in plan(c):
        q = D[nd][1][1] - 21
        Dq.append(At(D[nd][0], p, p + 1, after=[("b", s2bar[q])])); nd += 1
    info["du"] = [sum(pos[24 * u] <= p < pos.get(24 * u + 24, 999) for p in [a_.at for a_ in Dq]) for u in range(7)]
    Sq = [At(stamp(True), pos[k], pos[k]) for k in P.get("st2", [])]
    st, left = sched(mf, [Sq, Bq, [x[1] for x in Xq], Dq, Aq, Rq, Vq, V2], P.get("bud2", 32), P["co"], d2 - 1)
    assert not left
    M += st
    M += stamp()
    late = [u for u in range(6) if P["pld"][u] >= 168]
    for u in range(6):
        for u2 in late:
            if P["pld"][u2] - 168 == u or (u2 == u and P["pld"][u2] - 168 > u):
                if "pld" not in pre: e("\n".join(pl(u2)))
        if u in spos: continue
        M += pchk(u)
        for i in range(2): e(f"v_mfma_f32_32x32x16_bf16 {V(accD,16)}, {V(Sel+4*i,4)}, {V(inb[u]+4*i,4)}, {V(accD,16)}")
    M += stamp()
    if P.get("o4"):
        e(f"s_lshl_b32 s{sA}, s{sU+6}, 1\ns_add_u32 s{sB}, s{sA}, {32*1792}")
        for i in range(4): e(f"buffer_store_dwordx4 {V(accD+4*i,4)}, v{vMo+(i&1)}, {S(dO,4)}, s{sA+(i>>1)} offen {P['ost']}")
    for q in range(0 if P.get("o4") else 16 if P.get("no") is None else P["no"]):
        e(f"buffer_store_dword v{accD+q}, v{vOut}, {S(dO,4)}, s{sOO+q//2} offen offset:{1792*(q&1)} {P['ost']}")
    if P.get("amp"):
        a_, b_ = P["amp"]
        M += [vm0()] + stamp(True) + stamp(True, True) + L("s_waitcnt lgkmcnt(0)")
        e(f"""s_cmp_lg_u32 s2, {P.get("ampw", 141)}
s_cbranch_scc1 L_noamp
s_sub_u32 s44, s{sST+2*b_}, s{46 + P.get('ampc', 0) if a_ < 0 else sST+2*a_}
s_lshl_b32 s44, s44, {0 if P.get('ampc') else 4}
s_min_u32 s44, s44, 60000
L_amp:
s_memrealtime s[42:43]
s_waitcnt lgkmcnt(0)
s_sub_u32 s45, s42, s{sST+2*nst[0]-2}
s_cmp_lt_u32 s45, s44
s_cbranch_scc1 L_amp
L_noamp:""")
    elif P["prof"]:
        M += [vm0()] + stamp() + L("s_waitcnt lgkmcnt(0)")
        e(f"""s_memrealtime s[42:43]
s_mul_i32 s{sT0}, s{sR}, 7
s_add_u32 s{sT0}, s{sT0}, s{sJ}
s_lshl_b32 s{sT0}, s{sT0}, 2
s_add_u32 s{sT0}, s{sT0}, s{sW}
s_lshl_b32 s{sT0}, s{sT0}, 6
s_add_u32 s{sT0}, s{sT0}, {WS_DBG}
v_mov_b32 v0, s{sT0}
s_waitcnt lgkmcnt(0)""")
        for i in range(nst[0]):
            e(f"v_mov_b32 v4, s{sST+2*i}\nglobal_store_dword v0, v4, {S(pWS,2)} offset:{4*i}")
        e(f"v_mov_b32 v4, s44\nglobal_store_dword v0, v4, {S(pWS,2)} offset:40")
        e(f"v_mov_b32 v4, s45\nglobal_store_dword v0, v4, {S(pWS,2)} offset:44")
        e(f"v_mov_b32 v4, s46\nglobal_store_dword v0, v4, {S(pWS,2)} offset:52")
        e(f"v_mov_b32 v4, s47\nglobal_store_dword v0, v4, {S(pWS,2)} offset:48")
        e(f"v_mov_b32 v4, s{sCNT}\nglobal_store_dword v0, v4, {S(pWS,2)} offset:56")
        e(f"v_mov_b32 v4, s42\nglobal_store_dword v0, v4, {S(pWS,2)} offset:60")
    e(f"""s_lshl_b32 s{sT0}, s{sJ}, 2
s_add_u32 s{sT0}, s{sT0}, s{sW}
s_lshl_b32 s{sT0}, s{sT0}, 5
s_add_u32 s{sT0}, s{sT0}, s{sR}
s_cmp_lg_u32 s{sT0}, 31
s_cbranch_scc1 L_exit
v_mov_b32 v0, 0
global_store_dword v0, v{vTag}, {S(pWS,2)} sc1
L_exit:
s_endpgm""")
    if "eld" in pre: M = [x for x in M if not (x.kind == "vld" and x.op.endswith("x2")) and "L_eretry" not in x.text]
    if P.get("en") is not None:
        M = [x for x in M if "L_eretry" not in x.text and not (x.kind == "vld" and x.op.endswith("x2") and int(re.search(r"offset:(\d+)", x.text).group(1)) // 256 % (16 // P["en"]))]
    if "esto" in pre: M = [x for x in M if not (x.kind == "vst" and x.op.endswith("x2")) and "L_eretry" not in x.text]
    body, nops = finalize(M, P.get("verbose"))
    drop = P.get("drop", "")
    if "dma" in drop: body = [x for x in body if x.kind != "dma"]
    if "est" in drop: body = [x for x in body if not (x.kind in ("vst", "vld") and x.op.endswith("x2")) and "L_eretry" not in x.text]
    if "bar" in drop: body = [x for x in body if x.op != "s_barrier"]
    if "dsr" in drop: body = [x for x in body if x.kind != "dsr"]
    if "dsw" in drop: body = [x for x in body if x.kind != "dsw"]
    if "wait" in drop: body = [x for x in body if not (x.op == "s_waitcnt" and "lgkmcnt(0)" not in x.text)]
    if "mfma" in drop: body = [x for x in body if x.kind != "mfma"]
    info["nops"] = nops; info["n"] = len(body); info["model"] = model(body)
    PF = L(f"""L_pf:
v_lshlrev_b32 v7, 7, v0
s_and_b32 s50, 7, s2
s_lshr_b32 s51, s2, 3
s_lshl2_add_u32 s50, s50, s51
s_mov_b32 s79, 0x20000
s_waitcnt lgkmcnt(0)""")
    k, npf = 8, 1
    cnt = collections.Counter()
    if P["prof"]: PF += L("s_memtime s[84:85]")
    for c in P["pfo"] + ("." if P["prof"] else ""):
        if c == ".":
            PF += L("s_waitcnt vmcnt(0)")
            if P["prof"] and npf < 6: PF += L(f"s_memtime s[{84+2*npf}:{85+2*npf}]"); npf += 1
            continue
        ptr, idx, sz, off = dict(a=(pW1, 2, WSZ // 32, 0), c=(pW2, 2, WSZ // 32, 0), b=(pCRE, 2, MSZ // 32, 0), B=(pCIM, 2, MSZ // 32, 0),
                                 o=(pOUT, 50, 64 * 1792, 0), w=(pWS, 50, 28 * PIN, WS_P))[c]
        pc = -(-sz // 128 // P["pfo"].count(c)) * 128
        assert pc <= 32768
        PF += L(f"""s_mul_i32 s76, s{idx}, {sz}
s_add_u32 s76, s76, {off + pc * cnt[c]}
s_add_u32 s76, s76, s{ptr}
s_addc_u32 s77, s{ptr+1}, 0
s_mov_b32 s78, {min(pc, sz - pc * cnt[c])}
buffer_load_dword v{k}, v7, s[76:79], 0 offen"""); k += 1; cnt[c] += 1
    if P["prof"]:
        PF += L(f"s_waitcnt lgkmcnt(0)\ns_lshl_b32 s50, s2, 6\ns_add_u32 s50, s50, {WS_DBG + 65536}\nv_mov_b32 v0, s50")
        for i in range(npf): PF += L(f"s_sub_u32 s50, s{84+2*i}, s96\nv_mov_b32 v4, s50\nglobal_store_dword v0, v4, {S(pWS,2)} offset:{4*i}")
    PF += L("L_pe:\ns_endpgm")
    txt = [f"; @launch grid=(256,1,1) block=(256,1,1) lds=163840",
           '.amdgcn_target "amdgcn-amd-amdhsa--gfx950"', ".text", f".globl {NAME}_kernel", ".p2align 8",
           f".type {NAME}_kernel,@function", f"{NAME}_kernel:"]
    near = [x.text for x in body + OUT2]
    far = [re.sub(r"\b(L_\w+)", r"\1F", t).replace("@X", "sc1") for t in near[near.index("L_near:"):]]
    txt += [t.replace("@X", P["sfl"]).rstrip() for t in near] + [x.text for x in OUT + MODE + PF] + far
    txt.append(f""".section .rodata,"a"
.p2align 6
.amdhsa_kernel {NAME}_kernel
  .amdhsa_next_free_vgpr 512
  .amdhsa_next_free_sgpr 102
  .amdhsa_accum_offset 256
  .amdhsa_group_segment_fixed_size 0
  .amdhsa_kernarg_size 136
  .amdhsa_user_sgpr_count 2
  .amdhsa_user_sgpr_kernarg_segment_ptr 1
  .amdhsa_system_sgpr_workgroup_id_x 1
.end_amdhsa_kernel""")
    return "\n".join(txt) + "\n", info

if __name__ == "__main__":
    kw = {}
    for a in sys.argv[2:]:
        k, v = a.split("=", 1); kw[k] = eval(v)
    t, info = gen(**kw)
    open(sys.argv[1], "w").write(t)
    print(info)
```
